```python
import torch

def _softmax(x, axis=-1):
    return torch.softmax(x, dim=axis)

def _gelu(x):
    return torch.nn.functional.gelu(x, approximate='tanh')

def _silu(x):
    return torch.nn.functional.silu(x)

def _sigmoid(x):
    return torch.sigmoid(x)

def _layernorm(x, axis=-1, eps=1e-05):
    m = x.mean(dim=axis, keepdim=True)
    v = x.var(dim=axis, keepdim=True, unbiased=False)
    return (x - m) / torch.sqrt(v + eps)

def _scatter_add(tgt, idx, src, axis=0):
    return tgt.clone().index_add_(axis, idx, src)

def _segment_sum(src, seg, n):
    out = torch.zeros((n,) + src.shape[1:], dtype=src.dtype)
    return out.index_add_(0, seg, src)

def _pad(x, pw):
    flat = tuple((v for pair in reversed(pw) for v in pair))
    return torch.nn.functional.pad(x, flat)
kernel_name = 'adaLN_cond__ssm_conv_h3__moe_arch_mod__prompt'

def setup_inputs():

    _w = lambda a: (lambda t: t.to(torch.bfloat16) if t.is_floating_point() else t)(torch.as_tensor(a))

    def _A_setup():
        B, S, D = (1, 2048, 512)
        ks = 4
        return {'q': _w((lambda *s: torch.randn(*s, dtype=torch.bfloat16) * 0.1)(B, S, D)), 'k': _w((lambda *s: torch.randn(*s, dtype=torch.bfloat16) * 3.2)(B, S, D)), 'v': _w((lambda *s: torch.randn(*s, dtype=torch.bfloat16) * 3.2)(B, S, D)), 'shift_k': _w((lambda *s: torch.randn(*s, dtype=torch.bfloat16) * 3.2)(D, ks) * 0.5), 'ssm_k': _w((lambda *s: torch.randn(*s, dtype=torch.bfloat16) * 3.2)(D, S) * (1.0 / S ** 0.5)), 'ssm_D': _w((lambda *s: torch.randn(*s, dtype=torch.bfloat16) * 3.2)(D))}
    _A_in = _A_setup()

    def _B_setup():
        B, S, D, F, C = (1, 2048, 512, 1792, 8)
        return {'x': _w((lambda *s: torch.randn(*s, dtype=torch.bfloat16) * 0.1)(B, S, D)), 'w_r': _w((lambda *s: torch.randn(*s, dtype=torch.bfloat16) * 0.4)(D)), 'w_gate': _w((lambda *s: torch.randn(*s, dtype=torch.bfloat16) * 0.4)(D, F)), 'w_up': _w((lambda *s: torch.randn(*s, dtype=torch.bfloat16) * 0.4)(D, F)), 'w_down': _w((lambda *s: torch.randn(*s, dtype=torch.bfloat16) * 0.4)(F, D))}
    _B_in = _B_setup()
    return {'A_q': _A_in['q'], 'A_k': _A_in['k'], 'A_v': _A_in['v'], 'A_shift_k': _A_in['shift_k'], 'A_ssm_k': _A_in['ssm_k'], 'A_ssm_D': _A_in['ssm_D'], 'B_x': _B_in['x'], 'B_w_r': _B_in['w_r'], 'B_w_gate': _B_in['w_gate'], 'B_w_up': _B_in['w_up'], 'B_w_down': _B_in['w_down'], 'c': _w((lambda *s: torch.randn(*s, dtype=torch.bfloat16) * 0.2)(1, 512) * 8.0), 'w_mod': _w((lambda *s: torch.randn(*s, dtype=torch.bfloat16) * 0.2)(512, 6 * 512) * 512 ** (-0.5) * 8.0)}

def reference(A_q, A_k, A_v, A_shift_k, A_ssm_k, A_ssm_D, B_x, B_w_r, B_w_gate, B_w_up, B_w_down, c, w_mod):

    def _A_ref(q, k, v, shift_k, ssm_k, ssm_D):
        B, S, D = q.shape
        ks = shift_k.shape[-1]
        k_pad = _pad(k, ((0, 0), (ks - 1, 0), (0, 0)))
        k_shift = torch.zeros_like(k)
        for t in range(ks):
            k_shift = k_shift + k_pad[:, t:t + S, :] * shift_k[:, ks - 1 - t][None, None, :]
        kv = k_shift * v
        L = 2 * S
        kv_pad = _pad(kv, ((0, 0), (0, S), (0, 0)))
        kf_pad = _pad(ssm_k, ((0, 0), (0, S)))
        kv_f = (lambda x, axes=(-2, -1): torch.fft.rfft2(x.float(), dim=axes))(kv_pad[:, None, :, :], axes=(1, 2))
        kf_f = (lambda x, axes=(-2, -1): torch.fft.rfft2(x.float(), dim=axes))(kf_pad[:, None, :], axes=(1, 2))
        kf_f = (lambda x, *d: x.permute(*d))(kf_f, 1, 2, 0)
        y_f = kv_f * kf_f[None, :, :, :]
        y = (lambda x, s, axes=(-2, -1): torch.fft.irfft2(x, s=s, dim=axes).to(torch.bfloat16))(y_f, (1, L), axes=(1, 2))[:, 0, :S, :]
        y = y + kv * ssm_D[None, None, :]
        return q * y

    def _B_ref(x, w_r, w_gate, w_up, w_down):
        B, S, D = x.shape
        C = 8
        r = x @ w_r
        idx = torch.argsort(-r, axis=-1)[:, :C]
        idx_e = (lambda x, n, axis: torch.repeat_interleave(x, n, dim=axis))(idx.reshape(B, C, 1), D, axis=2)
        x_sel = (lambda x, i, axis: torch.take_along_dim(x, i, dim=axis))(x, idx_e, axis=1)
        g = _silu(x_sel @ w_gate)
        u = x_sel @ w_up
        y = g * u @ w_down
        r_sel = _sigmoid((lambda x, i, axis: torch.take_along_dim(x, i, dim=axis))(r, idx, axis=1))
        y = y * r_sel.reshape(B, C, 1)
        b_off = (torch.arange(B) * S).reshape(B, 1)
        flat_idx = (idx + b_off).reshape(B * C)
        zero = (x * 0.0).reshape(B * S, D)
        upd = _scatter_add(zero, flat_idx, y.reshape(B * C, D), axis=0)
        return x + upd.reshape(B, S, D)
    x = A_q
    mod = (_silu(c) @ w_mod).reshape(c.shape[0], 6, 1, -1)
    sa, ca, ga, sb, cb, gb = (mod[:, 0].clone(), mod[:, 1].clone(), mod[:, 2].clone(), mod[:, 3].clone(), mod[:, 4].clone(), mod[:, 5].clone())
    h = _layernorm(x, axis=-1) * (1 + ca) + sa
    x = x + ga * _A_ref(h, A_k, A_v, A_shift_k, A_ssm_k, A_ssm_D)
    h = _layernorm(x, axis=-1) * (1 + cb) + sb
    x = x + gb * _B_ref(h, B_w_r, B_w_gate, B_w_up, B_w_down)
    return x
```

```python
import re

def split_ops(s):
    out, depth, cur = [], 0, ''
    for ch in s:
        if ch in '[(':
            depth += 1
        elif ch in '])':
            depth -= 1
        if ch == ',' and depth == 0:
            out.append(cur.strip()); cur = ''
        else:
            cur += ch
    if cur.strip():
        out.append(cur.strip())
    return out

_reg_re = re.compile(r'^(-|\|)?(abs\()?([vsa])(\d+|\[(\d+):(\d+)\])')
def regs_of(tok):
    t = tok.split()[0] if tok.split() else ''
    t = t.lstrip('-').strip('|')
    if t.startswith('abs('):
        t = t[4:].rstrip(')')
    if t in ('vcc',): return [('s', 'vcc_lo'), ('s', 'vcc_hi')]
    if t in ('vcc_lo', 'vcc_hi', 'exec_lo', 'exec_hi', 'm0'): return [('s', t)]
    if t == 'exec': return [('s', 'exec_lo'), ('s', 'exec_hi')]
    m = re.match(r'^([vsa])(\d+)$', t)
    if m: return [(m.group(1), int(m.group(2)))]
    m = re.match(r'^([vsa])\[(\d+):(\d+)\]$', t)
    if m: return [(m.group(1), i) for i in range(int(m.group(2)), int(m.group(3)) + 1)]
    return []

TRANS = ('v_exp_f32', 'v_log_f32', 'v_rcp_f32', 'v_rsq_f32', 'v_sqrt_f32', 'v_sin_f32', 'v_cos_f32', 'v_rcp_iflag_f32')
NODST_S = ('s_cmp', 's_waitcnt', 's_barrier', 's_branch', 's_cbranch', 's_nop', 's_setprio', 's_sleep', 's_endpgm', 's_bitcmp', 's_setreg', 's_sendmsg')
EXEC = [('s', 'exec_lo'), ('s', 'exec_hi')]
VCC = [('s', 'vcc_lo'), ('s', 'vcc_hi')]

class Ins:
    __slots__ = ('mn', 'text', 'wr', 'rd', 'kind', 'slot', 'srcC', 'srcAB', 'passes', 'dpp_src', 'lanesel', 'data', 'wide', 'sconst', 'opsel')

def parse(text):
    text = text.strip()
    sp = text.split(None, 1)
    mn = sp[0]; rest = sp[1] if len(sp) > 1 else ''
    ops = split_ops(rest)
    I = Ins(); I.mn = mn; I.text = text; I.wr = []; I.rd = []; I.srcC = []; I.srcAB = []; I.passes = 0
    I.dpp_src = []; I.lanesel = []; I.data = []; I.wide = False; I.sconst = []; I.opsel = False
    R = [regs_of(o) for o in ops]
    last = ops[-1] if ops else ''
    if mn.startswith('v_mfma'):
        I.kind = 'mfma'; I.wr = R[0]; I.srcAB = R[1] + R[2]; I.srcC = R[3]; I.rd = I.srcAB + I.srcC
        I.passes = 4 if '16x16x32' in mn else 8 if '32x32x16' in mn else 16
    elif mn.startswith('v_'):
        I.kind = 'trans' if re.sub(r'_(e32|e64|dpp|sdwa)$', '', mn) in TRANS else 'valu'
        base = mn
        if mn.startswith('v_cmp'):
            I.wr = list(R[0]); I.rd = sum(R[1:], [])
            if mn.startswith('v_cmpx'): I.wr += EXEC
        elif mn.startswith('v_readlane') or mn.startswith('v_readfirstlane'):
            I.kind = 'readlane'; I.wr = R[0]; I.rd = sum(R[1:], [])
            if len(R) > 2: I.lanesel = R[2]
        elif mn.startswith('v_writelane'):
            I.kind = 'writelane'; I.wr = R[0]; I.rd = R[0] + sum(R[1:], []); I.lanesel = R[2]
        elif re.match(r'v_(add|sub|subrev|addc|subb|subbrev)_co_', mn) or mn.startswith('v_div_scale') or mn.startswith('v_mad_u64'):
            I.wr = R[0] + R[1]; I.rd = sum(R[2:], [])
        elif mn.startswith('v_permlane') and 'swap' in mn:
            I.kind = 'permlane'; I.wr = R[0] + R[1]; I.rd = R[0] + R[1]
        elif mn == 'v_nop':
            pass
        else:
            I.wr = R[0]; I.rd = sum(R[1:], [])
            if re.match(r'v_(fmac|mac|dot2c|pk_fmac)', mn): I.rd = I.rd + R[0]
        if '_dpp' in mn or re.search(r'\b(row_shr|row_shl|row_ror|quad_perm|row_bcast|row_mirror|row_half_mirror|wave_sh|wave_ro|row_newbcast)', rest):
            I.dpp_src = R[1]; I.rd = I.rd + R[0]
        if '_sdwa' in mn and 'dst_sel:DWORD' not in rest: I.opsel = True; I.rd = I.rd + R[0]
        if I.kind in ('valu', 'trans', 'permlane', 'writelane'):
            I.sconst = [r for r in I.rd if r[0] == 's' and r not in I.lanesel]
    elif mn.startswith('ds_'):
        I.kind = 'ds'
        if re.match(r'ds_(read|bpermute|permute|swizzle)', mn) or '_rtn' in mn:
            I.wr = R[0]; I.rd = sum(R[1:], [])
            if 'd16' in mn: I.rd = I.rd + R[0]
        else:
            I.rd = sum(R, [])
    elif mn.startswith('buffer_') or mn.startswith('global_') or mn.startswith('flat_'):
        I.kind = 'vmem'
        islds = bool(re.search(r'\blds\b', last)) or '_lds_' in mn
        if islds:
            I.rd = sum(R, []) + [('s', 'm0')]; I.kind = 'vmem_lds'
        elif '_load' in mn:
            I.wr = R[0]; I.rd = sum(R[1:], [])
            if 'd16' in mn: I.rd = I.rd + R[0]
        elif '_atomic' in mn:
            if mn.startswith('buffer_'):
                I.rd = sum(R, [])
                if re.search(r'\bsc0\b', last): I.wr = R[0]
            else:
                if re.search(r'\bsc0\b', last): I.wr = R[0]; I.rd = sum(R[1:], [])
                else: I.rd = sum(R, [])
        elif '_store' in mn:
            I.rd = sum(R, [])
            I.data = R[0] if mn.startswith('buffer_') else R[1]
            I.wide = ('x3' in mn or 'x4' in mn)
        else:
            I.rd = sum(R, [])
    elif mn.startswith('s_load') or mn.startswith('s_buffer_load') or mn.startswith('s_memtime') or mn.startswith('s_memrealtime'):
        I.kind = 'smem'; I.wr = R[0]; I.rd = sum(R[1:], [])
    elif mn.startswith('s_'):
        I.kind = 'salu'
        if any(mn.startswith(p) for p in NODST_S):
            I.rd = sum(R, [])
            if mn.startswith('s_cbranch_vcc'): I.rd = VCC
            if mn.startswith('s_cbranch_exec'): I.rd = EXEC
        else:
            I.wr = R[0]; I.rd = sum(R[1:], [])
            if 'saveexec' in mn: I.wr = I.wr + EXEC; I.rd = I.rd + EXEC
            if re.match(r's_(addk|mulk|bitset|cmov)', mn): I.rd = I.rd + R[0]
    else:
        raise ValueError('unknown instr ' + text)
    return I

def inter(a, b):
    if not a or not b: return False
    sb = set(b)
    return any(x in sb for x in a)

class Asm:
    def __init__(self):
        self.lines = []
        self.hist = []
        self.slot = 0
        self.vm = []
        self.lg = []
        self.nops_inserted = 0
        self.auto_wait = True
    def raw(self, s):
        self.lines.append(s)
    def comment(self, s):
        self.lines.append('    ; ' + s)
    def reset(self):
        self.hist = []; self.vm = []; self.lg = []
    def label(self, name):
        self.lines.append(name + ':')
    def _need(self, I):
        need = 0
        isvalu = lambda k: k in ('valu', 'trans', 'readlane', 'writelane', 'permlane')
        for P in self.hist:
            d = self.slot - P.slot - 1
            w = 0
            pv = isvalu(P.kind)
            if pv:
                pw_v = [r for r in P.wr if r[0] in 'va']
                pw_s = [r for r in P.wr if r[0] == 's']
                if I.dpp_src and inter(pw_v, I.dpp_src): w = max(w, 2)
                if I.dpp_src and inter(pw_s, EXEC): w = max(w, 5)
                if I.kind == 'readlane' and inter(pw_v, I.rd): w = max(w, 1)
                if I.kind == 'permlane' and inter(pw_v, I.rd): w = max(w, 2)
                if I.kind == 'mfma' and inter(pw_v, I.rd): w = max(w, 2)
                if I.kind == 'mfma' and inter(pw_s, EXEC): w = max(w, 4)
                if I.kind in ('readlane', 'writelane', 'permlane') and inter(pw_s, EXEC): w = max(w, 4)
                if pw_s:
                    if I.sconst and inter(pw_s, I.sconst): w = max(w, 2)
                    if I.lanesel and inter(pw_s, I.lanesel): w = max(w, 4)
                    if I.kind in ('vmem', 'vmem_lds') and inter(pw_s, I.rd): w = max(w, 5)
                    if I.kind in ('salu', 'smem') and inter(pw_s, I.rd): w = max(w, 1 if not I.mn.startswith('s_cbranch') else 5)
                if P.kind == 'trans' and isvalu(I.kind) and I.kind != 'trans' and inter(pw_v, I.rd): w = max(w, 1)
                if P.kind == 'trans' and I.kind == 'trans' and inter(pw_v, I.rd): w = max(w, 1)
                if P.opsel and isvalu(I.kind) and (inter(pw_v, I.rd) or inter(pw_v, I.wr)): w = max(w, 1)
            if P.kind == 'mfma':
                tab_c = {4: 6, 8: 10, 16: 18}; tab_o = {4: 8, 8: 12, 16: 20}; tab_war = {4: 3, 8: 7, 16: 15}
                if I.kind == 'mfma':
                    if inter(P.wr, I.srcAB): w = max(w, tab_o[P.passes])
                    if inter(P.wr, I.srcC) and not (P.wr == I.srcC and P.passes == I.passes): w = max(w, tab_c[P.passes])
                    if inter(P.wr, I.wr) and not (P.wr == I.srcC): w = max(w, tab_c[P.passes])
                else:
                    if inter(P.wr, I.rd) or inter(P.wr, I.wr): w = max(w, tab_o[P.passes])
                    if (isvalu(I.kind) or I.kind in ('ds', 'vmem')) and inter(P.srcC, I.wr): w = max(w, tab_war[P.passes])
            if P.kind == 'salu' and inter(P.wr, [('s', 'm0')]) and I.kind == 'vmem_lds': w = max(w, 1)
            if P.kind == 'vmem' and P.wide and inter(P.data, I.wr): w = max(w, 2)
            need = max(need, w - d)
        return need
    def _push(self, I, slots=1):
        I.slot = self.slot + slots - 1
        self.slot += slots
        self.hist.append(I)
        while self.hist and self.slot - self.hist[0].slot > 24:
            self.hist.pop(0)
    def nop(self, n):
        while n > 0:
            k = min(n, 16)
            self.lines.append('    s_nop %d' % (k - 1))
            J = parse('s_nop %d' % (k - 1)); self._push(J, k)
            n -= k
    def wait(self, vm=None, lg=None):
        parts = []
        if vm is not None:
            vm = min(vm, 63)
            parts.append('vmcnt(%d)' % vm)
            while len(self.vm) > vm: self.vm.pop(0)
        if lg is not None:
            lg = min(lg, 15)
            parts.append('lgkmcnt(%d)' % lg)
            while len(self.lg) > lg: self.lg.pop(0)
        t = 's_waitcnt ' + ' '.join(parts)
        self.lines.append('    ' + t)
        self._push(parse(t))
    def __call__(self, text):
        for t in text.strip().split('\n'):
            t = t.split(';')[0].strip()
            if t: self.emit(t)
    def emit(self, text):
        I = parse(text)
        if self.auto_wait:
            touched = I.rd + I.wr
            vmn = None; lgn = None
            for i, regs in enumerate(self.vm):
                if inter(regs, touched): vmn = len(self.vm) - 1 - i
            anysm = any(sm for _, sm in self.lg)
            for i, (regs, sm) in enumerate(self.lg):
                if inter(regs, touched): lgn = 0 if anysm else len(self.lg) - 1 - i
            if vmn is not None or lgn is not None:
                self.wait(vmn, lgn)
        n = self._need(I)
        if n > 0:
            self.nops_inserted += n
            self.nop(n)
        self.lines.append('    ' + text)
        self._push(I)
        if I.kind in ('vmem', 'vmem_lds'): self.vm.append(list(I.wr))
        if I.kind == 'ds': self.lg.append((list(I.wr), False))
        if I.kind == 'smem': self.lg.append((list(I.wr), True))
        if I.mn == 's_waitcnt': raise ValueError('use wait()')
    def text(self):
        return '\n'.join(self.lines) + '\n'
```

```python
import sys
from asmlib import Asm

NAME = 'adaLN_cond__ssm_conv_h3__moe_arch_mod__prompt'
KA = dict(q=0, k=8, v=16, shk=24, ssmk=32, ssmD=40, bx=48, wr=56, wg=64, wu=72, wd=80, c=88, wmod=96, out=104, dbg=112, ws=120)
MiB = 1 << 20
UP = 8256
U0OFF = 4112
WS_U = 0
WS_MOD = 5 * MiB
WS_Z = 6 * MiB
WS_H2 = 8 * MiB
WS_X1 = 10 * MiB
WS_KEY = 12 * MiB
WS_ACT = 12 * MiB + 65536
WS_SEL = 12 * MiB + 131072
WS_END = 13 * MiB

a = Asm()
LOG2E = 0x3fb8aa3b

def kstart(name):
    a.raw('.p2align 8'); a.raw('.globl %s' % name); a.raw('.type %s,@function' % name); a.label(name); a.reset()

def srd(s, ptr, size, add=0):
    if add:
        a('s_add_u32 s%d, s%d, 0x%x' % (s, ptr, add)); a('s_addc_u32 s%d, s%d, 0' % (s + 1, ptr + 1))
    else:
        a('s_mov_b32 s%d, s%d' % (s, ptr)); a('s_mov_b32 s%d, s%d' % (s + 1, ptr + 1))
    a('s_mov_b32 s%d, 0x%x' % (s + 2, size)); a('s_mov_b32 s%d, 0x00020000' % (s + 3))

def lo(d, s): a('v_lshlrev_b32 v%d, 16, v%d' % (d, s))
def hi(d, s, m): a('v_and_b32 v%d, s%d, v%d' % (d, m, s))
def rb(d, s): a('v_cvt_pk_bf16_f32 v%d, 0, v%d' % (d, s))
def pk(op, d, x, y, extra=''): a('v_pk_%s_f32 v[%d:%d], v[%d:%d], %s %s' % (op, d, d + 1, x, x + 1, y, extra))
def vp(r): return 'v[%d:%d]' % (r, r + 1)
def vq(r): return 'v[%d:%d]' % (r, r + 3)
def sq(r): return 's[%d:%d]' % (r, r + 3)
def sp(r): return 's[%d:%d]' % (r, r + 1)

def wave_reduce(op, regs):
    for ctl in ('row_shr:1 row_mask:0xf bank_mask:0xf', 'row_shr:2 row_mask:0xf bank_mask:0xf', 'row_shr:4 row_mask:0xf bank_mask:0xf',
                'row_shr:8 row_mask:0xf bank_mask:0xf', 'row_bcast:15 row_mask:0xa bank_mask:0xf', 'row_bcast:31 row_mask:0xc bank_mask:0xf'):
        for r in regs:
            a('%s_dpp v%d, v%d, v%d %s' % (op, r, r, r, ctl))

def xcdmap(dst, src, per_log2):
    a('s_and_b32 s%d, s%d, 7' % (dst, src)); a('s_lshl_b32 s%d, s%d, %d' % (dst, dst, per_log2))
    a('s_lshr_b32 s3, s%d, 3' % src); a('s_add_u32 s%d, s%d, s3' % (dst, dst))

def gen_k0():
    kstart('k0_kernel')
    a('s_cmp_ge_u32 s2, 352'); a('s_cbranch_scc1 k0_end')
    a('s_cmp_ge_u32 s2, 256'); a('s_cbranch_scc1 k0_mod')
    a('s_load_dwordx4 s[4:7], s[0:1], 8')
    a('s_load_dwordx4 s[8:11], s[0:1], 24')
    a('s_load_dwordx2 s[12:13], s[0:1], 120')
    a('s_mov_b32 s40, 0xffff0000')
    a('s_and_b32 s14, s2, 7')
    a('s_lshr_b32 s15, s2, 3')
    a('v_and_b32 v1, 15, v0')
    a('v_lshrrev_b32 v2, 4, v0')
    a('s_lshl_b32 s16, s15, 6')
    a('v_lshl_add_u32 v3, v2, 2, s16')
    a('s_lshl_b32 s17, s14, 7')
    a('v_lshl_add_u32 v4, v1, 3, s17')
    a('v_lshl_add_u32 v5, v3, 10, v4')
    a('v_subrev_u32 v6, 3072, v5')
    a('v_mov_b32 v7, 0x80000000')
    a('v_cmp_eq_u32 vcc, 0, v3')
    a('v_cndmask_b32 v6, v6, v7, vcc')
    a('v_lshlrev_b32 v7, 2, v4')
    srd(20, 4, 2 * MiB); srd(24, 6, 2 * MiB); srd(28, 8, 4096); srd(32, 10, 2 * MiB); srd(36, 12, WS_MOD, 0)
    KR = 10
    VR = 24
    WR = 32
    for i in range(3): a('buffer_load_dwordx2 %s, v6, s[20:23], 0 offen offset:%d' % (vp(KR + 2 * i), 1024 * i))
    for i in range(4): a('buffer_load_dwordx2 %s, v5, s[20:23], 0 offen offset:%d' % (vp(KR + 6 + 2 * i), 1024 * i))
    a('buffer_load_dwordx4 %s, v7, s[28:31], 0 offen' % vq(WR)); a('buffer_load_dwordx4 %s, v7, s[28:31], 0 offen offset:16' % vq(WR + 4))
    for i in range(4): a('buffer_load_dwordx2 %s, v5, s[24:27], 0 offen offset:%d' % (vp(VR + 2 * i), 1024 * i))
    a('s_lshl_b32 s18, s14, 18'); a('s_lshl_b32 s19, s15, 13'); a('s_add_u32 s18, s18, s19')
    a('v_lshlrev_b32 v8, 4, v0')
    a('buffer_load_dwordx4 v[120:123], v8, s[32:35], s18 offen')
    a('s_add_u32 s19, s18, 4096')
    a('buffer_load_dwordx4 v[124:127], v8, s[32:35], s19 offen')
    a('v_lshrrev_b32 v8, 1, v4')
    a('s_mov_b32 s19, %d' % UP)
    a('v_mul_lo_u32 v8, v8, s19')
    a('v_lshlrev_b32 v9, 1, v3')
    a('v_sub_u32 v8, v8, v9')
    a('v_add_u32 v8, 4088, v8')
    a('v_add_u32 v9, %d, v8' % (U0OFF - 2))
    W = 40
    for c in range(4):
        lo(W + 0 + c, WR + 2 * c); hi(W + 4 + c, WR + 2 * c, 40); lo(W + 8 + c, WR + 2 * c + 1); hi(W + 12 + c, WR + 2 * c + 1, 40)
    KF = 56
    for i in range(7):
        lo(KF + 4 * i, KR + 2 * i); hi(KF + 4 * i + 1, KR + 2 * i, 40); lo(KF + 4 * i + 2, KR + 2 * i + 1); hi(KF + 4 * i + 3, KR + 2 * i + 1, 40)
    VF = 84
    for i in range(4):
        lo(VF + 4 * i, VR + 2 * i); hi(VF + 4 * i + 1, VR + 2 * i, 40); lo(VF + 4 * i + 2, VR + 2 * i + 1); hi(VF + 4 * i + 3, VR + 2 * i + 1, 40)
    S = 100
    P = 10
    for i in range(4):
        for h in (0, 2): pk('mul', S + 4 * i + h, KF + 4 * i + h, vp(W + 12 + h))
    for r in range(16): rb(S + r, S + r)
    for t in (1, 2, 3):
        for i in range(4):
            for h in (0, 2): pk('mul', P + 4 * i + h, KF + 4 * (i + t) + h, vp(W + 4 * (3 - t) + h))
        for r in range(16): rb(P + r, P + r)
        for r in range(0, 16, 2): pk('add', S + r, S + r, vp(P + r))
        for r in range(16): rb(S + r, S + r)
    for r in range(0, 16, 2): pk('mul', S + r, S + r, vp(VF + r))
    O = 56
    for c in range(4):
        a('v_cvt_pk_bf16_f32 v%d, v%d, v%d' % (O + 2 * c, S + 12 + c, S + 8 + c))
        a('v_cvt_pk_bf16_f32 v%d, v%d, v%d' % (O + 2 * c + 1, S + 4 + c, S + c))
    for c in range(4):
        a('s_mov_b32 s%d, %d' % (41 + c, c * UP))
    for c in range(4):
        a('buffer_store_dwordx2 %s, v8, s[36:39], s%d offen' % (vp(O + 2 * c), 41 + c))
        a('buffer_store_dwordx2 %s, v9, s[36:39], s%d offen' % (vp(O + 2 * c), 41 + c))
    a('v_cmp_eq_u32 vcc, 0, v3')
    a('s_and_saveexec_b64 s[46:47], vcc')
    a('s_cbranch_execz k0_end')
    a('v_mov_b32 v10, 0')
    for c in range(4):
        a('buffer_store_short v10, v9, s[36:39], s%d offen offset:8' % (41 + c))
    a('s_endpgm')
    a.label('k0_mod'); a.reset()
    a('s_load_dwordx4 s[4:7], s[0:1], 88')
    a('s_load_dwordx2 s[12:13], s[0:1], 120')
    a('s_mov_b32 s40, 0xffff0000')
    a('s_sub_u32 s14, s2, 256')
    a('v_and_b32 v1, 3, v0'); a('v_lshrrev_b32 v2, 2, v0')
    a('v_lshlrev_b32 v3, 4, v2')
    a('s_mov_b32 s15, %d' % (8 * 6144))
    a('v_mul_lo_u32 v4, v2, s15')
    a('v_lshl_add_u32 v4, v1, 4, v4')
    a('s_lshl_b32 s16, s14, 6')
    srd(20, 4, 1024); srd(24, 6, 3 * MiB); srd(28, 12, 12288, WS_MOD)
    a('buffer_load_dwordx4 v[8:11], v3, s[20:23], 0 offen')
    for i in range(8):
        a('s_add_u32 s%d, s16, %d' % (41 + i, i * 6144))
    for i in range(8):
        a('buffer_load_dwordx4 %s, v4, s[24:27], s%d offen' % (vq(16 + 4 * i), 41 + i))
    C = 48
    for i in range(4): lo(C + 2 * i, 8 + i); hi(C + 2 * i + 1, 8 + i, 40)
    E = 56
    a('s_mov_b32 s17, 0x%x' % (LOG2E | 0x80000000))
    for i in range(8): a('v_mul_f32 v%d, s17, v%d' % (E + i, C + i))
    for i in range(8): a('v_exp_f32 v%d, v%d' % (E + i, E + i))
    for i in range(8): a('v_add_f32 v%d, 1.0, v%d' % (E + i, E + i))
    for i in range(8): a('v_rcp_f32 v%d, v%d' % (E + i, E + i))
    for i in range(8): a('v_mul_f32 v%d, v%d, v%d' % (C + i, C + i, E + i))
    for i in range(8): rb(C + i, C + i)
    ACC = 64; T = 72
    for i in range(8):
        for e in range(4): lo(T + 2 * e, 16 + 4 * i + e); hi(T + 2 * e + 1, 16 + 4 * i + e, 40)
        for e in range(8):
            if i == 0: a('v_mul_f32 v%d, v%d, v%d' % (ACC + e, C, T + e))
            else: a('v_fmac_f32 v%d, v%d, v%d' % (ACC + e, C + i, T + e))
    for ctl in ('row_shr:4', 'row_shr:8'):
        for e in range(8): a('v_add_f32_dpp v%d, v%d, v%d %s row_mask:0xf bank_mask:0xf' % (ACC + e, ACC + e, ACC + e, ctl))
    a('v_lshrrev_b32 v5, 4, v0'); a('v_lshlrev_b32 v5, 7, v5'); a('v_lshl_add_u32 v5, v1, 5, v5')
    a('v_and_b32 v6, 12, v0'); a('v_cmp_eq_u32 vcc, 12, v6')
    a('s_and_saveexec_b64 s[46:47], vcc')
    a('ds_write_b128 v5, %s' % vq(ACC)); a('ds_write_b128 v5, %s offset:16' % vq(ACC + 4))
    a('s_mov_b64 exec, s[46:47]')
    a.wait(lg=0); a('s_barrier')
    a('v_cmp_gt_u32 vcc, 32, v0'); a('s_and_saveexec_b64 s[46:47], vcc'); a('s_cbranch_execz k0_end')
    a('v_lshlrev_b32 v5, 2, v0')
    for i in range(16): a('ds_read_b32 v%d, v5 offset:%d' % (16 + i, 128 * i))
    for st in (8, 4, 2, 1):
        for i in range(st): a('v_add_f32 v%d, v%d, v%d' % (16 + i, 16 + i, 16 + i + st))
    rb(16, 16)
    a('v_add_f32 v17, 1.0, v16'); rb(17, 17)
    a('s_lshr_b32 s17, s14, 4')
    a('s_cmp_eq_u32 s17, 1'); a('s_cselect_b32 s18, 1, 0'); a('s_cmp_eq_u32 s17, 4'); a('s_cselect_b32 s18, 1, s18')
    a('s_cmp_eq_u32 s18, 0'); a('s_cbranch_scc1 k0_mod_st')
    a('v_mov_b32 v16, v17')
    a.label('k0_mod_st')
    a('s_lshl_b32 s16, s14, 7')
    a('buffer_store_dword v16, v5, s[28:31], s16 offen')
    a.label('k0_end')
    a('s_endpgm')

L_U1 = 0; L_U0 = 4576; L_KA = 9216; L_KB = 13440; L_CB = 17664; L_Y = 2 * L_CB; K1_LDS = L_Y + 32768
def gen_k1():
    kstart('k1_kernel')
    a('s_cmp_ge_u32 s2, 256'); a('s_cbranch_scc1 k1_end')
    a('s_load_dwordx4 s[4:7], s[0:1], 32')
    a('s_load_dwordx2 s[12:13], s[0:1], 120')
    xcdmap(14, 2, 5)
    a('v_lshrrev_b32 v1, 6, v0'); a.nop(1); a('v_readfirstlane_b32 s15, v1')
    a('v_and_b32 v1, 63, v0')
    a('v_lshlrev_b32 v2, 4, v1')
    a('s_mov_b32 s40, 0xffff0000')
    a('s_and_b32 s16, s15, 1')
    a('s_lshr_b32 s17, s15, 1')
    a('s_mul_i32 s18, s16, %d' % L_CB)
    a('s_lshl_b32 s19, s14, 1'); a('s_add_u32 s19, s19, s16')
    a('s_lshl_b32 s41, s14, 2')
    a.wait(lg=0)
    a('s_load_dword s42, s[6:7], s41')
    srd(20, 4, 2 * MiB); srd(24, 12, WS_MOD, 0); srd(28, 12, 2 * MiB, WS_Z)
    a('v_mov_b32 v4, 0'); a('v_mov_b32 v5, 0'); a('v_mov_b32 v6, 0'); a('v_mov_b32 v7, 0')
    a('s_cmp_ge_u32 s17, 2'); a('s_cbranch_scc1 k1_kload')
    a('s_mul_i32 s43, s19, %d' % UP); a('s_mul_i32 s44, s17, %d' % U0OFF); a('s_add_u32 s43, s43, s44')
    a('s_mul_i32 s44, s17, %d' % L_U0); a('s_add_u32 s44, s44, s18')
    a('s_mov_b32 m0, s44')
    for i in range(4): a('buffer_load_dwordx4 v2, s[24:27], s43 offen offset:%d lds' % (1024 * i))
    a('v_add_u32 v3, s44, v2')
    a('v_cmp_gt_u32 vcc, 28, v1'); a('s_and_saveexec_b64 s[46:47], vcc')
    a('ds_write_b128 v3, v[4:7] offset:4096')
    a('s_mov_b64 exec, s[46:47]')
    a('s_branch k1_loaded')
    a.label('k1_kload')
    a('s_sub_u32 s45, s17, 2')
    a('s_lshl_b32 s43, s19, 12'); a('s_lshl_b32 s44, s45, 2'); a('s_add_u32 s48, s43, s44')
    a('s_mul_i32 s44, s45, %d' % (L_KB - L_KA)); a('s_add_u32 s44, s44, s18'); a('s_add_u32 s44, s44, %d' % L_KA)
    a('s_add_u32 s49, s44, 64'); a('s_mov_b32 m0, s49')
    for i in range(4): a('buffer_load_dwordx4 v2, s[20:23], s48 offen offset:%d lds' % (1024 * i))
    a('v_mov_b32 v8, 0')
    a('buffer_load_dword v9, v8, s[20:23], s43 offen')
    a('v_add_u32 v3, s44, v2')
    a('v_cmp_eq_u32 vcc, 3, v1'); a('s_cmp_eq_u32 s45, 1'); a('s_cselect_b64 s[46:47], vcc, 0')
    a('v_cndmask_b32 v7, v7, v9, s[46:47]')
    a('v_cmp_gt_u32 vcc, 4, v1'); a('s_and_saveexec_b64 s[46:47], vcc')
    a('ds_write_b128 v3, v[4:7]')
    a('s_mov_b64 exec, s[46:47]')
    a.label('k1_loaded')
    a('v_and_b32 v10, 15, v1'); a('v_lshrrev_b32 v11, 4, v1')
    a('v_lshrrev_b32 v12, 1, v10'); a('v_and_b32 v13, 1, v10')
    a('s_lshr_b32 s45, s15, 1'); a('s_and_b32 s45, s45, 1')
    a('v_lshlrev_b32 v14, 6, v12'); a('v_lshl_add_u32 v14, v11, 4, v14')
    a('v_mul_u32_u24 v15, %d, v13' % (L_U0 - L_U1))
    a('v_add_u32 v14, v14, v15')
    a('s_lshl_b32 s46, s45, 8')
    a('s_sub_u32 s47, s18, s46'); a('s_add_u32 s47, s47, %d' % (L_U0 + 283 * 16 - 64 * 59))
    a('v_sub_u32 v14, s47, v14')
    a('v_lshlrev_b32 v15, 3, v12'); a('v_lshlrev_b32 v16, 4, v11'); a('v_sub_u32 v15, v15, v16')
    a('v_mul_u32_u24 v16, %d, v13' % (L_KB + 62 * 8 - L_KA - 63 * 8))
    a('v_sub_u32 v15, v15, v16')
    a('s_sub_u32 s47, s18, s46'); a('s_add_u32 s47, s47, %d' % (L_KB + 62 * 8 - 192))
    a('v_add_u32 v15, s47, v15')
    a('v_lshlrev_b32 v16, 8, v11'); a('v_lshl_add_u32 v16, v10, 3, v16')
    a('s_lshl_b32 s46, s16, 1'); a('s_add_u32 s46, s46, s45'); a('s_lshl_b32 s46, s46, 13'); a('s_add_u32 s46, s46, %d' % L_Y)
    a('v_add_u32 v16, s46, v16')
    a('s_lshl_b32 s46, s15, 10')
    a('v_add_u32 v17, s46, v2')
    a('v_lshrrev_b32 v18, 1, v17'); a('v_sub_u32 v18, %d, v18' % (L_U1 + 4088))
    a('s_lshl_b32 s48, s14, 13')
    a.wait(vm=0, lg=0); a('s_barrier')
    a('s_cmp_ge_u32 s15, 4'); a('s_cbranch_scc1 k1_epi')
    ACC = 32; F0 = 64
    def Areg(buf, al): return F0 + buf * 64 + al * 4
    def Breg(buf, be): return F0 + buf * 64 + 32 + be * 4
    def loadA(buf, rp, al): a('ds_read_b128 %s, v14 offset:%d' % (vq(Areg(buf, al)), 64 * (59 - (rp + 8 * al))))
    def loadB(buf, rp, be):
        o = 64 * (8 * be + 3 - rp)
        a('ds_read_b64 %s, v15 offset:%d' % (vp(Breg(buf, be)), o)); a('ds_read_b64 %s, v15 offset:%d' % (vp(Breg(buf, be) + 2), o + 8))
    pairs = []
    for m in range(8):
        for o in range(m + 1):
            for (al, be) in ((m, o), (o, m)) if o != m else ((m, m),):
                if al + be <= 7: pairs.append((al, be))
    assert len(pairs) == 36 and len(set(pairs)) == 36
    loads = []
    for m in range(8): loads.append(('A', m)); loads.append(('B', m))
    def do_load(buf, rp, it):
        (loadA if it[0] == 'A' else loadB)(buf, rp, it[1])
    for it in loads: do_load(0, 0, it)
    first = set()
    for rp in range(4):
        buf = rp & 1
        nxt = list(loads) if rp < 3 else []
        for n, (al, be) in enumerate(pairs):
            t = al + be
            c = '0' if t not in first else vq(ACC + 4 * t)
            first.add(t)
            a('v_mfma_f32_16x16x32_bf16 %s, %s, %s, %s' % (vq(ACC + 4 * t), vq(Areg(buf, al)), vq(Breg(buf, be)), c))
            if nxt and n % 2 == 1 and n >= 1:
                do_load(buf ^ 1, rp + 1, nxt.pop(0))
        assert not nxt
    for t in range(8):
        a('ds_write_b64 v16, %s offset:%d' % (vp(ACC + 4 * t), 1024 * t))
        a('ds_write_b64 v16, %s offset:%d' % (vp(ACC + 4 * t + 2), 1024 * t + 128))
    a.label('k1_epi')
    a.wait(vm=0, lg=0)
    a('ds_read_b64 v[20:21], v18'); a('ds_read_b64 v[22:23], v18 offset:%d' % L_CB)
    a('s_lshl_b32 s43, s42, 16'); a('s_and_b32 s44, s42, s40')
    a('s_barrier')
    for i in range(4): a('ds_read_b128 %s, v17 offset:%d' % (vq(32 + 4 * i), L_Y + 8192 * i))
    U = 48
    for ch in range(2):
        hi(U + 4 * ch + 0, 21 + 2 * ch, 40); lo(U + 4 * ch + 1, 21 + 2 * ch); hi(U + 4 * ch + 2, 20 + 2 * ch, 40); lo(U + 4 * ch + 3, 20 + 2 * ch)
        for i in range(4): a('v_mul_f32 v%d, s%d, v%d' % (U + 4 * ch + i, 43 + ch, U + 4 * ch + i))
        for i in range(4): rb(U + 4 * ch + i, U + 4 * ch + i)
    for ch in range(2):
        for i in (0, 2): pk('add', 32 + 8 * ch + i, 32 + 8 * ch + i, vp(36 + 8 * ch + i))
        for i in range(4): rb(32 + 8 * ch + i, 32 + 8 * ch + i)
        for i in (0, 2): pk('add', 32 + 8 * ch + i, 32 + 8 * ch + i, vp(U + 4 * ch + i))
    for i in range(4): a('v_cvt_pk_bf16_f32 v%d, v%d, v%d' % (56 + i, 32 + i, 40 + i))
    a('buffer_store_dwordx4 v[56:59], v17, s[28:31], s48 offen')
    a.label('k1_end')
    a('s_endpgm')

ZP = 1040
def ln_stats(X, T, sC, sMB, sRI, vS1, vS2):
    a('v_readfirstlane_b32 s%d, v%d' % (sC, X))
    for i in range(0, 8, 2): pk('add', T + i, X + i, sp(sC), 'op_sel_hi:[1,0] neg_lo:[0,1] neg_hi:[0,1]')
    pk('add', vS1, T, vp(T + 2)); pk('mul', vS1 + 2, T, vp(T))
    for i in (4, 6): pk('add', vS1, vS1, vp(T + i))
    for i in (2, 4, 6): a('v_pk_fma_f32 %s, %s, %s, %s' % (vp(vS1 + 2), vp(T + i), vp(T + i), vp(vS1 + 2)))
    a('v_add_f32 v%d, v%d, v%d' % (vS1, vS1, vS1 + 1)); a('v_add_f32 v%d, v%d, v%d' % (vS1 + 1, vS1 + 2, vS1 + 3))
    wave_reduce('v_add_f32', [vS1, vS1 + 1])
    a('v_mul_f32 v%d, 0x3b000000, v%d' % (vS1, vS1))
    a('v_mul_f32 v%d, 0x3b000000, v%d' % (vS1 + 1, vS1 + 1))
    a('v_fma_f32 v%d, -v%d, v%d, v%d' % (vS1 + 1, vS1, vS1, vS1 + 1))
    a('v_add_f32 v%d, s%d, v%d' % (vS1, sC, vS1))
    a('v_max_f32 v%d, 0, v%d' % (vS1 + 1, vS1 + 1))
    rb(vS1, vS1); rb(vS1 + 1, vS1 + 1)
    a('v_add_f32 v%d, 0x3727c5ac, v%d' % (vS1 + 1, vS1 + 1)); rb(vS1 + 1, vS1 + 1)
    a('v_sqrt_f32 v%d, v%d' % (vS1 + 1, vS1 + 1)); rb(vS1 + 1, vS1 + 1)
    a('v_rcp_f32 v%d, v%d' % (vS1 + 1, vS1 + 1))
    a('v_readlane_b32 s%d, v%d, 63' % (sMB, vS1)); a('v_readlane_b32 s%d, v%d, 63' % (sRI, vS1 + 1))

def ln_apply(D, X, sMB, sRI, C1, SH):
    for i in range(0, 8, 2): pk('add', D + i, X + i, sp(sMB), 'op_sel_hi:[1,0] neg_lo:[0,1] neg_hi:[0,1]')
    for i in range(8): rb(D + i, D + i)
    for i in range(0, 8, 2): pk('mul', D + i, D + i, sp(sRI), 'op_sel_hi:[1,0]')
    for i in range(8): rb(D + i, D + i)
    for i in range(0, 8, 2): pk('mul', D + i, D + i, vp(C1 + i))
    for i in range(8): rb(D + i, D + i)
    for i in range(0, 8, 2): pk('add', D + i, D + i, vp(SH + i))
    for i in range(8): rb(D + i, D + i)

def gen_k2():
    kstart('k2_kernel')
    a('s_cmp_ge_u32 s2, 256'); a('s_cbranch_scc1 k2_end')
    a('s_load_dwordx2 s[4:5], s[0:1], 0'); a('s_load_dwordx2 s[6:7], s[0:1], 56'); a('s_load_dwordx2 s[8:9], s[0:1], 104'); a('s_load_dwordx2 s[12:13], s[0:1], 120')
    xcdmap(14, 2, 5)
    a('v_lshrrev_b32 v1, 6, v0'); a.nop(1); a('v_readfirstlane_b32 s15, v1')
    a('v_and_b32 v1, 63, v0'); a('v_lshlrev_b32 v2, 4, v1')
    a('s_mov_b32 s40, 0xffff0000')
    a('s_lshl_b32 s16, s14, 3'); a('s_add_u32 s16, s16, s15')
    a('s_lshl_b32 s17, s16, 10')
    a('v_lshrrev_b32 v3, 1, v0'); a('v_and_b32 v4, 1, v0')
    a('v_lshlrev_b32 v5, 13, v3'); a('v_lshl_add_u32 v5, v4, 4, v5')
    a('s_lshl_b32 s18, s14, 5')
    a('v_mul_u32_u24 v6, %d, v4' % (4 * ZP)); a('v_lshl_add_u32 v6, v3, 2, v6')
    a('s_mul_i32 s19, s15, %d' % ZP); a('v_add_u32 v7, s19, v2')
    a('v_lshlrev_b32 v8, 5, v1')
    a.wait(lg=0)
    srd(20, 4, 2 * MiB); srd(24, 6, 1024); srd(28, 8, 2 * MiB); srd(32, 12, 2 * MiB, WS_Z); srd(36, 12, 12288, WS_MOD)
    srd(44, 12, 4 * MiB, WS_H2); srd(48, 12, 8192, WS_KEY)
    a('buffer_load_dwordx4 v[12:15], v5, s[32:35], s18 offen')
    a('buffer_load_dwordx4 v[16:19], v2, s[20:23], s17 offen')
    M = 64
    for i in range(6):
        a('s_mov_b32 s%d, %d' % (52 + i, 2048 * i))
    for i in (1, 0, 2, 4, 3, 5):
        a('buffer_load_dwordx4 %s, v8, s[36:39], s%d offen' % (vq(M + 8 * i), 52 + i))
        a('buffer_load_dwordx4 %s, v8, s[36:39], s%d offen offset:16' % (vq(M + 8 * i + 4), 52 + i))
    a('buffer_load_dwordx4 v[20:23], v2, s[24:27], 0 offen')
    for i in range(4): a('ds_write_b32 v6, v%d offset:%d' % (12 + i, ZP * i))
    X = 24; T = 32; H = 40; Z = 48; S = 56; WRr = 112
    for i in range(4): lo(X + 2 * i, 16 + i); hi(X + 2 * i + 1, 16 + i, 40)
    ln_stats(X, T, 60, 62, 64, S, S + 1)
    ln_apply(H, X, 62, 64, M + 8, M + 0)
    a.wait(lg=0); a('s_barrier')
    a('ds_read_b128 v[12:15], v7')
    for i in range(4): lo(WRr + 2 * i, 20 + i); hi(WRr + 2 * i + 1, 20 + i, 40)
    for i in range(4): lo(Z + 2 * i, 12 + i); hi(Z + 2 * i + 1, 12 + i, 40)
    for i in range(0, 8, 2): pk('mul', H + i, H + i, vp(Z + i))
    for i in range(8): rb(H + i, H + i)
    for i in range(0, 8, 2): pk('mul', H + i, H + i, vp(M + 16 + i))
    for i in range(8): rb(H + i, H + i)
    for i in range(0, 8, 2): pk('add', X + i, X + i, vp(H + i))
    for i in range(8): rb(X + i, X + i)
    ln_stats(X, T, 60, 62, 64, S, S + 1)
    ln_apply(H, X, 62, 64, M + 32, M + 24)
    pk('mul', S, H, vp(WRr))
    for i in (2, 4, 6): a('v_pk_fma_f32 %s, %s, %s, %s' % (vp(S), vp(H + i), vp(WRr + i), vp(S)))
    a('v_add_f32 v%d, v%d, v%d' % (S, S, S + 1))
    wave_reduce('v_add_f32', [S])
    rb(S, S)
    a('v_ashrrev_i32 v%d, 31, v%d' % (S + 1, S)); a('v_or_b32 v%d, 0x80000000, v%d' % (S + 1, S + 1)); a('v_xor_b32 v%d, v%d, v%d' % (S, S, S + 1))
    a('v_and_b32 v%d, s40, v%d' % (S, S)); a('s_sub_u32 s41, 2047, s16'); a('v_or_b32 v%d, s41, v%d' % (S, S))
    a('s_lshl_b32 s42, s16, 2'); a('v_mov_b32 v9, 0')
    a('s_mov_b64 s[66:67], exec'); a('s_mov_b32 exec_lo, 0'); a('s_mov_b32 exec_hi, 0x80000000')
    a('buffer_store_dword v%d, v9, s[48:51], s42 offen' % S)
    a('s_mov_b64 exec, s[66:67]')
    for i in range(4): a('v_perm_b32 v%d, v%d, v%d, s43' % (12 + i, H + 2 * i + 1, H + 2 * i)) if False else a('v_cvt_pk_bf16_f32 v%d, v%d, v%d' % (12 + i, H + 2 * i, H + 2 * i + 1))
    a('buffer_store_dwordx4 v[12:15], v2, s[44:47], s17 offen')
    for i in range(4): a('v_cvt_pk_bf16_f32 v%d, v%d, v%d' % (16 + i, X + 2 * i, X + 2 * i + 1))
    a('s_add_u32 s43, s17, %d' % (2 * MiB))
    a('buffer_store_dwordx4 v[16:19], v2, s[44:47], s43 offen')
    for i in range(0, 8, 2): pk('mul', T + i, H + i, vp(M + 40 + i))
    for i in range(8): rb(T + i, T + i)
    for i in range(0, 8, 2): pk('add', T + i, T + i, vp(X + i))
    for i in range(4): a('v_cvt_pk_bf16_f32 v%d, v%d, v%d' % (20 + i, T + 2 * i, T + 2 * i + 1))
    a('buffer_store_dwordx4 v[20:23], v2, s[28:31], s17 offen')
    a.label('k2_end')
    a('s_endpgm')

K3_G = 0; K3_U = 8256; K3_P = 16640; K3_WM = 24832; K3_CNT = 24864; K3_SEL = 24896; K3_LIST = 25088; K3_LDS = K3_LIST + 8192
def topk(KEY, lbl, v_lane, s_wave, WM, CNT, SEL, LIST):
    T0 = 30
    a('v_max3_u32 v%d, v%d, v%d, v%d' % (T0, KEY, KEY + 1, KEY + 2)); a('v_max_u32 v%d, v%d, v%d' % (T0, T0, KEY + 3))
    wave_reduce('v_max_u32', [T0])
    a('s_lshl_b32 s60, s%d, 2' % s_wave); a('v_mov_b32 v%d, s60' % (T0 + 1)); a('v_mov_b32 v%d, 0' % (T0 + 2))
    a('s_mov_b64 s[66:67], exec'); a('s_mov_b32 exec_lo, 0'); a('s_mov_b32 exec_hi, 0x80000000')
    a('ds_write_b32 v%d, v%d offset:%d' % (T0 + 1, T0, WM))
    a('ds_write_b32 v%d, v%d offset:%d' % (T0 + 2, T0 + 2, CNT))
    a('s_mov_b64 exec, s[66:67]')
    a.wait(lg=0); a('s_barrier')
    a('ds_read_b128 %s, v%d offset:%d' % (vq(T0 + 4), T0 + 2, WM)); a('ds_read_b128 %s, v%d offset:%d' % (vq(T0 + 8), T0 + 2, WM + 16))
    a('v_min3_u32 v%d, v%d, v%d, v%d' % (T0, T0 + 4, T0 + 5, T0 + 6)); a('v_min3_u32 v%d, v%d, v%d, v%d' % (T0 + 1, T0 + 7, T0 + 8, T0 + 9))
    a('v_min3_u32 v%d, v%d, v%d, v%d' % (T0, T0, T0 + 10, T0 + 11)); a('v_min_u32 v%d, v%d, v%d' % (T0, T0, T0 + 1))
    for j in range(4): a('v_cmp_ge_u32 s[%d:%d], v%d, v%d' % (70 + 2 * j, 71 + 2 * j, KEY + j, T0))
    for j in range(4): a('s_bcnt1_i32_b64 s%d, s[%d:%d]' % (60 + j, 70 + 2 * j, 71 + 2 * j))
    a('s_add_u32 s61, s61, s60'); a('s_add_u32 s62, s62, s61'); a('s_add_u32 s63, s63, s62')
    a('v_mov_b32 v%d, s63' % (T0 + 1))
    a('s_mov_b64 exec, 1')
    a('ds_add_rtn_u32 v%d, v%d, v%d offset:%d' % (T0 + 3, T0 + 2, T0 + 1, CNT))
    a('s_mov_b64 exec, s[66:67]')
    a('v_readfirstlane_b32 s64, v%d' % (T0 + 3))
    for j in range(4):
        a('v_mbcnt_lo_u32_b32 v%d, s%d, 0' % (T0 + 4 + j, 70 + 2 * j)); a('v_mbcnt_hi_u32_b32 v%d, s%d, v%d' % (T0 + 4 + j, 71 + 2 * j, T0 + 4 + j))
        if j > 0: a('s_add_u32 s65, s64, s%d' % (60 + j - 1))
        a('v_add_lshl_u32 v%d, v%d, s%d, 2' % (T0 + 4 + j, T0 + 4 + j, 64 if j == 0 else 65))
        a('s_mov_b64 exec, s[%d:%d]' % (70 + 2 * j, 71 + 2 * j))
        a('ds_write_b32 v%d, v%d offset:%d' % (T0 + 4 + j, KEY + j, LIST))
        a('s_mov_b64 exec, s[66:67]')
    a.wait(lg=0); a('s_barrier')
    a('ds_read_b32 v%d, v%d offset:%d' % (T0, T0 + 2, CNT))
    a('v_readfirstlane_b32 s60, v%d' % T0)
    a('s_mov_b32 s61, 0')
    a.label(lbl + '_chunk')
    a('v_add_u32 v%d, s61, v0' % (T0 + 1))
    a('v_lshlrev_b32 v%d, 2, v%d' % (T0 + 3, T0 + 1))
    a('ds_read_b32 v%d, v%d offset:%d' % (T0, T0 + 3, LIST))
    a('v_mov_b32 v%d, 0' % (T0 + 3))
    a('s_mov_b32 s62, 0')
    a('v_mov_b32 v%d, 0' % (T0 + 2))
    a.label(lbl + '_scan')
    a('ds_read_b128 %s, v%d offset:%d' % (vq(T0 + 4), T0 + 2, LIST))
    a('s_sub_u32 s63, s60, s62')
    for e in range(4):
        a('v_cmp_gt_u32 vcc, v%d, v%d' % (T0 + 4 + e, T0))
        a('s_cmp_gt_u32 s63, %d' % e); a('s_cselect_b64 vcc, vcc, 0')
        a('v_addc_co_u32 v%d, vcc, 0, v%d, vcc' % (T0 + 3, T0 + 3))
    a('v_add_u32 v%d, 16, v%d' % (T0 + 2, T0 + 2))
    a('s_add_u32 s62, s62, 4'); a('s_cmp_lt_u32 s62, s60'); a('s_cbranch_scc1 %s_scan' % lbl)
    a('v_cmp_gt_u32 vcc, s60, v%d' % (T0 + 1)); a('v_cmp_gt_u32 s[68:69], 8, v%d' % (T0 + 3)); a('s_and_b64 vcc, vcc, s[68:69]')
    a('v_lshlrev_b32 v%d, 2, v%d' % (T0 + 3, T0 + 3))
    a('s_mov_b64 exec, vcc')
    a('ds_write_b32 v%d, v%d offset:%d' % (T0 + 3, T0, SEL))
    a('s_mov_b64 exec, s[66:67]')
    a('s_add_u32 s61, s61, 512'); a('s_cmp_lt_u32 s61, s60'); a('s_cbranch_scc1 %s_chunk' % lbl)
    a.wait(lg=0); a('s_barrier')

def gen_k3():
    kstart('k3_kernel')
    a('s_cmp_ge_u32 s2, 224'); a('s_cbranch_scc1 k3_end')
    a('s_load_dwordx4 s[4:7], s[0:1], 64'); a('s_load_dwordx2 s[12:13], s[0:1], 120')
    a('s_and_b32 s14, s2, 7'); a('s_mul_i32 s14, s14, 28'); a('s_lshr_b32 s3, s2, 3'); a('s_add_u32 s14, s14, s3')
    a('v_lshrrev_b32 v1, 6, v0'); a.nop(1); a('v_readfirstlane_b32 s15, v1')
    a('v_and_b32 v1, 63, v0')
    a('s_mov_b32 s40, 0xffff0000')
    a('v_lshlrev_b32 v2, 4, v0')
    a('s_mov_b32 s16, 3584'); a('v_mul_lo_u32 v3, v0, s16')
    a('s_lshl_b32 s17, s14, 4')
    a.wait(lg=0)
    srd(20, 4, 512 * 3584); srd(24, 6, 512 * 3584); srd(28, 12, 8192, WS_KEY); srd(32, 12, 2 * MiB, WS_H2); srd(36, 12, 131072, WS_ACT)
    a('buffer_load_dwordx4 v[8:11], v2, s[28:31], 0 offen')
    a('s_lshl_b32 s18, s15, 10'); a('s_mov_b32 m0, s18')
    a('buffer_load_dwordx4 v3, s[20:23], s17 offen lds')
    a('s_add_u32 s18, s18, %d' % K3_U); a('s_mov_b32 m0, s18')
    a('buffer_load_dwordx4 v3, s[24:27], s17 offen lds')
    topk(8, 'k3tk', 1, 15, K3_WM, K3_CNT, K3_SEL, K3_LIST)
    a('v_and_b32 v4, 7, v1'); a('v_lshlrev_b32 v4, 2, v4')
    a('ds_read_b32 v5, v4 offset:%d' % K3_SEL)
    a('v_lshrrev_b32 v6, 4, v1')
    a('v_and_b32 v7, 0x7ff, v5'); a('v_sub_u32 v7, 2047, v7'); a('v_lshlrev_b32 v7, 10, v7'); a('v_lshl_add_u32 v7, v6, 4, v7')
    a('s_lshl_b32 s19, s15, 7')
    a('buffer_load_dwordx4 v[12:15], v7, s[32:35], s19 offen'); a('buffer_load_dwordx4 v[16:19], v7, s[32:35], s19 offen offset:64')
    a('s_cmp_lg_u32 s2, 0'); a('s_cbranch_scc1 k3_nosel')
    a('v_cmp_gt_u32 vcc, 8, v0'); a('s_and_saveexec_b64 s[66:67], vcc'); a('s_cbranch_execz k3_nosel2')
    a('s_mov_b32 s41, 65536')
    a('buffer_store_dword v5, v4, s[36:39], s41 offen')
    a.label('k3_nosel2')
    a('s_mov_b64 exec, s[66:67]')
    a.label('k3_nosel')
    a('v_and_b32 v20, 3, v1'); a('v_bfe_u32 v21, v1, 2, 2')
    a('v_lshlrev_b32 v22, 7, v6'); a('v_lshl_add_u32 v22, v21, 4, v22')
    a('v_and_b32 v23, 1, v20'); a('v_lshl_add_u32 v22, v23, 3, v22')
    a('v_lshrrev_b32 v23, 1, v20'); a('v_mul_u32_u24 v23, %d, v23' % K3_U); a('v_add_u32 v22, v22, v23')
    a('s_lshl_b32 s18, s15, 10'); a('v_add_u32 v22, s18, v22')
    a.wait(vm=0)
    for i in range(2):
        for hh in range(2): a('ds_read_b64_tr_b16 %s, v22 offset:%d' % (vp(24 + 4 * i + 2 * hh), 512 * i + 64 * hh))
    a('v_mfma_f32_16x16x32_bf16 v[32:35], v[24:27], v[12:15], 0')
    a('v_mfma_f32_16x16x32_bf16 v[32:35], v[28:31], v[16:19], v[32:35]')
    a('v_lshlrev_b32 v36, 4, v0')
    a('ds_write_b128 v36, v[32:35] offset:%d' % K3_P)
    a.wait(lg=0); a('s_barrier')
    a('s_cmp_lg_u32 s15, 0'); a('s_cbranch_scc1 k3_end')
    for w in range(8): a('ds_read_b128 %s, v36 offset:%d' % (vq(40 + 4 * w), K3_P + 1024 * w))
    for st in (16, 8, 4):
        for i in range(0, st, 2): pk('add', 40 + i, 40 + i, vp(40 + i + st))
    for i in range(4): rb(40 + i, 40 + i)
    for i in range(4): a('v_mov_b32 v%d, v%d' % (44 + i, 40 + i))
    for i in range(4): a('v_permlane32_swap_b32 v%d, v%d' % (44 + i, 48 + i))
    a('s_mov_b32 s17, 0x%x' % (LOG2E | 0x80000000))
    for i in range(4): a('v_mul_f32 v%d, s17, v%d' % (52 + i, 40 + i))
    for i in range(4): a('v_exp_f32 v%d, v%d' % (52 + i, 52 + i))
    for i in range(4): a('v_add_f32 v%d, 1.0, v%d' % (52 + i, 52 + i))
    for i in range(4): a('v_rcp_f32 v%d, v%d' % (52 + i, 52 + i))
    for i in range(4): a('v_mul_f32 v%d, v%d, v%d' % (40 + i, 40 + i, 52 + i))
    for i in range(4): rb(40 + i, 40 + i)
    for i in range(4): a('v_mul_f32 v%d, v%d, v%d' % (40 + i, 40 + i, 48 + i))
    a('v_cvt_pk_bf16_f32 v56, v40, v41'); a('v_cvt_pk_bf16_f32 v57, v42, v43')
    a('s_lshl_b32 s18, s14, 1'); a('v_add_u32 v58, s18, v6')
    a('v_and_b32 v59, 3, v58'); a('v_lshlrev_b32 v59, 1, v59'); a('v_bfe_u32 v60, v58, 2, 1'); a('v_add_u32 v59, v59, v60')
    a('v_and_b32 v58, 0xfff8, v58'); a('v_add_lshl_u32 v58, v58, v59, 3')
    a('v_and_b32 v59, 15, v1'); a('v_mul_u32_u24 v60, 3584, v59'); a('v_add_u32 v58, v58, v60')
    a('v_cmp_gt_u32 vcc, 8, v59'); a('v_cmp_gt_u32 s[68:69], 32, v1'); a('s_and_b64 exec, vcc, s[68:69]')
    a('buffer_store_dwordx2 v[56:57], v58, s[36:39], 0 offen')
    a.label('k3_end')
    a('s_endpgm')

K4_P = 57344; K4_LDS = K4_P + 8192
def gen_k4():
    kstart('k4_kernel')
    a('s_cmp_ge_u32 s2, 32'); a('s_cbranch_scc1 k4_end')
    a('s_load_dwordx2 s[4:5], s[0:1], 80'); a('s_load_dwordx2 s[8:9], s[0:1], 104'); a('s_load_dwordx2 s[12:13], s[0:1], 120')
    a('s_and_b32 s14, s2, 7'); a('s_lshl_b32 s14, s14, 2'); a('s_lshr_b32 s3, s2, 3'); a('s_add_u32 s14, s14, s3')
    a('v_lshrrev_b32 v1, 6, v0'); a.nop(1); a('v_readfirstlane_b32 s15, v1')
    a('v_and_b32 v1, 63, v0')
    a('s_mov_b32 s40, 0xffff0000')
    a('v_lshrrev_b32 v2, 1, v1'); a('v_lshlrev_b32 v2, 10, v2'); a('v_and_b32 v3, 1, v1'); a('v_lshl_add_u32 v2, v3, 4, v2')
    a('s_mul_i32 s16, s15, %d' % (224 * 1024)); a('s_lshl_b32 s17, s14, 5'); a('s_add_u32 s16, s16, s17')
    a('s_mul_i32 s18, s15, 7168')
    a('v_lshrrev_b32 v6, 4, v1')
    a('v_and_b32 v4, 7, v1')
    a('v_mul_u32_u24 v5, 3584, v4'); a('v_lshl_add_u32 v5, v6, 4, v5')
    a('s_mul_i32 s19, s15, 448')
    a('v_lshlrev_b32 v4, 2, v4')
    a.wait(lg=0)
    srd(20, 4, 1792 * 1024); srd(28, 8, 2 * MiB); srd(32, 12, 4 * MiB, WS_H2); srd(36, 12, 131072, WS_ACT); srd(44, 12, 12288, WS_MOD)
    a('s_mov_b32 s41, 65536')
    a('buffer_load_dword v7, v4, s[36:39], s41 offen')
    for i in range(7): a('buffer_load_dwordx4 %s, v5, s[36:39], s19 offen offset:%d' % (vq(32 + 4 * i), 64 * i))
    for i in range(7):
        a('s_add_u32 s42, s18, %d' % (1024 * i)); a('s_mov_b32 m0, s42'); a('s_add_u32 s43, s16, %d' % (32768 * i))
        a('buffer_load_dwordx4 v2, s[20:23], s43 offen lds')
    a('v_and_b32 v8, 0x7ff, v7'); a('v_sub_u32 v8, 2047, v8'); a('v_lshlrev_b32 v8, 10, v8'); a('v_lshl_add_u32 v8, v6, 3, v8')
    a('buffer_load_dwordx2 v[10:11], v8, s[32:35], s17 offen')
    a('s_add_u32 s42, s17, %d' % (2 * MiB))
    a('buffer_load_dwordx2 v[12:13], v8, s[32:35], s42 offen')
    a('v_lshlrev_b32 v9, 4, v6'); a('s_lshl_b32 s42, s14, 6'); a('s_add_u32 s42, s42, %d' % (5 * 2048))
    a('buffer_load_dwordx4 v[16:19], v9, s[44:47], s42 offen')
    a('v_and_b32 v20, 3, v1'); a('v_bfe_u32 v21, v1, 2, 2')
    a('v_lshlrev_b32 v22, 7, v6'); a('v_lshl_add_u32 v22, v21, 5, v22'); a('v_lshl_add_u32 v22, v20, 3, v22'); a('v_add_u32 v22, s18, v22')
    a.wait(vm=0)
    for i in range(7):
        for hh in range(2): a('ds_read_b64_tr_b16 %s, v22 offset:%d' % (vp(64 + 4 * i + 2 * hh), 1024 * i + 512 * hh))
    for i in range(7):
        a('v_mfma_f32_16x16x32_bf16 v[24:27], %s, %s, %s' % (vq(64 + 4 * i), vq(32 + 4 * i), '0' if i == 0 else 'v[24:27]'))
    a('v_lshlrev_b32 v28, 4, v0')
    a('ds_write_b128 v28, v[24:27] offset:%d' % K4_P)
    a.wait(lg=0); a('s_barrier')
    a('s_cmp_lg_u32 s15, 0'); a('s_cbranch_scc1 k4_end')
    for w in range(8): a('ds_read_b128 %s, v28 offset:%d' % (vq(40 + 4 * w), K4_P + 1024 * w))
    a('v_and_b32 v30, s40, v7'); a('v_ashrrev_i32 v31, 31, v30'); a('v_not_b32 v31, v31'); a('v_or_b32 v31, 0x80000000, v31'); a('v_xor_b32 v30, v30, v31'); a('v_and_b32 v30, s40, v30')
    a('v_mul_f32 v30, 0x%x, v30' % (LOG2E | 0x80000000)); a('v_exp_f32 v30, v30'); a('v_add_f32 v30, 1.0, v30'); a('v_rcp_f32 v30, v30'); rb(30, 30)
    lo(72, 10); hi(73, 10, 40); lo(74, 11); hi(75, 11, 40)
    lo(76, 12); hi(77, 12, 40); lo(78, 13); hi(79, 13, 40)
    for st in (16, 8, 4):
        for i in range(0, st, 2): pk('add', 40 + i, 40 + i, vp(40 + i + st))
    for i in range(4): rb(40 + i, 40 + i)
    for i in range(4): a('v_mul_f32 v%d, v%d, v30' % (40 + i, 40 + i))
    for i in range(4): rb(40 + i, 40 + i)
    for i in (0, 2): pk('add', 40 + i, 40 + i, vp(72 + i))
    for i in range(4): rb(40 + i, 40 + i)
    for i in (0, 2): pk('mul', 40 + i, 40 + i, vp(16 + i))
    for i in range(4): rb(40 + i, 40 + i)
    for i in (0, 2): pk('add', 40 + i, 40 + i, vp(76 + i))
    a('v_cvt_pk_bf16_f32 v44, v40, v41'); a('v_cvt_pk_bf16_f32 v45, v42, v43')
    a('v_and_b32 v46, 15, v1'); a('v_cmp_gt_u32 vcc, 8, v46'); a('s_and_b64 exec, exec, vcc')
    a('buffer_store_dwordx2 v[44:45], v8, s[28:31], s17 offen')
    a.label('k4_end')
    a('s_endpgm')

KERNELS = [('k0_kernel', (352, 256, 2048), 128), ('k1_kernel', (256, 512, K1_LDS), 192), ('k2_kernel', (256, 512, 8 * ZP), 128),
           ('k3_kernel', (224, 512, K3_LDS), 64), ('k4_kernel', (32, 512, K4_LDS), 96)]

def main(outpath):
    hdr = open('cdna_kernels/%s.s.ref' % NAME).read().split('\n')
    head = [l for l in hdr if l.startswith(';') and '@launch' not in l and 'Override launch' not in l and 'grid=ceil' not in l]
    out = list(head)
    for n, (g, b, l), _ in KERNELS:
        out.append('; @launch kernel=%s grid=(%d,1,1) block=(%d,1,1) lds=%d' % (n, g, b, l))
    out.append('.amdgcn_target "amdgcn-amd-amdhsa--gfx950"'); out.append('.text')
    import re
    vmax = {}
    for (n, _, _), g in zip(KERNELS, (gen_k0, gen_k1, gen_k2, gen_k3, gen_k4)):
        st = len(a.lines); g()
        body = '\n'.join(a.lines[st:])
        m = max([int(x) for x in re.findall(r'\bv(\d+)\b', body)] + [int(x) for x in re.findall(r'\bv\[\d+:(\d+)\]', body)])
        vmax[n] = (m + 1 + 7) // 8 * 8
        print(n, 'vgprs', m + 1)
    out.append(a.text())
    out.append('.section .rodata,"a"')
    for n, _, vg in KERNELS:
        vg = vmax[n]
        out.append('.p2align 6')
        out.append('.amdhsa_kernel %s' % n)
        out.append('  .amdhsa_next_free_vgpr %d' % vg); out.append('  .amdhsa_next_free_sgpr 96'); out.append('  .amdhsa_accum_offset %d' % vg)
        out.append('  .amdhsa_group_segment_fixed_size 0'); out.append('  .amdhsa_kernarg_size 128')
        out.append('  .amdhsa_user_sgpr_count 2'); out.append('  .amdhsa_user_sgpr_kernarg_segment_ptr 1'); out.append('  .amdhsa_system_sgpr_workgroup_id_x 1')
        out.append('  .amdhsa_float_denorm_mode_32 3')
        out.append('.end_amdhsa_kernel')
    open(outpath, 'w').write('\n'.join(out) + '\n')
    print('wrote', outpath, 'nops inserted', a.nops_inserted)

if __name__ == '__main__':
    main(sys.argv[1] if len(sys.argv) > 1 else 'cdna_kernels/%s.s' % NAME)
```

```python
import re

def split_ops(s):
    out, depth, cur = [], 0, ''
    for ch in s:
        if ch in '[(':
            depth += 1
        elif ch in '])':
            depth -= 1
        if ch == ',' and depth == 0:
            out.append(cur.strip()); cur = ''
        else:
            cur += ch
    if cur.strip():
        out.append(cur.strip())
    return out

_reg_re = re.compile(r'^(-|\|)?(abs\()?([vsa])(\d+|\[(\d+):(\d+)\])')
def regs_of(tok):
    t = tok.split()[0] if tok.split() else ''
    t = t.lstrip('-').strip('|')
    if t.startswith('abs('):
        t = t[4:].rstrip(')')
    if t in ('vcc',): return [('s', 'vcc_lo'), ('s', 'vcc_hi')]
    if t in ('vcc_lo', 'vcc_hi', 'exec_lo', 'exec_hi', 'm0'): return [('s', t)]
    if t == 'exec': return [('s', 'exec_lo'), ('s', 'exec_hi')]
    m = re.match(r'^([vsa])(\d+)$', t)
    if m: return [(m.group(1), int(m.group(2)))]
    m = re.match(r'^([vsa])\[(\d+):(\d+)\]$', t)
    if m: return [(m.group(1), i) for i in range(int(m.group(2)), int(m.group(3)) + 1)]
    return []

TRANS = ('v_exp_f32', 'v_log_f32', 'v_rcp_f32', 'v_rsq_f32', 'v_sqrt_f32', 'v_sin_f32', 'v_cos_f32', 'v_rcp_iflag_f32')
NODST_S = ('s_cmp', 's_waitcnt', 's_barrier', 's_branch', 's_cbranch', 's_nop', 's_setprio', 's_sleep', 's_endpgm', 's_bitcmp', 's_setreg', 's_sendmsg')
EXEC = [('s', 'exec_lo'), ('s', 'exec_hi')]
VCC = [('s', 'vcc_lo'), ('s', 'vcc_hi')]

class Ins:
    __slots__ = ('mn', 'text', 'wr', 'rd', 'kind', 'slot', 'srcC', 'srcAB', 'passes', 'dpp_src', 'lanesel', 'data', 'wide', 'sconst', 'opsel')

def parse(text):
    text = text.strip()
    sp = text.split(None, 1)
    mn = sp[0]; rest = sp[1] if len(sp) > 1 else ''
    ops = split_ops(rest)
    I = Ins(); I.mn = mn; I.text = text; I.wr = []; I.rd = []; I.srcC = []; I.srcAB = []; I.passes = 0
    I.dpp_src = []; I.lanesel = []; I.data = []; I.wide = False; I.sconst = []; I.opsel = False
    R = [regs_of(o) for o in ops]
    last = ops[-1] if ops else ''
    if mn.startswith('v_mfma'):
        I.kind = 'mfma'; I.wr = R[0]; I.srcAB = R[1] + R[2]; I.srcC = R[3]; I.rd = I.srcAB + I.srcC
        I.passes = 4 if '16x16x32' in mn else 8 if '32x32x16' in mn else 16
    elif mn.startswith('v_'):
        I.kind = 'trans' if re.sub(r'_(e32|e64|dpp|sdwa)$', '', mn) in TRANS else 'valu'
        base = mn
        if mn.startswith('v_cmp'):
            I.wr = list(R[0]); I.rd = sum(R[1:], [])
            if mn.startswith('v_cmpx'): I.wr += EXEC
        elif mn.startswith('v_readlane') or mn.startswith('v_readfirstlane'):
            I.kind = 'readlane'; I.wr = R[0]; I.rd = sum(R[1:], [])
            if len(R) > 2: I.lanesel = R[2]
        elif mn.startswith('v_writelane'):
            I.kind = 'writelane'; I.wr = R[0]; I.rd = R[0] + sum(R[1:], []); I.lanesel = R[2]
        elif re.match(r'v_(add|sub|subrev|addc|subb|subbrev)_co_', mn) or mn.startswith('v_div_scale') or mn.startswith('v_mad_u64'):
            I.wr = R[0] + R[1]; I.rd = sum(R[2:], [])
        elif mn.startswith('v_permlane') and 'swap' in mn:
            I.kind = 'permlane'; I.wr = R[0] + R[1]; I.rd = R[0] + R[1]
        elif mn == 'v_nop':
            pass
        else:
            I.wr = R[0]; I.rd = sum(R[1:], [])
            if re.match(r'v_(fmac|mac|dot2c|pk_fmac)', mn): I.rd = I.rd + R[0]
        if '_dpp' in mn or re.search(r'\b(row_shr|row_shl|row_ror|quad_perm|row_bcast|row_mirror|row_half_mirror|wave_sh|wave_ro|row_newbcast)', rest):
            I.dpp_src = R[1]; I.rd = I.rd + R[0]
        if '_sdwa' in mn and 'dst_sel:DWORD' not in rest: I.opsel = True; I.rd = I.rd + R[0]
        if I.kind in ('valu', 'trans', 'permlane', 'writelane'):
            I.sconst = [r for r in I.rd if r[0] == 's' and r not in I.lanesel]
    elif mn.startswith('ds_'):
        I.kind = 'ds'
        if re.match(r'ds_(read|bpermute|permute|swizzle)', mn) or '_rtn' in mn:
            I.wr = R[0]; I.rd = sum(R[1:], [])
            if 'd16' in mn: I.rd = I.rd + R[0]
        else:
            I.rd = sum(R, [])
    elif mn.startswith('buffer_') or mn.startswith('global_') or mn.startswith('flat_'):
        I.kind = 'vmem'
        islds = bool(re.search(r'\blds\b', last)) or '_lds_' in mn
        if islds:
            I.rd = sum(R, []) + [('s', 'm0')]; I.kind = 'vmem_lds'
        elif '_load' in mn:
            I.wr = R[0]; I.rd = sum(R[1:], [])
            if 'd16' in mn: I.rd = I.rd + R[0]
        elif '_atomic' in mn:
            if mn.startswith('buffer_'):
                I.rd = sum(R, [])
                if re.search(r'\bsc0\b', last): I.wr = R[0]
            else:
                if re.search(r'\bsc0\b', last): I.wr = R[0]; I.rd = sum(R[1:], [])
                else: I.rd = sum(R, [])
        elif '_store' in mn:
            I.rd = sum(R, [])
            I.data = R[0] if mn.startswith('buffer_') else R[1]
            I.wide = ('x3' in mn or 'x4' in mn)
        else:
            I.rd = sum(R, [])
    elif mn.startswith('s_load') or mn.startswith('s_buffer_load') or mn.startswith('s_memtime') or mn.startswith('s_memrealtime'):
        I.kind = 'smem'; I.wr = R[0]; I.rd = sum(R[1:], [])
    elif mn.startswith('s_'):
        I.kind = 'salu'
        if any(mn.startswith(p) for p in NODST_S):
            I.rd = sum(R, [])
            if mn.startswith('s_cbranch_vcc'): I.rd = VCC
            if mn.startswith('s_cbranch_exec'): I.rd = EXEC
        else:
            I.wr = R[0]; I.rd = sum(R[1:], [])
            if 'saveexec' in mn: I.wr = I.wr + EXEC; I.rd = I.rd + EXEC
            if re.match(r's_(addk|mulk|bitset|cmov)', mn): I.rd = I.rd + R[0]
    else:
        raise ValueError('unknown instr ' + text)
    return I

def inter(a, b):
    if not a or not b: return False
    sb = set(b)
    return any(x in sb for x in a)

class Asm:
    def __init__(self):
        self.lines = []
        self.hist = []
        self.slot = 0
        self.vm = []
        self.lg = []
        self.nops_inserted = 0
        self.auto_wait = True
    def raw(self, s):
        self.lines.append(s)
    def comment(self, s):
        self.lines.append('    ; ' + s)
    def reset(self):
        self.hist = []; self.vm = []; self.lg = []
    def save(self):
        return (list(self.hist), self.slot, [list(x) for x in self.vm], list(self.lg))
    def load(self, st):
        self.hist = list(st[0]); self.slot = st[1]; self.vm = [list(x) for x in st[2]]; self.lg = list(st[3])
    def label(self, name):
        self.lines.append(name + ':')
    def _need(self, I):
        need = 0
        isvalu = lambda k: k in ('valu', 'trans', 'readlane', 'writelane', 'permlane')
        for P in self.hist:
            d = self.slot - P.slot - 1
            w = 0
            pv = isvalu(P.kind)
            if pv:
                pw_v = [r for r in P.wr if r[0] in 'va']
                pw_s = [r for r in P.wr if r[0] == 's']
                if I.dpp_src and inter(pw_v, I.dpp_src): w = max(w, 2)
                if I.dpp_src and inter(pw_s, EXEC): w = max(w, 5)
                if I.kind == 'readlane' and inter(pw_v, I.rd): w = max(w, 1)
                if I.kind == 'permlane' and inter(pw_v, I.rd): w = max(w, 2)
                if I.kind == 'mfma' and inter(pw_v, I.rd): w = max(w, 2)
                if I.kind == 'mfma' and inter(pw_s, EXEC): w = max(w, 4)
                if I.kind in ('readlane', 'writelane', 'permlane') and inter(pw_s, EXEC): w = max(w, 4)
                if pw_s:
                    if I.sconst and inter(pw_s, I.sconst): w = max(w, 2)
                    if I.lanesel and inter(pw_s, I.lanesel): w = max(w, 4)
                    if I.kind in ('vmem', 'vmem_lds') and inter(pw_s, I.rd): w = max(w, 5)
                    if I.kind in ('salu', 'smem') and inter(pw_s, I.rd): w = max(w, 1 if not I.mn.startswith('s_cbranch') else 5)
                if P.kind == 'trans' and isvalu(I.kind) and I.kind != 'trans' and inter(pw_v, I.rd): w = max(w, 1)
                if P.kind == 'trans' and I.kind == 'trans' and inter(pw_v, I.rd): w = max(w, 1)
                if P.opsel and isvalu(I.kind) and (inter(pw_v, I.rd) or inter(pw_v, I.wr)): w = max(w, 1)
            if P.kind == 'mfma':
                tab_c = {4: 6, 8: 10, 16: 18}; tab_o = {4: 8, 8: 12, 16: 20}; tab_war = {4: 3, 8: 7, 16: 15}
                if I.kind == 'mfma':
                    if inter(P.wr, I.srcAB): w = max(w, tab_o[P.passes])
                    if inter(P.wr, I.srcC) and not (P.wr == I.srcC and P.passes == I.passes): w = max(w, tab_c[P.passes])
                    if inter(P.wr, I.wr) and not (P.wr == I.srcC): w = max(w, tab_c[P.passes])
                else:
                    if inter(P.wr, I.rd) or inter(P.wr, I.wr): w = max(w, tab_o[P.passes])
                    if (isvalu(I.kind) or I.kind in ('ds', 'vmem')) and inter(P.srcC, I.wr): w = max(w, tab_war[P.passes])
            if P.kind == 'salu' and inter(P.wr, [('s', 'm0')]) and I.kind == 'vmem_lds': w = max(w, 1)
            if P.kind == 'vmem' and P.wide and inter(P.data, I.wr): w = max(w, 2)
            need = max(need, w - d)
        return need
    def _push(self, I, slots=1):
        I.slot = self.slot + slots - 1
        self.slot += slots
        self.hist.append(I)
        while self.hist and self.slot - self.hist[0].slot > 24:
            self.hist.pop(0)
    def nop(self, n):
        while n > 0:
            k = min(n, 16)
            self.lines.append('    s_nop %d' % (k - 1))
            J = parse('s_nop %d' % (k - 1)); self._push(J, k)
            n -= k
    def wait(self, vm=None, lg=None):
        parts = []
        if vm is not None:
            vm = min(vm, 63)
            parts.append('vmcnt(%d)' % vm)
            while len(self.vm) > vm: self.vm.pop(0)
        if lg is not None:
            lg = min(lg, 15)
            parts.append('lgkmcnt(%d)' % lg)
            while len(self.lg) > lg: self.lg.pop(0)
        t = 's_waitcnt ' + ' '.join(parts)
        self.lines.append('    ' + t)
        self._push(parse(t))
    def __call__(self, text):
        for t in text.strip().split('\n'):
            t = t.split(';')[0].strip()
            if t: self.emit(t)
    def emit(self, text):
        I = parse(text)
        if self.auto_wait:
            touched = I.rd + I.wr
            vmn = None; lgn = None
            for i, regs in enumerate(self.vm):
                if inter(regs, touched): vmn = len(self.vm) - 1 - i
            anysm = any(sm for _, sm in self.lg)
            for i, (regs, sm) in enumerate(self.lg):
                if inter(regs, touched): lgn = 0 if anysm else len(self.lg) - 1 - i
            if vmn is not None or lgn is not None:
                self.wait(vmn, lgn)
        n = self._need(I)
        if n > 0:
            self.nops_inserted += n
            self.nop(n)
        self.lines.append('    ' + text)
        self._push(I)
        if I.kind in ('vmem', 'vmem_lds'): self.vm.append(list(I.wr))
        if I.kind == 'ds': self.lg.append((list(I.wr), False))
        if I.kind == 'smem': self.lg.append((list(I.wr), True))
        if I.mn == 's_waitcnt': raise ValueError('use wait()')
    def text(self):
        return '\n'.join(self.lines) + '\n'
```

```python
import sys, os, re
from asmlib import Asm

NAME = 'adaLN_cond__ssm_conv_h3__moe_arch_mod__prompt'
MiB = 1 << 20
UP = 8192
WS_U = 0
WS_Z = 4 * MiB
WS_H2 = 6 * MiB
WS_SM = 8 * MiB
SM_MOD = 0
SM_KEY = 16384
SM_ACT = 49152
SM_X1 = 81920
SM_SIZE = 90112
WS_STAMP = 14 * MiB
STAMP = int(os.environ.get('STAMP', '0'))
SPIN_LIMIT = 1 << 16
LOG2E = 0x3fb8aa3b
a = Asm()

_nst = [0]
def stamp(i=None):
    if not STAMP: return
    if i is None: i = _nst[0]
    _nst[0] = i + 1
    assert i < 15
    a('s_memrealtime s[%d:%d]' % (SST + 2 * i, SST + 1 + 2 * i))
SST = 70
def stamp_init():
    _nst[0] = 0
    if not STAMP: return
    for i in range(16): a('s_mov_b32 s%d, 0' % (SST + 2 * i))
    stamp()
def kend(name, kidx, wsreg):
    a.label(name + '_end')
    if STAMP:
        a('s_memrealtime s[%d:%d]' % (SST + 30, SST + 31))
        a('s_mov_b64 exec, -1')
        a.wait(vm=0, lg=0)
        a('v_lshrrev_b32 v1, 6, v0'); a.nop(1); a('v_readfirstlane_b32 s4, v1')
        for i in range(16): a('v_writelane_b32 v2, s%d, %d' % (SST + 2 * i, i))
        a('s_lshl_b32 s5, s2, 3'); a('s_add_u32 s5, s5, s4'); a('s_lshl_b32 s5, s5, 6'); a('s_add_u32 s5, s5, %d' % (kidx * 512 * 8 * 64))
        srd(8, wsreg, MiB, WS_STAMP)
        a('v_and_b32 v1, 63, v0'); a('v_lshlrev_b32 v1, 2, v1')
        a('s_mov_b64 exec, 0xffff')
        a('buffer_store_dword v2, v1, s[8:11], s5 offen')
    a.label(name + '_exit')
    a('s_endpgm')

def kstart(name):
    a.raw('.p2align 8'); a.raw('.globl %s' % name); a.raw('.type %s,@function' % name); a.label(name); a.reset()
def srd(s, ptr, size, add=0):
    if add:
        a('s_add_u32 s%d, s%d, 0x%x' % (s, ptr, add)); a('s_addc_u32 s%d, s%d, 0' % (s + 1, ptr + 1))
    else:
        a('s_mov_b32 s%d, s%d' % (s, ptr)); a('s_mov_b32 s%d, s%d' % (s + 1, ptr + 1))
    a('s_mov_b32 s%d, 0x%x' % (s + 2, size)); a('s_mov_b32 s%d, 0x00020000' % (s + 3))
MASK = 3
def lo(d, s): a('v_lshlrev_b32 v%d, 16, v%d' % (d, s))
def hi(d, s): a('v_and_b32 v%d, s%d, v%d' % (d, MASK, s))
def rb(d, s): a('v_cvt_pk_bf16_f32 v%d, 0, v%d' % (d, s))
def pk(op, d, x, y, extra=''): a('v_pk_%s_f32 v[%d:%d], v[%d:%d], %s %s' % (op, d, d + 1, x, x + 1, y, extra))
def vp(r): return 'v[%d:%d]' % (r, r + 1)
def vq(r): return 'v[%d:%d]' % (r, r + 3)
def sp(r): return 's[%d:%d]' % (r, r + 1)
def sq(r): return 's[%d:%d]' % (r, r + 3)
def unpack(d, s, n):
    for i in range(n): lo(d + 2 * i, s + i); hi(d + 2 * i + 1, s + i)
DPPS = ('row_shr:1 row_mask:0xf bank_mask:0xf', 'row_shr:2 row_mask:0xf bank_mask:0xf', 'row_shr:4 row_mask:0xf bank_mask:0xf',
        'row_shr:8 row_mask:0xf bank_mask:0xf', 'row_bcast:15 row_mask:0xa bank_mask:0xf', 'row_bcast:31 row_mask:0xc bank_mask:0xf')
def wave_reduce(op, regs):
    for ctl in DPPS:
        for r in regs: a('%s_dpp v%d, v%d, v%d %s' % (op, r, r, r, ctl))
def silu_like(D, X, n, sneg, mulx=True):
    for i in range(n): a('v_mul_f32 v%d, s%d, v%d' % (D + i, sneg, X + i))
    for i in range(n): a('v_exp_f32 v%d, v%d' % (D + i, D + i))
    for i in range(n): a('v_add_f32 v%d, 1.0, v%d' % (D + i, D + i))
    for i in range(n): a('v_rcp_f32 v%d, v%d' % (D + i, D + i))
    if mulx:
        for i in range(n): a('v_mul_f32 v%d, v%d, v%d' % (D + i, D + i, X + i))
    for i in range(n): rb(D + i, D + i)

NMOD = 192
def gen_k0():
    kstart('k0_kernel')
    a('s_cmp_ge_u32 s2, %d' % (256 + NMOD)); a('s_cbranch_scc1 k0_exit')
    a('s_load_dwordx2 s[12:13], s[0:1], 120')
    a('s_cmp_ge_u32 s2, 256'); a('s_cbranch_scc1 k0_mod')
    a('s_load_dwordx8 s[4:11], s[0:1], 8')
    stamp_init()
    a('s_mov_b32 s3, 0xffff0000')
    a('s_and_b32 s14, s2, 7'); a('s_lshr_b32 s15, s2, 3')
    a('v_and_b32 v1, 15, v0'); a('v_lshrrev_b32 v2, 4, v0')
    a('s_lshl_b32 s16, s15, 6')
    a('v_lshl_add_u32 v3, v1, 2, s16')
    a('s_lshl_b32 s17, s14, 7')
    a('v_lshl_add_u32 v4, v2, 3, s17')
    a('v_lshl_add_u32 v5, v3, 10, v4')
    a('v_subrev_u32 v6, 4096, v5')
    a('v_mov_b32 v7, 0x80000000')
    a('v_cmp_eq_u32 vcc, 0, v3')
    a('v_cndmask_b32 v6, v6, v7, vcc')
    a('v_lshlrev_b32 v7, 2, v4')
    a('v_lshlrev_b32 v8, 4, v0')
    a('s_lshl_b32 s18, s14, 18'); a('s_lshl_b32 s19, s15, 13'); a('s_add_u32 s18, s18, s19')
    a('s_add_u32 s19, s18, 4096')
    KR = 10; VR = 26; WR = 36
    srd(20, 4, 2 * MiB)
    for i in range(4): a('buffer_load_dwordx2 %s, v6, s[20:23], 0 offen offset:%d' % (vp(KR + 2 * i), 1024 * i))
    for i in range(4): a('buffer_load_dwordx2 %s, v5, s[20:23], 0 offen offset:%d' % (vp(KR + 8 + 2 * i), 1024 * i))
    srd(28, 8, 4096)
    a('buffer_load_dwordx4 %s, v7, s[28:31], 0 offen' % vq(WR)); a('buffer_load_dwordx4 %s, v7, s[28:31], 0 offen offset:16' % vq(WR + 4))
    srd(24, 6, 2 * MiB)
    a('buffer_load_dwordx2 %s, v6, s[24:27], 0 offen offset:3072' % vp(VR))
    for i in range(4): a('buffer_load_dwordx2 %s, v5, s[24:27], 0 offen offset:%d' % (vp(VR + 2 + 2 * i), 1024 * i))
    srd(32, 10, 2 * MiB)
    a('buffer_load_dwordx4 v[136:139], v8, s[32:35], s18 offen')
    a('buffer_load_dwordx4 v[140:143], v8, s[32:35], s19 offen')
    srd(36, 12, 6 * MiB)
    for i in range(4): a('v_mov_b32 v%d, -1' % (144 + i))
    a('s_add_u32 s40, s18, %d' % WS_Z); a('s_add_u32 s41, s19, %d' % WS_Z)
    a('buffer_store_dwordx4 v[144:147], v8, s[36:39], s40 offen sc1')
    a('buffer_store_dwordx4 v[144:147], v8, s[36:39], s41 offen sc1')
    a('s_cmp_ge_u32 s2, 16'); a('s_cbranch_scc1 k0_nocode')
    a('s_getpc_b64 s[42:43]')
    a.label('k0_pc')
    a('s_add_u32 s42, s42, k1_kernel-k0_pc'); a('s_addc_u32 s43, s43, 0')
    a('v_lshlrev_b32 v9, 7, v0')
    a('s_mov_b32 s44, (k1_code_end-k1_kernel+127)/128'); a('v_cmp_gt_u32 vcc, s44, v0'); a('s_and_saveexec_b64 s[44:45], vcc'); a('s_cbranch_execz k0_nocode2')
    a('global_load_dword v148, v9, s[42:43]')
    a.label('k0_nocode2'); a('s_mov_b64 exec, s[44:45]')
    a.label('k0_nocode')
    a('v_lshlrev_b32 v8, 12, v4'); a('v_lshlrev_b32 v9, 1, v3'); a('v_sub_u32 v8, v8, v9'); a('v_add_u32 v8, 4088, v8')
    stamp()
    a.vm = a.vm[:15] + [[] for _ in a.vm[15:-1]]
    W = 44
    for c in range(4):
        lo(W + 0 + c, WR + 2 * c); hi(W + 4 + c, WR + 2 * c); lo(W + 8 + c, WR + 2 * c + 1); hi(W + 12 + c, WR + 2 * c + 1)
    KF = 60
    unpack(KF, KR, 16)
    stamp()
    S = 92; P = 112
    for i in range(5):
        for h in (0, 2): pk('mul', S + 4 * i + h, KF + 4 * i + h, vp(W + 12 + h))
    for r in range(20): rb(S + r, S + r)
    for t in (1, 2, 3):
        for i in range(5):
            for h in (0, 2): pk('mul', P + 4 * i + h, KF + 4 * (i + t) + h, vp(W + 4 * (3 - t) + h))
        for r in range(20): rb(P + r, P + r)
        for r in range(0, 20, 2): pk('add', S + r, S + r, vp(P + r))
        for r in range(20): rb(S + r, S + r)
    unpack(P, VR, 10)
    for r in range(0, 20, 2): pk('mul', S + r, S + r, vp(P + r))
    O = 60
    for c in range(4):
        a('v_cvt_pk_bf16_f32 v%d, v%d, v%d' % (O + 4 * c, S + 16 + c, S + 12 + c))
        a('v_cvt_pk_bf16_f32 v%d, v%d, v%d' % (O + 4 * c + 1, S + 8 + c, S + 4 + c))
        a('v_cvt_pk_bf16_f32 v%d, v%d, v%d' % (O + 4 * c + 2, S + 12 + c, S + 8 + c))
        a('v_cvt_pk_bf16_f32 v%d, v%d, v%d' % (O + 4 * c + 3, S + 4 + c, S + c))
    stamp()
    for c in range(8): a('s_mov_b32 s%d, %d' % (46 + c, c * 4096))
    for c in range(4):
        a('buffer_store_dwordx2 %s, v8, s[36:39], s%d offen sc1' % (vp(O + 4 * c), 46 + 2 * c))
        a('buffer_store_dwordx2 %s, v8, s[36:39], s%d offen sc1' % (vp(O + 4 * c + 2), 47 + 2 * c))
    a('s_branch k0_end')
    a.label('k0_mod'); a.reset()
    a('s_load_dwordx4 s[4:7], s[0:1], 88')
    stamp_init()
    a('s_mov_b32 s3, 0xffff0000')
    a('s_sub_u32 s14, s2, 256')
    a('s_and_b32 s15, s14, 7'); a('s_mul_i32 s15, s15, 24'); a('s_lshr_b32 s14, s14, 3'); a('s_add_u32 s14, s14, s15')
    a('v_and_b32 v1, 1, v0'); a('v_lshrrev_b32 v2, 1, v0')
    a('v_lshlrev_b32 v3, 3, v2')
    a('s_mov_b32 s15, %d' % (4 * 6144))
    a('v_mul_lo_u32 v4, v2, s15'); a('v_lshl_add_u32 v4, v1, 4, v4')
    a('s_lshl_b32 s16, s14, 5')
    for i in range(1, 4): a('s_add_u32 s%d, s16, %d' % (16 + i, i * 6144))
    a.wait(lg=0)
    srd(24, 6, 3 * MiB)
    for i in range(4): a('buffer_load_dwordx4 %s, v4, s[24:27], s%d offen' % (vq(16 + 4 * i), 16 + i))
    srd(20, 4, 1024)
    a('buffer_load_dwordx2 v[8:9], v3, s[20:23], 0 offen')
    srd(28, 12, 12288, WS_SM + SM_MOD)
    stamp()
    C = 48; E = 52
    unpack(C, 8, 2)
    a('s_mov_b32 s40, 0x%x' % (LOG2E | 0x80000000))
    silu_like(E, C, 4, 40)
    ACC = 64; T = 72
    for i in range(4):
        unpack(T, 16 + 4 * i, 4)
        for e in range(8):
            if i == 0: a('v_mul_f32 v%d, v%d, v%d' % (ACC + e, E, T + e))
            else: a('v_fmac_f32 v%d, v%d, v%d' % (ACC + e, E + i, T + e))
    stamp()
    for ctl in ('row_shr:2', 'row_shr:4', 'row_shr:8'):
        for e in range(8): a('v_add_f32_dpp v%d, v%d, v%d %s row_mask:0xf bank_mask:0xf' % (ACC + e, ACC + e, ACC + e, ctl))
    a('v_lshrrev_b32 v5, 4, v0'); a('v_lshlrev_b32 v5, 6, v5'); a('v_lshl_add_u32 v5, v1, 5, v5')
    a('v_and_b32 v6, 14, v0'); a('v_cmp_eq_u32 vcc, 14, v6')
    a('s_and_saveexec_b64 s[46:47], vcc')
    a('ds_write_b128 v5, %s' % vq(ACC)); a('ds_write_b128 v5, %s offset:16' % vq(ACC + 4))
    a('s_mov_b64 exec, s[46:47]')
    a.wait(lg=0); a('s_barrier')
    a('v_cmp_gt_u32 vcc, 16, v0'); a('s_and_saveexec_b64 s[46:47], vcc'); a('s_cbranch_execz k0_end')
    a('v_lshlrev_b32 v5, 2, v0')
    for i in range(16): a('ds_read_b32 v%d, v5 offset:%d' % (16 + i, 64 * i))
    for st in (8, 4, 2, 1):
        for i in range(st): a('v_add_f32 v%d, v%d, v%d' % (16 + i, 16 + i, 16 + i + st))
    rb(16, 16)
    a('v_add_f32 v17, 1.0, v16'); rb(17, 17)
    a('s_lshr_b32 s17, s14, 5')
    a('s_cmp_eq_u32 s17, 1'); a('s_cselect_b32 s18, 1, 0'); a('s_cmp_eq_u32 s17, 4'); a('s_cselect_b32 s18, 1, s18')
    a('s_cmp_eq_u32 s18, 0'); a('s_cbranch_scc1 k0_mod_st')
    a('v_mov_b32 v16, v17')
    a.label('k0_mod_st')
    a('s_lshl_b32 s16, s14, 6')
    a('buffer_store_dword v16, v5, s[28:31], s16 offen sc1')
    kend('k0', 0, 12)

L_MISC = 0
L_WM = L_MISC; L_KEYL = L_MISC + 32; L_SEL = L_MISC + 64; L_RANK = L_MISC + 128; L_SEG = L_MISC + 384; L_CNT = L_MISC + 640; L_FLAG = L_MISC + 644
L_WR = 1024; L_HB = 2048; L_XB = L_HB + 8192; L_MOD = L_XB + 8192; L_Y = L_MOD + 8192
L_LIST = L_Y; L_P = L_Y + 8192
L_IMG = L_Y + 32768
L_U1 = 0; L_U0 = 4576; L_KA = 9216; L_KB = 13440; L_CB = 17664
assert L_IMG % 256 == 0
L_ZT = L_IMG + L_KA; ZP = 1040
L_W = L_IMG + 2 * L_CB
L_GU = 8256
K1_LDS = L_W + 57344
Q, SSMK, SSMD, WRP = 16, 24, 26, 30
WG_, WU_, WD_, OUT, WS = 32, 34, 36, 42, 46

def ln_stats(X, T, sC, sMB, sRI, vS):
    a('v_readfirstlane_b32 s%d, v%d' % (sC, X))
    for i in range(0, 8, 2): pk('add', T + i, X + i, sp(sC), 'op_sel_hi:[1,0] neg_lo:[0,1] neg_hi:[0,1]')
    pk('add', vS, T, vp(T + 2)); pk('mul', vS + 2, T, vp(T))
    pk('add', T, T + 4, vp(T + 6))
    a('v_pk_fma_f32 %s, %s, %s, %s' % (vp(vS + 2), vp(T + 2), vp(T + 2), vp(vS + 2)))
    pk('mul', T + 2, T + 4, vp(T + 4))
    pk('add', vS, vS, vp(T))
    a('v_pk_fma_f32 %s, %s, %s, %s' % (vp(T + 2), vp(T + 6), vp(T + 6), vp(T + 2)))
    a('v_add_f32 v%d, v%d, v%d' % (vS, vS, vS + 1))
    pk('add', vS + 2, vS + 2, vp(T + 2))
    a('v_add_f32 v%d, v%d, v%d' % (vS + 1, vS + 2, vS + 3))
    wave_reduce('v_add_f32', [vS, vS + 1])
    a('v_mul_f32 v%d, 0x3b000000, v%d' % (vS, vS)); a('v_mul_f32 v%d, 0x3b000000, v%d' % (vS + 1, vS + 1))
    a('v_fma_f32 v%d, -v%d, v%d, v%d' % (vS + 1, vS, vS, vS + 1))
    a('v_add_f32 v%d, s%d, v%d' % (vS, sC, vS))
    a('v_max_f32 v%d, 0, v%d' % (vS + 1, vS + 1))
    rb(vS, vS); rb(vS + 1, vS + 1)
    a('v_readlane_b32 s%d, v%d, 63' % (sMB, vS))
    a('v_add_f32 v%d, 0x3727c5ac, v%d' % (vS + 1, vS + 1)); rb(vS + 1, vS + 1)
    a('v_sqrt_f32 v%d, v%d' % (vS + 1, vS + 1)); rb(vS + 1, vS + 1)
    a('v_rcp_f32 v%d, v%d' % (vS + 1, vS + 1))
    return lambda: a('v_readlane_b32 s%d, v%d, 63' % (sRI, vS + 1))
def ln_apply(D, X, sMB, sRI, C1, SH, fin):
    for i in range(0, 8, 2): pk('add', D + i, X + i, sp(sMB), 'op_sel_hi:[1,0] neg_lo:[0,1] neg_hi:[0,1]')
    for i in range(8): rb(D + i, D + i)
    fin()
    for i in range(0, 8, 2): pk('mul', D + i, D + i, sp(sRI), 'op_sel_hi:[1,0]')
    for i in range(8): rb(D + i, D + i)
    for i in range(0, 8, 2): pk('mul', D + i, D + i, vp(C1 + i))
    for i in range(8): rb(D + i, D + i)
    for i in range(0, 8, 2): pk('add', D + i, D + i, vp(SH + i))

_pl = [0]
def poll(loads, regs, tmp, exec_mask=None):
    n = _pl[0]; _pl[0] += 1
    a('s_mov_b32 s64, 0')
    a('s_mov_b64 s[66:67], exec')
    if exec_mask is not None:
        a('s_mov_b32 exec_lo, 0x%x' % exec_mask); a('s_mov_b32 exec_hi, 0x%x' % exec_mask)
    a.label('poll%d' % n)
    for l in loads: a(l)
    a.wait(vm=0)
    rs = list(regs)
    first = True
    while rs:
        if first:
            x = rs[:3]; rs = rs[3:]; first = False
            a('v_max3_u32 v%d, v%d, v%d, v%d' % (tmp, x[0], x[1], x[2])) if len(x) == 3 else a('v_max_u32 v%d, v%d, v%d' % (tmp, x[0], x[1]))
        elif len(rs) >= 2:
            a('v_max3_u32 v%d, v%d, v%d, v%d' % (tmp, tmp, rs[0], rs[1])); rs = rs[2:]
        else:
            a('v_max_u32 v%d, v%d, v%d' % (tmp, tmp, rs[0])); rs = rs[1:]
    a('v_cmp_eq_u32 vcc, -1, v%d' % tmp)
    a('s_add_u32 s64, s64, 1')
    a('s_and_b64 exec, exec, vcc')
    a('s_cbranch_execz poll%d_done' % n)
    a('s_cmp_lt_u32 s64, %d' % SPIN_LIMIT); a('s_cbranch_scc1 poll%d' % n)
    a.label('poll%d_done' % n)
    a('s_mov_b64 exec, s[66:67]')

def gen_k1():
    kstart('k1_kernel')
    a('s_cmp_ge_u32 s2, 256'); a('s_cbranch_scc1 k1_exit')
    a('s_load_dwordx16 s[16:31], s[0:1], 0'); a('s_load_dwordx16 s[32:47], s[0:1], 64')
    stamp_init()
    a('s_mov_b32 s3, 0xffff0000')
    a('s_and_b32 s4, s2, 7'); a('s_lshr_b32 s5, s2, 3')
    a('s_lshl_b32 s6, s4, 5'); a('s_add_u32 s6, s6, s5')
    a('v_lshrrev_b32 v1, 6, v0'); a.nop(1); a('v_readfirstlane_b32 s7, v1')
    a('v_and_b32 v1, 63, v0'); a('v_lshlrev_b32 v2, 4, v1')
    a('s_and_b32 s8, s7, 1'); a('s_lshr_b32 s9, s7, 1')
    a('s_mul_i32 s10, s8, %d' % L_CB); a('s_add_u32 s10, s10, %d' % L_IMG)
    a('s_lshl_b32 s11, s6, 1'); a('s_add_u32 s11, s11, s8')
    a('s_lshl_b32 s12, s6, 2')
    for i in range(4): a('v_mov_b32 v%d, 0' % (4 + i))
    a('s_cmp_ge_u32 s9, 2'); a('s_cbranch_scc1 k1_helper')
    st0 = a.save()
    a('s_lshl_b32 s13, s11, 13'); a('s_lshl_b32 s14, s9, 12'); a('s_add_u32 s13, s13, s14')
    a('s_mul_i32 s14, s9, %d' % L_U0); a('s_add_u32 s14, s14, s10')
    a('s_mov_b32 m0, s14')
    srd(56, WS, 9 * MiB)
    for i in range(4): a('buffer_load_dwordx4 v2, s[56:59], s13 offen offset:%d lds' % (1024 * i))
    a('s_load_dword s15, %s, s12' % sp(SSMD))
    a('v_add_u32 v3, s14, v2')
    a('v_cmp_gt_u32 vcc, 28, v1'); a('s_and_saveexec_b64 s[66:67], vcc')
    a('ds_write_b128 v3, v[4:7] offset:4096')
    a('s_mov_b64 exec, s[66:67]')
    a('v_and_b32 v10, 15, v1'); a('v_lshrrev_b32 v11, 4, v1')
    a('v_lshrrev_b32 v12, 1, v10'); a('v_and_b32 v13, 1, v10')
    a('v_lshlrev_b32 v14, 6, v12'); a('v_lshl_add_u32 v14, v11, 4, v14')
    a('v_mul_u32_u24 v15, %d, v13' % (L_U0 - L_U1)); a('v_add_u32 v14, v14, v15')
    a('s_lshl_b32 s64, s9, 8'); a('s_sub_u32 s65, s10, s64'); a('s_add_u32 s65, s65, %d' % (L_U0 + 283 * 16 - 64 * 59))
    a('v_sub_u32 v14, s65, v14')
    a('v_lshlrev_b32 v15, 3, v12'); a('v_lshlrev_b32 v16, 4, v11'); a('v_sub_u32 v15, v15, v16')
    a('v_mul_u32_u24 v16, %d, v13' % (L_KB + 62 * 8 - L_KA - 63 * 8)); a('v_sub_u32 v15, v15, v16')
    a('s_sub_u32 s65, s10, s64'); a('s_add_u32 s65, s65, %d' % (L_KB + 62 * 8 - 192))
    a('v_add_u32 v15, s65, v15')
    a('v_lshlrev_b32 v16, 8, v11'); a('v_lshl_add_u32 v16, v10, 3, v16')
    a('s_lshl_b32 s64, s8, 1'); a('s_add_u32 s64, s64, s9'); a('s_lshl_b32 s64, s64, 13'); a('s_add_u32 s64, s64, %d' % L_Y)
    a('v_add_u32 v16, s64, v16')
    stamp(1)
    a.wait(vm=0, lg=0); a('s_barrier'); stamp(2)
    if STAMP: a.wait(lg=0)
    ACC = 32; F0 = 64
    def Areg(buf, al): return F0 + buf * 64 + al * 4
    def Breg(buf, be): return F0 + buf * 64 + 32 + be * 4
    def loadA(buf, rp, al): a('ds_read_b128 %s, v14 offset:%d' % (vq(Areg(buf, al)), 64 * (59 - (rp + 8 * al))))
    def loadB(buf, rp, be):
        o = 64 * (8 * be + 3 - rp)
        a('ds_read_b64 %s, v15 offset:%d' % (vp(Breg(buf, be)), o)); a('ds_read_b64 %s, v15 offset:%d' % (vp(Breg(buf, be) + 2), o + 8))
    pairs = []
    for m in range(8):
        for o in range(m + 1):
            for (al, be) in ((m, o), (o, m)) if o != m else ((m, m),):
                if al + be <= 7: pairs.append((al, be))
    loads = []
    for m in range(8): loads.append(('A', m)); loads.append(('B', m))
    def do_load(buf, rp, it): (loadA if it[0] == 'A' else loadB)(buf, rp, it[1])
    for it in loads: do_load(0, 0, it)
    first = set()
    for rp in range(4):
        buf = rp & 1
        nxt = list(loads) if rp < 3 else []
        order = pairs
        if rp == 3:
            order = sorted(pairs, key=lambda x: (x[0] + x[1]))
        done = {}
        for n, (al, be) in enumerate(order):
            t = al + be
            c = '0' if t not in first else vq(ACC + 4 * t)
            first.add(t)
            a('v_mfma_f32_16x16x32_bf16 %s, %s, %s, %s' % (vq(ACC + 4 * t), vq(Areg(buf, al)), vq(Breg(buf, be)), c))
            if nxt and n % 2 == 1: do_load(buf ^ 1, rp + 1, nxt.pop(0))
            if rp == 3:
                done[t] = n
                for tt in range(8):
                    last = max(i for i, (x, y) in enumerate(order) if x + y == tt)
                    if n == last + 9:
                        a('ds_write_b64 v16, %s offset:%d' % (vp(ACC + 4 * tt), 1024 * tt)); a('ds_write_b64 v16, %s offset:%d' % (vp(ACC + 4 * tt + 2), 1024 * tt + 128))
        if rp == 3:
            for tt in range(8):
                last = max(i for i, (x, y) in enumerate(order) if x + y == tt)
                if last + 9 > 35:
                    a('ds_write_b64 v16, %s offset:%d' % (vp(ACC + 4 * tt), 1024 * tt)); a('ds_write_b64 v16, %s offset:%d' % (vp(ACC + 4 * tt + 2), 1024 * tt + 128))
    stamp(3)
    a('s_branch k1_epi')
    a.label('k1_helper'); a.load(st0)
    a('s_sub_u32 s9, s9, 2')
    a('s_lshl_b32 s13, s11, 12'); a('s_lshl_b32 s14, s9, 2'); a('s_add_u32 s64, s13, s14')
    a('s_mul_i32 s14, s9, %d' % (L_KB - L_KA)); a('s_add_u32 s14, s14, s10'); a('s_add_u32 s14, s14, %d' % L_KA)
    a('s_add_u32 s65, s14, 64'); a('s_mov_b32 m0, s65')
    srd(48, SSMK, 2 * MiB)
    for i in range(4): a('buffer_load_dwordx4 v2, s[48:51], s64 offen offset:%d lds' % (1024 * i))
    a('buffer_load_dword v9, v4, s[48:51], s13 offen')
    a('s_load_dword s15, %s, s12' % sp(SSMD))
    srd(52, Q, 2 * MiB); srd(56, WS, 9 * MiB)
    a('s_sub_u32 s8, s7, 4')
    a('s_lshl_b32 s10, s6, 3'); a('s_add_u32 s10, s10, s8'); a('s_lshl_b32 s10, s10, 10')
    a('s_add_u32 s11, s10, 4096')
    a('buffer_load_dwordx4 v[16:19], v2, s[52:55], s10 offen'); a('buffer_load_dwordx4 v[20:23], v2, s[52:55], s11 offen')
    a('v_lshlrev_b32 v8, 5, v1')
    a('s_mov_b32 s64, %d' % (WS_SM + SM_MOD)); a('s_mov_b32 s65, %d' % (WS_SM + SM_MOD + 2048))
    SA = 64; CA = 72
    for (r, sr) in ((CA, 65), (SA, 64)):
        a('buffer_load_dwordx4 %s, v8, s[56:59], s%d offen' % (vq(r), sr)); a('buffer_load_dwordx4 %s, v8, s[56:59], s%d offen offset:16' % (vq(r + 4), sr))
    a('v_add_u32 v3, s14, v2')
    a('v_cmp_eq_u32 vcc, 3, v1'); a('s_cmp_eq_u32 s9, 1'); a('s_cselect_b64 s[66:67], vcc, 0')
    a('v_cndmask_b32 v7, v7, v9, s[66:67]')
    a('v_cmp_gt_u32 vcc, 4, v1'); a('s_and_saveexec_b64 s[66:67], vcc')
    a('ds_write_b128 v3, v[4:7]')
    a('s_mov_b64 exec, s[66:67]')
    stamp(1)
    a.wait(lg=0); a('s_barrier'); stamp(2)
    a('s_lshl_b32 s64, s8, 11'); a('s_add_u32 s65, s64, %d' % L_MOD); a('s_mov_b32 m0, s65'); a('s_add_u32 s64, s64, %d' % (WS_SM + SM_MOD + 4096))
    for i in range(2): a('buffer_load_dwordx4 v2, s[56:59], s64 offen offset:%d lds' % (1024 * i))
    srd(48, WRP, 1024)
    a('s_mov_b32 m0, %d' % L_WR)
    a('buffer_load_dwordx4 v2, s[48:51], 0 offen lds')
    X = 24; T = 40; S = 48
    unpack(X, 16, 4); unpack(X + 8, 20, 4)
    a('s_mul_i32 s64, s8, 1024'); a('v_add_u32 v3, s64, v2')
    a('ds_write_b128 v3, v[16:19] offset:%d' % L_XB); a('ds_write_b128 v3, v[20:23] offset:%d' % (L_XB + 4096))
    for rr in range(2):
        fin = ln_stats(X + 8 * rr, T, 60, 62, 68, S)
        ln_apply(T, X + 8 * rr, 62, 68, CA, SA, fin)
        for i in range(4): a('v_cvt_pk_bf16_f32 v%d, v%d, v%d' % (52 + i, T + 2 * i, T + 2 * i + 1))
        a('ds_write_b128 v3, v[52:55] offset:%d' % (L_HB + 4096 * rr))
    a('v_and_b32 v10, 255, v0')
    a('s_cmp_ge_u32 s5, 28'); a('s_cbranch_scc1 k1_wdown')
    a('s_mul_i32 s64, s4, 28'); a('s_add_u32 s64, s64, s5'); a('s_lshl_b32 s64, s64, 4')
    a('s_mov_b32 s65, 3584'); a('v_mul_lo_u32 v11, v10, s65')
    srd(48, WG_, 512 * 3584); srd(60, WU_, 512 * 3584)
    for i in range(2):
        for (sr, off) in ((48, 0), (60, L_GU)):
            a('s_lshl_b32 s65, s8, 10'); a('s_add_u32 s65, s65, %d' % (L_W + off + 4096 * i)); a('s_mov_b32 m0, s65')
            a('s_add_u32 s65, s64, %d' % (256 * 3584 * i))
            a('buffer_load_dwordx4 v11, %s, s65 offen lds' % sq(sr))
    a('s_branch k1_fill')
    a.label('k1_wdown')
    a('s_lshl_b32 s64, s4, 2'); a('s_add_u32 s64, s64, s5'); a('s_sub_u32 s64, s64, 28'); a('s_lshl_b32 s64, s64, 5')
    a('v_lshrrev_b32 v11, 1, v1')
    a('v_and_b32 v12, 0x13, v11'); a('v_bfe_u32 v13, v11, 2, 1'); a('v_lshl_or_b32 v12, v13, 3, v12'); a('v_bfe_u32 v13, v11, 3, 1'); a('v_lshl_or_b32 v12, v13, 2, v12')
    a('v_lshlrev_b32 v11, 10, v12'); a('v_and_b32 v12, 1, v1'); a('v_lshl_add_u32 v11, v12, 4, v11')
    srd(48, WD_, 1792 * 1024)
    a('s_mul_i32 s65, s8, %d' % (14 * 32768)); a('s_add_u32 s64, s64, s65')
    a('s_mul_i32 s65, s8, %d' % (14 * 1024)); a('s_add_u32 s65, s65, %d' % L_W)
    for i in range(14):
        a('s_mov_b32 m0, s65')
        a('buffer_load_dwordx4 v11, s[48:51], s64 offen lds')
        a('s_add_u32 s65, s65, 1024'); a('s_add_u32 s64, s64, 32768')
    a.label('k1_fill')
    for i in range(4): a('v_mov_b32 v%d, -1' % (4 + i))
    a('v_lshlrev_b32 v11, 4, v10')
    a('s_lshl_b32 s64, s6, 13'); a('s_add_u32 s64, s64, %d' % WS_H2); a('s_add_u32 s65, s64, 4096')
    a('buffer_store_dwordx4 v[4:7], v11, s[56:59], s64 offen sc1'); a('buffer_store_dwordx4 v[4:7], v11, s[56:59], s65 offen sc1')
    a('s_lshl_b32 s64, s6, 7'); a('s_add_u32 s64, s64, %d' % (WS_SM + SM_KEY)); a('s_mov_b64 s[66:67], 0xff')
    a('s_lshl_b32 s65, s2, 7'); a('s_add_u32 s65, s65, %d' % (WS_SM + SM_ACT))
    a('s_cmp_eq_u32 s8, 1'); a('s_cselect_b32 s64, s65, s64')
    a('s_lshl_b32 s65, s2, 10'); a('s_add_u32 s65, s65, %d' % (WS_SM + SM_X1))
    a('s_cmp_eq_u32 s8, 2'); a('s_cselect_b32 s64, s65, s64'); a('s_cselect_b64 s[66:67], -1, s[66:67]')
    a('s_cmp_eq_u32 s8, 3'); a('s_cbranch_scc1 k1_epi')
    a('s_mov_b32 s65, 256'); a('s_cmp_eq_u32 s8, 1'); a('s_cselect_b32 s65, 224, s65'); a('s_cmp_eq_u32 s8, 2'); a('s_cselect_b32 s65, 8, s65')
    a('s_cmp_ge_u32 s2, s65'); a('s_cbranch_scc1 k1_epi')
    a('s_mov_b64 exec, s[66:67]')
    a('buffer_store_dwordx4 v[4:7], v2, s[56:59], s64 offen sc1')
    a('s_mov_b64 exec, -1')
    a.label('k1_epi')
    a('s_lshl_b32 s64, s7, 10'); a('v_add_u32 v17, s64, v2')
    a('v_lshrrev_b32 v18, 1, v17'); a('v_sub_u32 v18, %d, v18' % (L_IMG + L_U1 + 4088))
    a.wait(vm=0, lg=0); stamp(4)
    a('ds_read_b64 v[20:21], v18'); a('ds_read_b64 v[22:23], v18 offset:%d' % L_CB)
    a('s_lshl_b32 s8, s15, 16'); a('s_and_b32 s9, s15, s3')
    a('s_lshl_b32 s10, s6, 13'); a('s_add_u32 s10, s10, %d' % WS_Z)
    a('s_barrier'); stamp(5)
    for i in range(4): a('ds_read_b128 %s, v17 offset:%d' % (vq(32 + 4 * i), L_Y + 8192 * i))
    U = 48
    for ch in range(2):
        hi(U + 4 * ch + 0, 21 + 2 * ch); lo(U + 4 * ch + 1, 21 + 2 * ch); hi(U + 4 * ch + 2, 20 + 2 * ch); lo(U + 4 * ch + 3, 20 + 2 * ch)
    for ch in range(2):
        for i in range(4): a('v_mul_f32 v%d, s%d, v%d' % (U + 4 * ch + i, 8 + ch, U + 4 * ch + i))
    for i in range(8): rb(U + i, U + i)
    for ch in range(2):
        for i in (0, 2): pk('add', 32 + 8 * ch + i, 32 + 8 * ch + i, vp(36 + 8 * ch + i))
    for ch in range(2):
        for i in range(4): rb(32 + 8 * ch + i, 32 + 8 * ch + i)
    for ch in range(2):
        for i in (0, 2): pk('add', 32 + 8 * ch + i, 32 + 8 * ch + i, vp(U + 4 * ch + i))
    for i in range(4): a('v_cvt_pk_bf16_f32 v%d, v%d, v%d' % (56 + i, 32 + i, 40 + i))
    for i in range(4): a('v_min_u32 v%d, -2, v%d' % (56 + i, 56 + i))
    a('buffer_store_dwordx4 v[56:59], v17, s[56:59], s10 offen sc1')
    stamp(6)
    X = 24; T = 32; H = 40; Z = 48; S = 60; M = 64; WRr = 96
    a('ds_read_b128 v[12:15], v17 offset:%d' % L_XB); a('ds_read_b128 v[16:19], v17 offset:%d' % L_HB)
    a('ds_read_b128 v[20:23], v2 offset:%d' % L_WR)
    a('v_lshlrev_b32 v8, 5, v1')
    for i in range(4):
        a('ds_read_b128 %s, v8 offset:%d' % (vq(M + 8 * i), L_MOD + 2048 * i)); a('ds_read_b128 %s, v8 offset:%d' % (vq(M + 8 * i + 4), L_MOD + 2048 * i + 16))
    a('v_lshrrev_b32 v3, 1, v0'); a('v_and_b32 v4, 1, v0')
    a('v_lshlrev_b32 v5, 13, v3'); a('v_lshl_add_u32 v5, v4, 4, v5')
    a('v_mul_u32_u24 v6, %d, v4' % (4 * ZP)); a('v_lshl_add_u32 v6, v3, 2, v6'); a('v_add_u32 v6, %d, v6' % L_ZT)
    a('s_mul_i32 s64, s7, %d' % ZP); a('s_add_u32 s64, s64, %d' % L_ZT); a('v_add_u32 v7, s64, v2')
    a('v_lshlrev_b32 v9, 7, v3'); a('v_lshl_add_u32 v9, v4, 4, v9')
    a('s_lshl_b32 s11, s6, 5'); a('s_add_u32 s11, s11, %d' % WS_Z)
    a('s_lshl_b32 s12, s6, 3'); a('s_add_u32 s12, s12, s7')
    a('s_lshl_b32 s13, s12, 10')
    unpack(X, 12, 4); unpack(H, 16, 4); unpack(WRr, 20, 4)
    a.wait(vm=0); stamp(7)
    poll(['buffer_load_dwordx4 v[12:15], v5, s[56:59], s11 offen sc1'], [12, 13, 14, 15], 16)
    stamp(8)
    for i in range(4): a('ds_write_b32 v6, v%d offset:%d' % (12 + i, ZP * i))
    a.wait(lg=0); a('s_barrier')
    a('ds_read_b128 v[12:15], v7')
    unpack(Z, 12, 4)
    for i in range(0, 8, 2): pk('mul', H + i, H + i, vp(Z + i))
    for i in range(8): rb(H + i, H + i)
    for i in range(0, 8, 2): pk('mul', H + i, H + i, vp(M + i))
    for i in range(8): rb(H + i, H + i)
    for i in range(0, 8, 2): pk('add', X + i, X + i, vp(H + i))
    for i in range(8): rb(X + i, X + i)
    fin = ln_stats(X, T, 60, 62, 68, S)
    ln_apply(H, X, 62, 68, M + 16, M + 8, fin)
    for i in range(8): rb(H + i, H + i)
    pk('mul', S, H, vp(WRr)); pk('mul', S + 2, H + 2, vp(WRr + 2))
    a('v_pk_fma_f32 %s, %s, %s, %s' % (vp(S), vp(H + 4), vp(WRr + 4), vp(S))); a('v_pk_fma_f32 %s, %s, %s, %s' % (vp(S + 2), vp(H + 6), vp(WRr + 6), vp(S + 2)))
    pk('add', S, S, vp(S + 2)); a('v_add_f32 v%d, v%d, v%d' % (S, S, S + 1))
    for n, ctl in enumerate(DPPS):
        a('v_add_f32_dpp v%d, v%d, v%d %s' % (S, S, S, ctl))
        if n < 4:
            a('v_cvt_pk_bf16_f32 v%d, v%d, v%d' % (12 + n, H + 2 * n, H + 2 * n + 1)); a('v_min_u32 v%d, -2, v%d' % (12 + n, 12 + n))
    rb(S, S)
    a('v_ashrrev_i32 v%d, 31, v%d' % (S + 1, S)); a('v_or_b32 v%d, 0x80000000, v%d' % (S + 1, S + 1)); a('v_xor_b32 v%d, v%d, v%d' % (S, S, S + 1))
    a('s_sub_u32 s64, 2047, s12'); a('v_and_b32 v%d, s3, v%d' % (S, S)); a('v_or_b32 v%d, s64, v%d' % (S, S))
    a('s_lshl_b32 s64, s7, 2'); a('v_mov_b32 v%d, s64' % (S + 1))
    a('v_readlane_b32 s14, v%d, 63' % S)
    a('s_mov_b32 exec_lo, 0'); a('s_mov_b32 exec_hi, 0x80000000')
    a('ds_write_b32 v%d, v%d offset:%d' % (S + 1, S, L_KEYL))
    a('s_mov_b64 exec, -1')
    a('s_add_u32 s65, s13, %d' % WS_H2)
    a.wait(lg=0); a('s_barrier')
    a('s_cmp_lg_u32 s7, 0'); a('s_cbranch_scc1 k1_nokey')
    a('v_and_b32 v%d, 1, v1' % (S + 1)); a('v_lshlrev_b32 v%d, 4, v%d' % (S + 1, S + 1))
    a('ds_read_b128 v[16:19], v%d offset:%d' % (S + 1, L_KEYL))
    a('s_lshl_b32 s64, s6, 7'); a('s_add_u32 s64, s64, %d' % (WS_SM + SM_KEY))
    a('s_mov_b64 exec, 0xff')
    a('buffer_store_dwordx4 v[16:19], v2, s[56:59], s64 offen sc1')
    a('s_mov_b64 exec, -1')
    a.label('k1_nokey')
    a('buffer_store_dwordx4 v[12:15], v2, s[56:59], s65 offen sc1')
    stamp(9)
    OUTR = 104; X1P = 108
    for i in range(0, 8, 2): pk('mul', T + i, H + i, vp(M + 24 + i))
    for i in range(8): rb(T + i, T + i)
    for i in range(0, 8, 2): pk('add', T + i, T + i, vp(X + i))
    for i in range(4): a('v_cvt_pk_bf16_f32 v%d, v%d, v%d' % (OUTR + i, T + 2 * i, T + 2 * i + 1))
    for i in range(4): a('v_cvt_pk_bf16_f32 v%d, v%d, v%d' % (X1P + i, X + 2 * i, X + 2 * i + 1))
    for i in range(4): a('v_min_u32 v%d, -2, v%d' % (X1P + i, X1P + i))
    a('v_mov_b32 v20, 0'); a('v_lshlrev_b32 v21, 2, v1')
    a('ds_write_b32 v21, v20 offset:%d' % L_RANK); a('ds_write_b32 v21, v20 offset:%d' % L_SEG)
    a('ds_write_b64 v20, v[20:21] offset:%d' % L_CNT) if False else None
    a('ds_write_b32 v20, v20 offset:%d' % L_CNT); a('ds_write_b32 v20, v20 offset:%d' % L_FLAG)
    a('s_mov_b32 s11, %d' % (WS_SM + SM_KEY))
    a.wait(vm=0, lg=0)
    KEY = 12
    poll(['buffer_load_dwordx4 v[12:15], v9, s[56:59], s11 offen sc1'], [12, 13, 14, 15], 16)
    stamp(10)
    T0 = 30
    a('v_max3_u32 v%d, v%d, v%d, v%d' % (T0, KEY, KEY + 1, KEY + 2)); a('v_max_u32 v%d, v%d, v%d' % (T0, T0, KEY + 3))
    wave_reduce('v_max_u32', [T0])
    a('s_lshl_b32 s64, s7, 2'); a('v_mov_b32 v%d, s64' % (T0 + 1))
    a('s_mov_b32 exec_lo, 0'); a('s_mov_b32 exec_hi, 0x80000000')
    a('ds_write_b32 v%d, v%d offset:%d' % (T0 + 1, T0, L_WM))
    a('s_mov_b64 exec, -1')
    a.wait(lg=0); a('s_barrier')
    a('ds_read_b128 %s, v20 offset:%d' % (vq(T0 + 4), L_WM)); a('ds_read_b128 %s, v20 offset:%d' % (vq(T0 + 8), L_WM + 16))
    a('v_min3_u32 v%d, v%d, v%d, v%d' % (T0, T0 + 4, T0 + 5, T0 + 6)); a('v_min3_u32 v%d, v%d, v%d, v%d' % (T0 + 1, T0 + 8, T0 + 9, T0 + 10))
    a('v_min3_u32 v%d, v%d, v%d, v%d' % (T0, T0, T0 + 7, T0 + 11)); a('v_min_u32 v%d, v%d, v%d' % (T0, T0, T0 + 1))
    MS = 48
    for j in range(4): a('v_cmp_ge_u32 %s, v%d, v%d' % (sp(MS + 2 * j), KEY + j, T0))
    for j in range(4): a('s_bcnt1_i32_b64 s%d, %s' % (60 + j, sp(MS + 2 * j)))
    a('s_add_u32 s61, s61, s60'); a('s_add_u32 s62, s62, s61'); a('s_add_u32 s63, s63, s62')
    a('s_lshl_b32 s64, s7, 3')
    a('s_cmp_gt_u32 s63, 8'); a('s_cbranch_scc1 k1_tk_over')
    for j in range(4):
        a('v_mbcnt_lo_u32_b32 v%d, s%d, 0' % (T0 + 4 + j, MS + 2 * j)); a('v_mbcnt_hi_u32_b32 v%d, s%d, v%d' % (T0 + 4 + j, MS + 1 + 2 * j, T0 + 4 + j))
        if j > 0: a('s_add_u32 s65, s64, s%d' % (60 + j - 1))
        a('v_add_lshl_u32 v%d, v%d, s%d, 2' % (T0 + 4 + j, T0 + 4 + j, 64 if j == 0 else 65))
    for j in range(4):
        a('s_mov_b64 exec, %s' % sp(MS + 2 * j))
        a('ds_write_b32 v%d, v%d offset:%d' % (T0 + 4 + j, KEY + j, L_SEG))
    a('s_mov_b64 exec, -1')
    a('s_branch k1_tk_b')
    a.label('k1_tk_over')
    a('v_mov_b32 v%d, 1' % (T0 + 4)); a('ds_write_b32 v20, v%d offset:%d' % (T0 + 4, L_FLAG))
    a.label('k1_tk_b')
    a('s_lshl_b32 s64, s7, 5'); a('v_mov_b32 v%d, s64' % (T0 + 1))
    a.wait(lg=0); a('s_barrier')
    a('ds_read_b32 v%d, v20 offset:%d' % (T0 + 2, L_FLAG))
    a('ds_read_b32 v%d, v21 offset:%d' % (T0 + 3, L_SEG))
    a('ds_read_b128 %s, v%d offset:%d' % (vq(T0 + 4), T0 + 1, L_SEG)); a('ds_read_b128 %s, v%d offset:%d' % (vq(T0 + 8), T0 + 1, L_SEG + 16))
    a('v_readfirstlane_b32 s64, v%d' % (T0 + 2))
    a('s_cmp_lg_u32 s64, 0'); a('s_cbranch_scc1 k1_tk_slow')
    for e in range(8): a('v_cmp_gt_u32 %s, v%d, v%d' % (sp(MS + 2 * (e & 3)), T0 + 4 + e, T0 + 3)) if e < 4 else None
    a('v_mov_b32 v%d, 0' % (T0 + 12)); a('v_mov_b32 v%d, 0' % (T0 + 13))
    for e in range(4): a('v_addc_co_u32 v%d, vcc, 0, v%d, %s' % (T0 + 12 + (e & 1), T0 + 12 + (e & 1), sp(MS + 2 * e)))
    for e in range(4, 8): a('v_cmp_gt_u32 %s, v%d, v%d' % (sp(MS + 2 * (e & 3)), T0 + 4 + e, T0 + 3))
    for e in range(4): a('v_addc_co_u32 v%d, vcc, 0, v%d, %s' % (T0 + 12 + (e & 1), T0 + 12 + (e & 1), sp(MS + 2 * e)))
    a('v_add_u32 v%d, v%d, v%d' % (T0 + 12, T0 + 12, T0 + 13))
    a('ds_add_u32 v21, v%d offset:%d' % (T0 + 12, L_RANK))
    a.wait(lg=0); a('s_barrier')
    a('ds_read_b32 v%d, v21 offset:%d' % (T0 + 12, L_RANK))
    a('v_cmp_gt_u32 vcc, 8, v%d' % (T0 + 12)); a('v_cmp_ne_u32 s[64:65], 0, v%d' % (T0 + 3)); a('s_and_b64 vcc, vcc, s[64:65]')
    a('v_lshlrev_b32 v%d, 2, v%d' % (T0 + 12, T0 + 12))
    a('s_mov_b64 exec, vcc')
    a('ds_write_b32 v%d, v%d offset:%d' % (T0 + 12, T0 + 3, L_SEL))
    a('s_mov_b64 exec, -1')
    a.wait(lg=0)
    a('s_branch k1_tk_done')
    a.label('k1_tk_slow')
    a.wait(lg=0)
    for j in range(4): a('v_cmp_ge_u32 %s, v%d, v%d' % (sp(MS + 2 * j), KEY + j, T0))
    a('v_mov_b32 v%d, s63' % (T0 + 1))
    a('s_mov_b64 exec, 1')
    a('ds_add_rtn_u32 v%d, v20, v%d offset:%d' % (T0 + 3, T0 + 1, L_CNT))
    a('s_mov_b64 exec, -1')
    a('v_readfirstlane_b32 s64, v%d' % (T0 + 3))
    for j in range(4):
        a('v_mbcnt_lo_u32_b32 v%d, s%d, 0' % (T0 + 4 + j, MS + 2 * j)); a('v_mbcnt_hi_u32_b32 v%d, s%d, v%d' % (T0 + 4 + j, MS + 1 + 2 * j, T0 + 4 + j))
        if j > 0: a('s_add_u32 s65, s64, s%d' % (60 + j - 1))
        a('v_add_lshl_u32 v%d, v%d, s%d, 2' % (T0 + 4 + j, T0 + 4 + j, 64 if j == 0 else 65))
        a('s_mov_b64 exec, %s' % sp(MS + 2 * j))
        a('ds_write_b32 v%d, v%d offset:%d' % (T0 + 4 + j, KEY + j, L_LIST))
        a('s_mov_b64 exec, -1')
    a.wait(lg=0); a('s_barrier')
    a('ds_read_b32 v%d, v20 offset:%d' % (T0, L_CNT))
    a('v_readfirstlane_b32 s60, v%d' % T0)
    a('s_mov_b32 s61, 0')
    a.label('k1_tk_chunk')
    a('v_add_u32 v%d, s61, v0' % (T0 + 1)); a('v_lshlrev_b32 v%d, 2, v%d' % (T0 + 3, T0 + 1))
    a('ds_read_b32 v%d, v%d offset:%d' % (T0, T0 + 3, L_LIST))
    a('v_mov_b32 v%d, 0' % (T0 + 3)); a('s_mov_b32 s62, 0'); a('v_mov_b32 v%d, 0' % (T0 + 2))
    a.label('k1_tk_scan')
    a('ds_read_b128 %s, v%d offset:%d' % (vq(T0 + 4), T0 + 2, L_LIST))
    a('s_sub_u32 s63, s60, s62')
    for e in range(4):
        a('v_cmp_gt_u32 vcc, v%d, v%d' % (T0 + 4 + e, T0))
        a('s_cmp_gt_u32 s63, %d' % e); a('s_cselect_b64 vcc, vcc, 0')
        a('v_addc_co_u32 v%d, vcc, 0, v%d, vcc' % (T0 + 3, T0 + 3))
    a('v_add_u32 v%d, 16, v%d' % (T0 + 2, T0 + 2))
    a('s_add_u32 s62, s62, 4'); a('s_cmp_lt_u32 s62, s60'); a('s_cbranch_scc1 k1_tk_scan')
    a('v_cmp_gt_u32 vcc, s60, v%d' % (T0 + 1)); a('v_cmp_gt_u32 s[64:65], 8, v%d' % (T0 + 3)); a('s_and_b64 vcc, vcc, s[64:65]')
    a('v_lshlrev_b32 v%d, 2, v%d' % (T0 + 3, T0 + 3))
    a('s_mov_b64 exec, vcc')
    a('ds_write_b32 v%d, v%d offset:%d' % (T0 + 3, T0, L_SEL))
    a('s_mov_b64 exec, -1')
    a('s_add_u32 s61, s61, 512'); a('s_cmp_lt_u32 s61, s60'); a('s_cbranch_scc1 k1_tk_chunk')
    a.wait(lg=0); a('s_barrier')
    a.label('k1_tk_done')
    stamp(11)
    a('v_and_b32 v4, 7, v1'); a('v_lshlrev_b32 v5, 2, v4')
    a('ds_read_b32 v7, v5 offset:%d' % L_SEL)
    a('v_lshrrev_b32 v6, 4, v1')
    a('v_and_b32 v8, 0x7ff, v7'); a('v_sub_u32 v8, 2047, v8'); a('v_lshlrev_b32 v8, 10, v8')
    a('v_cmp_eq_u32 vcc, s14, v7'); a('s_and_b32 s60, vcc_lo, 0xff')
    srd(48, OUT, 2 * MiB)
    def own_row_store(tag):
        a('s_cmp_lg_u32 s60, 0'); a('s_cbranch_scc1 k1_sel_%s' % tag)
        a('buffer_store_dwordx4 %s, v2, s[48:51], s13 offen' % vq(OUTR))
        a('s_branch k1_own_%s' % tag)
        a.label('k1_sel_%s' % tag)
        a('s_ff1_i32_b32 s61, s60'); a('s_lshl_b32 s61, s61, 10'); a('s_add_u32 s61, s61, %d' % (WS_SM + SM_X1))
        a('buffer_store_dwordx4 %s, v2, s[56:59], s61 offen sc1' % vq(X1P))
        a.label('k1_own_%s' % tag)
    a('s_cmp_ge_u32 s5, 28'); a('s_cbranch_scc1 k1_ffn2')
    st1 = a.save()
    a('v_lshl_add_u32 v9, v6, 4, v8')
    a('s_lshl_b32 s64, s7, 7'); a('s_add_u32 s11, s64, %d' % WS_H2)
    a('v_and_b32 v20, 3, v1'); a('v_bfe_u32 v21, v1, 2, 2')
    a('v_lshlrev_b32 v22, 7, v6'); a('v_lshl_add_u32 v22, v21, 4, v22')
    a('v_and_b32 v23, 1, v20'); a('v_lshl_add_u32 v22, v23, 3, v22')
    a('v_lshrrev_b32 v23, 1, v20'); a('v_mul_u32_u24 v23, %d, v23' % L_GU); a('v_add_u32 v22, v22, v23')
    a('s_lshl_b32 s64, s7, 10'); a('s_add_u32 s64, s64, %d' % L_W); a('v_add_u32 v22, s64, v22')
    for i in range(2):
        for hh in range(2): a('ds_read_b64_tr_b16 %s, v22 offset:%d' % (vp(24 + 4 * i + 2 * hh), 512 * i + 64 * hh))
    poll(['buffer_load_dwordx4 v[12:15], v9, s[56:59], s11 offen sc1', 'buffer_load_dwordx4 v[16:19], v9, s[56:59], s11 offen offset:64 sc1'],
         list(range(12, 20)), 36, exec_mask=0x00ff00ff)
    stamp(12)
    a('v_mfma_f32_16x16x32_bf16 v[32:35], v[24:27], v[12:15], 0')
    a('v_mfma_f32_16x16x32_bf16 v[32:35], v[28:31], v[16:19], v[32:35]')
    a('v_lshlrev_b32 v36, 4, v0')
    own_row_store('a')
    a.nop(4)
    a('ds_write_b128 v36, v[32:35] offset:%d' % L_P)
    a.wait(lg=0); a('s_barrier')
    a('s_cmp_lg_u32 s7, 0'); a('s_cbranch_scc1 k1_end')
    for w in range(8): a('ds_read_b128 %s, v36 offset:%d' % (vq(40 + 4 * w), L_P + 1024 * w))
    a('s_mov_b32 s64, 0x%x' % (LOG2E | 0x80000000))
    a('s_mul_i32 s65, s4, 28'); a('s_add_u32 s65, s65, s5'); a('s_lshl_b32 s65, s65, 7'); a('s_add_u32 s65, s65, %d' % (WS_SM + SM_ACT))
    a('v_and_b32 v73, 15, v1'); a('v_lshlrev_b32 v74, 4, v73'); a('v_lshl_add_u32 v72, v6, 3, v74')
    a('v_cmp_gt_u32 s[62:63], 8, v73')
    for st in (16, 8, 4):
        for i in range(0, st, 2): pk('add', 40 + i, 40 + i, vp(40 + i + st))
    for i in range(4): rb(40 + i, 40 + i)
    for i in range(4): a('v_mov_b32 v%d, v%d' % (44 + i, 40 + i))
    silu_like(52, 40, 4, 64)
    for i in range(4): a('v_permlane32_swap_b32 v%d, v%d' % (44 + i, 48 + i))
    for i in range(4): a('v_mul_f32 v%d, v%d, v%d' % (52 + i, 52 + i, 48 + i))
    a('v_cvt_pk_bf16_f32 v56, v52, v53'); a('v_cvt_pk_bf16_f32 v57, v54, v55')
    a('v_min_u32 v56, -2, v56'); a('v_min_u32 v57, -2, v57')
    a('s_mov_b32 exec_lo, s62'); a('s_mov_b32 exec_hi, 0')
    a('buffer_store_dwordx2 v[56:57], v72, s[56:59], s65 offen sc1')
    a('s_branch k1_end')
    a.label('k1_ffn2'); a.load(st1)
    own_row_store('b')
    a('s_lshl_b32 s8, s4, 2'); a('s_add_u32 s8, s8, s5'); a('s_sub_u32 s8, s8, 28')
    a('s_lshl_b32 s9, s8, 5')
    a('v_and_b32 v20, 3, v1'); a('v_bfe_u32 v21, v1, 2, 2')
    a('v_lshrrev_b32 v22, 1, v6'); a('v_lshlrev_b32 v22, 9, v22'); a('v_and_b32 v23, 1, v6'); a('v_lshl_add_u32 v22, v23, 7, v22')
    a('v_lshl_add_u32 v22, v21, 5, v22'); a('v_lshl_add_u32 v22, v20, 3, v22')
    a('s_mul_i32 s64, s7, 7168'); a('s_add_u32 s64, s64, %d' % L_W); a('v_add_u32 v22, s64, v22')
    for i in range(7):
        for hh in range(2): a('ds_read_b64_tr_b16 %s, v22 offset:%d' % (vp(64 + 4 * i + 2 * hh), 1024 * i + 256 * hh))
    a('v_lshlrev_b32 v9, 7, v6'); a('v_lshl_add_u32 v9, v4, 4, v9')
    a('s_mul_i32 s11, s7, 3584'); a('s_add_u32 s11, s11, %d' % (WS_SM + SM_ACT))
    a('v_lshl_add_u32 v8, v6, 3, v8')
    a('s_cmp_lg_u32 s7, 0'); a('s_cbranch_scc1 k1_f2_act')
    st2 = a.save()
    a('v_lshlrev_b32 v10, 10, v4'); a('v_lshl_add_u32 v10, v6, 3, v10')
    a('s_add_u32 s61, s9, %d' % WS_H2); a('s_add_u32 s62, s9, %d' % (WS_SM + SM_X1))
    a('v_lshlrev_b32 v11, 4, v6'); a('s_lshl_b32 s64, s8, 6'); a('v_add_u32 v11, s64, v11')
    a('ds_read_b128 v[16:19], v11 offset:%d' % (L_MOD + 3 * 2048))
    a('v_and_b32 v30, s3, v7'); a('v_ashrrev_i32 v31, 31, v30'); a('v_not_b32 v31, v31'); a('v_or_b32 v31, 0x80000000, v31'); a('v_xor_b32 v30, v30, v31'); a('v_and_b32 v30, s3, v30')
    a('s_mov_b32 s64, 0x%x' % (LOG2E | 0x80000000))
    silu_like(31, 30, 1, 64, mulx=False)
    poll(['buffer_load_dwordx2 v[12:13], v8, s[56:59], s61 offen sc1', 'buffer_load_dwordx2 v[14:15], v10, s[56:59], s62 offen sc1'], [12, 13, 14, 15], 29)
    unpack(112, 12, 4)
    a.label('k1_f2_act')
    a.wait(vm=0, lg=0)
    poll(['buffer_load_dwordx4 %s, v9, s[56:59], s11 offen offset:%d sc1' % (vq(32 + 4 * i), 512 * i) for i in range(7)], list(range(32, 60)), 29, exec_mask=0x00ff00ff)
    stamp(12)
    for i in range(7):
        a('v_mfma_f32_16x16x32_bf16 v[24:27], %s, %s, %s' % (vq(64 + 4 * i), vq(32 + 4 * i), '0' if i == 0 else 'v[24:27]'))
    a('v_lshlrev_b32 v28, 4, v0')
    a('ds_write_b128 v28, v[24:27] offset:%d' % L_P)
    a.wait(lg=0); a('s_barrier')
    a('s_cmp_lg_u32 s7, 0'); a('s_cbranch_scc1 k1_end')
    for w in range(8): a('ds_read_b128 %s, v28 offset:%d' % (vq(40 + 4 * w), L_P + 1024 * w))
    a('v_and_b32 v76, 15, v1'); a('v_cmp_gt_u32 s[62:63], 8, v76')
    for st in (16, 8, 4):
        for i in range(0, st, 2): pk('add', 40 + i, 40 + i, vp(40 + i + st))
    for i in range(4): rb(40 + i, 40 + i)
    for i in range(4): a('v_mul_f32 v%d, v%d, v31' % (40 + i, 40 + i))
    for i in range(4): rb(40 + i, 40 + i)
    for i in (0, 2): pk('add', 40 + i, 40 + i, vp(112 + i))
    for i in range(4): rb(40 + i, 40 + i)
    for i in (0, 2): pk('mul', 40 + i, 40 + i, vp(16 + i))
    for i in range(4): rb(40 + i, 40 + i)
    for i in (0, 2): pk('add', 40 + i, 40 + i, vp(116 + i))
    a('v_cvt_pk_bf16_f32 v44, v40, v41'); a('v_cvt_pk_bf16_f32 v45, v42, v43')
    a('s_mov_b64 exec, s[62:63]')
    a('buffer_store_dwordx2 v[44:45], v8, s[48:51], s9 offen')
    kend('k1', 1, WS)
    a.label('k1_code_end')

KERNELS = [('k0_kernel', (256 + NMOD, 256, 1024), gen_k0), ('k1_kernel', (256, 512, K1_LDS), gen_k1)]

def main(outpath):
    hdr = open('cdna_kernels/%s.s.ref' % NAME).read().split('\n')
    head = [l for l in hdr if l.startswith(';') and '@launch' not in l and 'Override launch' not in l and 'grid=ceil' not in l]
    out = list(head)
    for n, (g, b, l), _ in KERNELS:
        out.append('; @launch kernel=%s grid=(%d,1,1) block=(%d,1,1) lds=%d' % (n, g, b, l))
    out.append('.amdgcn_target "amdgcn-amd-amdhsa--gfx950"'); out.append('.text')
    vmax = {}
    for n, _, g in KERNELS:
        st = len(a.lines); g()
        body = '\n'.join(a.lines[st:])
        m = max([int(x) for x in re.findall(r'\bv(\d+)\b', body)] + [int(x) for x in re.findall(r'\bv\[\d+:(\d+)\]', body)])
        vmax[n] = (m + 1 + 7) // 8 * 8
        print(n, 'vgprs', m + 1)
    txt = a.text()
    lines_file = 'k1_lines.txt'
    nl = int(os.environ.get('K1LINES', '100'))
    txt = txt.replace('K1_CODE_LINES', str(nl))
    out.append(txt)
    out.append('.section .rodata,"a"')
    for n, _, _ in KERNELS:
        vg = vmax[n]
        out.append('.p2align 6')
        out.append('.amdhsa_kernel %s' % n)
        out.append('  .amdhsa_next_free_vgpr %d' % vg); out.append('  .amdhsa_next_free_sgpr 102'); out.append('  .amdhsa_accum_offset %d' % vg)
        out.append('  .amdhsa_group_segment_fixed_size 0'); out.append('  .amdhsa_kernarg_size 128')
        out.append('  .amdhsa_user_sgpr_count 2'); out.append('  .amdhsa_user_sgpr_kernarg_segment_ptr 1'); out.append('  .amdhsa_system_sgpr_workgroup_id_x 1')
        out.append('  .amdhsa_float_denorm_mode_32 3')
        out.append('.end_amdhsa_kernel')
    open(outpath, 'w').write('\n'.join(out) + '\n')
    print('wrote', outpath, 'nops inserted', a.nops_inserted, 'K1 LDS', K1_LDS)

if __name__ == '__main__':
    main(sys.argv[1] if len(sys.argv) > 1 else 'cdna_kernels/%s.s' % NAME)
```

```python
import sys, os, re
from asmlib import Asm

NAME = 'adaLN_cond__ssm_conv_h3__moe_arch_mod__prompt'
KN = NAME + '_kernel'
MiB = 1 << 20
WS_U = 0
WS_Z = 4 * MiB
WS_H2 = 6 * MiB
WS_SM = 8 * MiB
SM_MOD = 0
SM_KEY = 32768
SM_ACT = 65536
SM_X1 = 98304
WS_SIZE = 9 * MiB
WS_STAMP = 14 * MiB
STAMP = int(os.environ.get('STAMP', '0'))
SPIN_LIMIT = 1 << 16
WSCHED = os.environ.get('WSCHED', 'A')
NT = ' nt' if int(os.environ.get('NT', '0')) else ''
NTW = ' nt' if int(os.environ.get('NTW', '0')) else ''
WSOFF = int(os.environ.get('WSOFF', '0')) * MiB
OWNER = int(os.environ.get('OWNER', '1'))
LOG2E = 0x3fb8aa3b
a = Asm()
SST = 70
def stamp(i):
    if STAMP: a('s_memrealtime s[%d:%d]' % (SST + 2 * i, SST + 1 + 2 * i))
def srd(s, ptr, size, add=0):
    if add:
        a('s_add_u32 s%d, s%d, 0x%x' % (s, ptr, add)); a('s_addc_u32 s%d, s%d, 0' % (s + 1, ptr + 1))
    else:
        a('s_mov_b32 s%d, s%d' % (s, ptr)); a('s_mov_b32 s%d, s%d' % (s + 1, ptr + 1))
    a('s_mov_b32 s%d, 0x%x' % (s + 2, size)); a('s_mov_b32 s%d, 0x00020000' % (s + 3))
MASK = 3
def lo(d, s): a('v_lshlrev_b32 v%d, 16, v%d' % (d, s))
def hi(d, s): a('v_and_b32 v%d, s%d, v%d' % (d, MASK, s))
def rb(d, s): a('v_cvt_pk_bf16_f32 v%d, 0, v%d' % (d, s))
def pk(op, d, x, y, extra=''): a('v_pk_%s_f32 v[%d:%d], v[%d:%d], %s %s' % (op, d, d + 1, x, x + 1, y, extra))
def vp(r): return 'v[%d:%d]' % (r, r + 1)
def vq(r): return 'v[%d:%d]' % (r, r + 3)
def sp(r): return 's[%d:%d]' % (r, r + 1)
def sq(r): return 's[%d:%d]' % (r, r + 3)
def unpack(d, s, n):
    for i in range(n): lo(d + 2 * i, s + i); hi(d + 2 * i + 1, s + i)
DPPS = ('row_shr:1 row_mask:0xf bank_mask:0xf', 'row_shr:2 row_mask:0xf bank_mask:0xf', 'row_shr:4 row_mask:0xf bank_mask:0xf',
        'row_shr:8 row_mask:0xf bank_mask:0xf', 'row_bcast:15 row_mask:0xa bank_mask:0xf', 'row_bcast:31 row_mask:0xc bank_mask:0xf')
def wave_reduce(op, regs):
    for ctl in DPPS:
        for r in regs: a('%s_dpp v%d, v%d, v%d %s' % (op, r, r, r, ctl))
def silu_like(D, X, n, sneg, mulx=True):
    for i in range(n): a('v_mul_f32 v%d, s%d, v%d' % (D + i, sneg, X + i))
    for i in range(n): a('v_exp_f32 v%d, v%d' % (D + i, D + i))
    for i in range(n): a('v_add_f32 v%d, 1.0, v%d' % (D + i, D + i))
    for i in range(n): a('v_rcp_f32 v%d, v%d' % (D + i, D + i))
    if mulx:
        for i in range(n): a('v_mul_f32 v%d, v%d, v%d' % (D + i, D + i, X + i))
    for i in range(n): rb(D + i, D + i)
def barrier(): a('s_barrier')

L_WM = 0; L_KEYL = 32; L_SEL = 64; L_RANK = 128; L_SEG = 384; L_CNT = 640; L_FLAG = 644; L_FILL = 648; L_MC = 652; L_UGO = 656; L_EP = 664
L_WR = 1024; L_NB = 2048; L_XB = L_NB + 8192; L_MOD = L_XB + 8192; L_Y = L_MOD + 6144 + 2048
L_LIST = L_Y; L_P = L_Y + 8192; L_MP = L_Y + 16384
L_IMG = L_Y + 32768
L_U1 = 0; L_U0 = 4576; L_KA = 9216; L_KB = 13440; L_CB = 17664
assert L_IMG % 256 == 0
L_ZT = L_IMG + L_KA; ZP = 1040
L_W = L_IMG + 2 * L_CB; L_GU = 8256
LDS_SIZE = L_W + 57344
Q, KP, VP_, SHK, SSMK, SSMD, WRP = 16, 18, 20, 22, 24, 26, 30
WG_, WU_, WD_, CP, WMOD, OUT, DBG, WS = 32, 34, 36, 38, 40, 42, 44, 46
T0S, T1S = 14, 15

def ln_stats(X, T, sC, sMB, sRI, vS):
    a('v_readfirstlane_b32 s%d, v%d' % (sC, X))
    for i in range(0, 8, 2): pk('add', T + i, X + i, sp(sC), 'op_sel_hi:[1,0] neg_lo:[0,1] neg_hi:[0,1]')
    pk('add', vS, T, vp(T + 2)); pk('mul', vS + 2, T, vp(T))
    pk('add', T, T + 4, vp(T + 6))
    a('v_pk_fma_f32 %s, %s, %s, %s' % (vp(vS + 2), vp(T + 2), vp(T + 2), vp(vS + 2)))
    pk('mul', T + 2, T + 4, vp(T + 4))
    pk('add', vS, vS, vp(T))
    a('v_pk_fma_f32 %s, %s, %s, %s' % (vp(T + 2), vp(T + 6), vp(T + 6), vp(T + 2)))
    a('v_add_f32 v%d, v%d, v%d' % (vS, vS, vS + 1))
    pk('add', vS + 2, vS + 2, vp(T + 2))
    a('v_add_f32 v%d, v%d, v%d' % (vS + 1, vS + 2, vS + 3))
    wave_reduce('v_add_f32', [vS, vS + 1])
    a('v_mul_f32 v%d, 0x3b000000, v%d' % (vS, vS)); a('v_mul_f32 v%d, 0x3b000000, v%d' % (vS + 1, vS + 1))
    a('v_fma_f32 v%d, -v%d, v%d, v%d' % (vS + 1, vS, vS, vS + 1))
    a('v_add_f32 v%d, s%d, v%d' % (vS, sC, vS))
    a('v_max_f32 v%d, 0, v%d' % (vS + 1, vS + 1))
    rb(vS, vS); rb(vS + 1, vS + 1)
    a('v_readlane_b32 s%d, v%d, 63' % (sMB, vS))
    a('v_add_f32 v%d, 0x3727c5ac, v%d' % (vS + 1, vS + 1)); rb(vS + 1, vS + 1)
    a('v_sqrt_f32 v%d, v%d' % (vS + 1, vS + 1)); rb(vS + 1, vS + 1)
    a('v_rcp_f32 v%d, v%d' % (vS + 1, vS + 1))
    return lambda: a('v_readlane_b32 s%d, v%d, 63' % (sRI, vS + 1))
def ln_norm(D, X, sMB, sRI, fin):
    for i in range(0, 8, 2): pk('add', D + i, X + i, sp(sMB), 'op_sel_hi:[1,0] neg_lo:[0,1] neg_hi:[0,1]')
    for i in range(8): rb(D + i, D + i)
    fin()
    for i in range(0, 8, 2): pk('mul', D + i, D + i, sp(sRI), 'op_sel_hi:[1,0]')
def affine(D, C1, SH):
    for i in range(0, 8, 2): pk('mul', D + i, D + i, vp(C1 + i))
    for i in range(8): rb(D + i, D + i)
    for i in range(0, 8, 2): pk('add', D + i, D + i, vp(SH + i))
    for i in range(8): rb(D + i, D + i)

_pl = [0]
def poll(loads, bad, exec_mask=None):
    n = _pl[0]; _pl[0] += 1
    a('s_mov_b32 s64, 0')
    if exec_mask is not None:
        a('s_mov_b32 exec_lo, 0x%x' % exec_mask); a('s_mov_b32 exec_hi, 0x%x' % exec_mask)
    a.label('poll%d' % n)
    for l in loads: a(l)
    a.wait(vm=0)
    bad()
    a('s_add_u32 s64, s64, 1')
    a('s_and_b64 exec, exec, vcc')
    a('s_cbranch_execz poll%d_done' % n)
    a('s_cmp_lt_u32 s64, %d' % SPIN_LIMIT); a('s_cbranch_scc1 poll%d' % n)
    a.label('poll%d_done' % n)
    a('s_mov_b64 exec, -1')
def bad_sent(regs, tmp):
    def f():
        rs = list(regs); first = True
        while rs:
            if first:
                x = rs[:3]; rs = rs[3:]; first = False
                a('v_max3_u32 v%d, v%d, v%d, v%d' % (tmp, x[0], x[1], x[2]))
            elif len(rs) >= 2:
                a('v_max3_u32 v%d, v%d, v%d, v%d' % (tmp, tmp, rs[0], rs[1])); rs = rs[2:]
            else:
                a('v_max_u32 v%d, v%d, v%d' % (tmp, tmp, rs[0])); rs = rs[1:]
        a('v_cmp_eq_u32 vcc, -1, v%d' % tmp)
    return f

EPR = 28
def epoch_issue(vaddr0, vdst):
    a('buffer_load_dwordx2 %s, v%d, %s, 0 offen sc1' % (vp(vdst), vaddr0, sq(EPR)))
_ep = [0]
def epoch_finish(vaddr0, vdst):
    n = _ep[0]; _ep[0] += 1
    a('s_mov_b32 s64, 0')
    a.label('ep%d' % n)
    a.wait(vm=0)
    a('v_readfirstlane_b32 s%d, v%d' % (T1S, vdst + 1)); a('v_readfirstlane_b32 s%d, v%d' % (T0S, vdst))
    a('s_add_u32 s64, s64, 1')
    a('s_cmp_lg_u32 s%d, 0' % T1S); a('s_cbranch_scc1 ep%d_done' % n)
    a('s_cmp_ge_u32 s64, %d' % SPIN_LIMIT); a('s_cbranch_scc1 ep%d_done' % n)
    epoch_issue(vaddr0, vdst)
    a('s_branch ep%d' % n)
    a.label('ep%d_done' % n)

def ln1_own_row(qreg, X, T, S, vrow):
    unpack(X, qreg, 4)
    a('ds_write_b128 v%d, %s offset:%d' % (vrow, vq(qreg), L_XB))
    fin = ln_stats(X, T, 60 + 6, 62 + 6, 64 + 0, S) if False else ln_stats(X, T, 48, 50, 52, S)
    ln_norm(T, X, 50, 52, fin)
    for i in range(4): a('v_cvt_pk_bf16_f32 v%d, v%d, v%d' % (X + i, T + 2 * i, T + 2 * i + 1))
    a('ds_write_b128 v%d, %s offset:%d' % (vrow, vq(X), L_NB))

def u_poll_build(G, R=56):
    a('v_lshlrev_b32 v%d, 4, v0' % (G + 8))
    a('s_lshl_b32 s8, s6, 14'); a('s_add_u32 s9, s8, 8192')
    a('v_lshlrev_b32 v%d, 3, v0' % (G + 9)); a('v_add_u32 v%d, %d, v%d' % (G + 9, L_IMG, G + 9))
    def bad():
        for g in (0, 4):
            a('v_xor_b32 v%d, s%d, v%d' % (G + 10 + g // 4 * 2, T0S, G + g + 3)); a('v_xor_b32 v%d, s%d, v%d' % (G + 11 + g // 4 * 2, T1S, G + g + 2))
        a('v_or_b32 v%d, v%d, v%d' % (G + 11, G + 11, G + 13)); a('v_or_b32 v%d, v%d, v%d' % (G + 10, G + 10, G + 12))
        a('v_and_or_b32 v%d, v%d, s3, v%d' % (G + 10, G + 11, G + 10))
        a('v_cmp_ne_u32 vcc, 0, v%d' % (G + 10))
    poll(['buffer_load_dwordx4 %s, v%d, %s, s8 offen sc1' % (vq(G), G + 8, sq(R)), 'buffer_load_dwordx4 %s, v%d, %s, s9 offen sc1' % (vq(G + 4), G + 8, sq(R))], bad)
    for ch in range(2):
        g = G + 4 * ch
        a('ds_write_b64 v%d, %s offset:%d' % (G + 9, vp(g), L_U1 + L_CB * ch))
        a('v_alignbit_b32 v%d, v%d, v%d, 16' % (G + 10 + 2 * ch, g + 1, g)); a('v_alignbit_b32 v%d, v%d, v%d, 16' % (G + 11 + 2 * ch, g + 2, g + 1))
        a('ds_write_b64 v%d, %s offset:%d' % (G + 9, vp(G + 10 + 2 * ch), L_U0 + L_CB * ch))

def gen():
    a.raw('.p2align 8'); a.raw('.globl %s' % KN); a.raw('.type %s,@function' % KN); a.label(KN); a.reset()
    a('s_cmp_ge_u32 s2, 256'); a('s_cbranch_scc1 k_exit')
    a('s_load_dwordx16 s[16:31], s[0:1], 0')
    if STAMP:
        for i in range(16): a('s_mov_b32 s%d, 0' % (SST + 2 * i))
    stamp(0)
    a('s_mov_b32 s3, 0xffff0000')
    a('s_and_b32 s4, s2, 7'); a('s_lshr_b32 s5, s2, 3')
    a('s_lshl_b32 s6, s4, 5'); a('s_add_u32 s6, s6, s5')
    a('v_lshrrev_b32 v1, 6, v0'); a.nop(1); a('v_readfirstlane_b32 s7, v1')
    a('v_and_b32 v1, 63, v0'); a('v_lshlrev_b32 v2, 4, v1')
    a('s_lshl_b32 s12, s6, 3'); a('s_add_u32 s12, s12, s7')
    a('s_lshl_b32 s13, s12, 10')
    a('s_cmp_ge_u32 s7, 4'); a('s_cbranch_scc1 k_notkv')
    st0 = a.save()
    a('v_and_b32 v3, 15, v0'); a('v_lshrrev_b32 v4, 4, v0')
    a('s_lshl_b32 s8, s5, 6'); a('v_lshl_add_u32 v3, v3, 2, s8')
    a('s_lshl_b32 s8, s4, 7'); a('v_lshl_add_u32 v4, v4, 3, s8')
    a('v_lshl_add_u32 v5, v3, 10, v4')
    a('v_subrev_u32 v6, 4096, v5')
    a('v_cmp_ne_u32 s[8:9], 0, v3')
    a('v_lshlrev_b32 v7, 2, v4')
    KR = 10; VR = 26; WR = 36
    for i in range(8): a('v_mov_b32 v%d, 0' % (KR + i))
    a('v_mov_b32 v%d, 0' % VR); a('v_mov_b32 v%d, 0' % (VR + 1))
    a.wait(lg=0)
    for i in range(4): a('global_load_dwordx2 %s, v5, %s offset:%d' % (vp(KR + 8 + 2 * i), sp(KP), 1024 * i) + NT)
    for i in range(4): a('global_load_dwordx2 %s, v5, %s offset:%d' % (vp(VR + 2 + 2 * i), sp(VP_), 1024 * i) + NT)
    a('global_load_dwordx4 %s, v7, %s' % (vq(WR), sp(SHK))); a('global_load_dwordx4 %s, v7, %s offset:16' % (vq(WR + 4), sp(SHK)))
    a('s_mov_b64 exec, s[8:9]')
    for i in range(4): a('global_load_dwordx2 %s, v6, %s offset:%d' % (vp(KR + 2 * i), sp(KP), 1024 * i) + NT)
    a('global_load_dwordx2 %s, v6, %s offset:3072' % (vp(VR), sp(VP_)) + NT)
    a('s_mov_b64 exec, -1')
    stamp(1)
    a('s_load_dwordx16 s[32:47], s[0:1], 64')
    a('s_lshl_b32 s64, s6, 2'); a('s_load_dword s69, %s, s64' % sp(SSMD))
    srd(56, WS, WS_SIZE, WSOFF)
    a('v_lshlrev_b32 v8, 12, v4'); a('v_lshlrev_b32 v9, 2, v3'); a('v_sub_u32 v8, v8, v9'); a('v_add_u32 v8, 8176, v8')
    a('v_mov_b32 v9, 0')
    a.wait(vm=0); stamp(2); barrier()
    a('ds_read_b64 v[136:137], v9 offset:%d' % L_EP)
    W = 44
    for c in range(4):
        lo(W + 0 + c, WR + 2 * c); hi(W + 4 + c, WR + 2 * c); lo(W + 8 + c, WR + 2 * c + 1); hi(W + 12 + c, WR + 2 * c + 1)
    KF = 60
    unpack(KF, KR, 16)
    S = 92; P = 112
    for i in range(5):
        for h in (0, 2): pk('mul', S + 4 * i + h, KF + 4 * i + h, vp(W + 12 + h))
    for r in range(20): rb(S + r, S + r)
    for t in (1, 2, 3):
        for i in range(5):
            for h in (0, 2): pk('mul', P + 4 * i + h, KF + 4 * (i + t) + h, vp(W + 4 * (3 - t) + h))
        for r in range(20): rb(P + r, P + r)
        for r in range(0, 20, 2): pk('add', S + r, S + r, vp(P + r))
        for r in range(20): rb(S + r, S + r)
    unpack(P, VR, 10)
    for r in range(0, 20, 2): pk('mul', S + r, S + r, vp(P + r))
    O = 60
    for c in range(4):
        a('v_cvt_pk_bf16_f32 v%d, v%d, v%d' % (O + 4 * c, S + 16 + c, S + 12 + c))
        a('v_cvt_pk_bf16_f32 v%d, v%d, v%d' % (O + 4 * c + 1, S + 8 + c, S + 4 + c))
        a('v_cvt_pk_bf16_f32 v%d, v%d, 0' % (O + 4 * c + 2, S + c))
    for c in range(4): a('s_mov_b32 s%d, %d' % (8 + c, c * 8192))
    a('v_readfirstlane_b32 s%d, v136' % T0S); a('v_readfirstlane_b32 s%d, v137' % T1S)
    for c in range(4):
        a('v_or_b32 v%d, s%d, v%d' % (O + 4 * c + 2, T1S, O + 4 * c + 2)); a('v_mov_b32 v%d, s%d' % (O + 4 * c + 3, T0S))
    for c in range(4): a('buffer_store_dwordx4 %s, v8, s[56:59], s%d offen sc1' % (vq(O + 4 * c), 8 + c))
    stamp(3)
    a('s_and_b32 s8, s7, 1'); a('s_lshr_b32 s9, s7, 1')
    a('s_mul_i32 s10, s8, %d' % L_CB); a('s_add_u32 s10, s10, %d' % L_IMG)
    a('s_mul_i32 s11, s9, %d' % L_U0); a('s_add_u32 s11, s11, s10')
    for i in range(4): a('v_mov_b32 v%d, 0' % (4 + i))
    a('v_add_u32 v3, s11, v2')
    a('s_mov_b32 exec_lo, 0x0fffffff'); a('s_mov_b32 exec_hi, 0')
    a('ds_write_b128 v3, v[4:7] offset:4096')
    a('s_mov_b64 exec, -1')
    a('v_and_b32 v10, 15, v1'); a('v_lshrrev_b32 v11, 4, v1'); a('v_lshrrev_b32 v12, 1, v10'); a('v_and_b32 v13, 1, v10')
    a('v_lshlrev_b32 v3, 6, v12'); a('v_lshl_add_u32 v3, v11, 4, v3')
    a('v_mul_u32_u24 v4, %d, v13' % (L_U0 - L_U1)); a('v_add_u32 v3, v3, v4')
    a('s_lshl_b32 s64, s9, 8'); a('s_sub_u32 s65, s10, s64'); a('s_add_u32 s65, s65, %d' % (L_U0 + 283 * 16 - 64 * 59))
    a('v_sub_u32 v3, s65, v3')
    a('v_lshlrev_b32 v4, 3, v12'); a('v_lshlrev_b32 v5, 4, v11'); a('v_sub_u32 v4, v4, v5')
    a('v_mul_u32_u24 v5, %d, v13' % (L_KB + 62 * 8 - L_KA - 63 * 8)); a('v_sub_u32 v4, v4, v5')
    a('s_sub_u32 s65, s10, s64'); a('s_add_u32 s65, s65, %d' % (L_KB + 62 * 8 - 192))
    a('v_add_u32 v4, s65, v4')
    a('v_lshlrev_b32 v5, 8, v11'); a('v_lshl_add_u32 v5, v10, 3, v5')
    a('s_lshl_b32 s64, s8, 1'); a('s_add_u32 s64, s64, s9'); a('s_lshl_b32 s64, s64, 13'); a('s_add_u32 s64, s64, %d' % L_Y)
    a('v_add_u32 v5, s64, v5')
    a('v_mov_b32 v10, 1')
    a.wait(vm=0); stamp(4)
    a('s_mov_b64 exec, 1'); a('ds_add_u32 v9, v10 offset:%d' % L_UGO); a('s_mov_b64 exec, -1')
    u_poll_build(40)
    stamp(5)
    a.wait(lg=0); barrier(); stamp(6)
    if STAMP: a.wait(lg=0)
    ACC = 8; F0 = 40
    def Areg(buf, al): return F0 + buf * 64 + al * 4
    def Breg(buf, be): return F0 + buf * 64 + 32 + be * 4
    def loadA(buf, rp, al): a('ds_read_b128 %s, v3 offset:%d' % (vq(Areg(buf, al)), 64 * (59 - (rp + 8 * al))))
    def loadB(buf, rp, be):
        o = 64 * (8 * be + 3 - rp)
        a('ds_read_b64 %s, v4 offset:%d' % (vp(Breg(buf, be)), o)); a('ds_read_b64 %s, v4 offset:%d' % (vp(Breg(buf, be) + 2), o + 8))
    pairs = []
    for m in range(8):
        for o in range(m + 1):
            for (al, be) in ((m, o), (o, m)) if o != m else ((m, m),):
                if al + be <= 7: pairs.append((al, be))
    loads = []
    for m in range(8): loads.append(('A', m)); loads.append(('B', m))
    def do_load(buf, rp, it): (loadA if it[0] == 'A' else loadB)(buf, rp, it[1])
    def ywrite(tt):
        a('ds_write_b64 v5, %s offset:%d' % (vp(ACC + 4 * tt), 1024 * tt)); a('ds_write_b64 v5, %s offset:%d' % (vp(ACC + 4 * tt + 2), 1024 * tt + 128))
    for it in loads: do_load(0, 0, it)
    first = set()
    for rp in range(4):
        buf = rp & 1
        nxt = list(loads) if rp < 3 else []
        order = pairs if rp < 3 else sorted(pairs, key=lambda x: (x[0] + x[1]))
        lastof = {tt: max(i for i, (x, y) in enumerate(order) if x + y == tt) for tt in range(8)}
        for n, (al, be) in enumerate(order):
            t = al + be
            c = '0' if t not in first else vq(ACC + 4 * t)
            first.add(t)
            a('v_mfma_f32_16x16x32_bf16 %s, %s, %s, %s' % (vq(ACC + 4 * t), vq(Areg(buf, al)), vq(Breg(buf, be)), c))
            if nxt and n % 2 == 1: do_load(buf ^ 1, rp + 1, nxt.pop(0))
            if rp == 3:
                for tt in range(8):
                    if n == lastof[tt] + 8: ywrite(tt)
        if rp == 3:
            for tt in range(8):
                if lastof[tt] + 8 > 35: ywrite(tt)
    stamp(7)
    a('s_branch k_epi')
    a.label('k_notkv'); a.load(st0)
    a('s_load_dwordx16 s[32:47], s[0:1], 64')
    a('s_cmp_eq_u32 s7, 8'); a('s_cbranch_scc1 k_loader')
    st0b = a.save()
    a('v_and_b32 v10, 255, v0')
    a('s_and_b32 s8, s7, 1'); a('s_lshr_b32 s9, s7, 1'); a('s_sub_u32 s9, s9, 2')
    a('s_mul_i32 s10, s8, %d' % L_CB); a('s_add_u32 s10, s10, %d' % (L_IMG + L_KA))
    a('s_mul_i32 s11, s9, %d' % (L_KB - L_KA)); a('s_add_u32 s10, s10, s11')
    a('s_lshl_b32 s11, s6, 1'); a('s_add_u32 s11, s11, s8'); a('s_lshl_b32 s11, s11, 12')
    a('v_and_b32 v14, 1, v10'); a('v_lshrrev_b32 v11, 1, v10')
    a('s_mov_b32 s64, %d' % (4 * 6144)); a('v_mul_lo_u32 v12, v11, s64'); a('v_lshl_add_u32 v12, v14, 4, v12')
    a('v_lshlrev_b32 v11, 3, v11')
    a('v_lshrrev_b32 v15, 4, v10'); a('v_lshlrev_b32 v15, 6, v15'); a('v_lshl_add_u32 v15, v14, 5, v15')
    a('s_mul_i32 s68, s4, 24'); a('s_add_u32 s68, s68, s5')
    a('s_lshl_b32 s60, s68, 5')
    for i in range(1, 4): a('s_add_u32 s%d, s60, %d' % (60 + i, 6144 * i))
    for i in range(4): a('v_mov_b32 v%d, 0' % (4 + i))
    srd(48, CP, 1024)
    a('buffer_load_dwordx2 v[18:19], v11, s[48:51], 0 offen')
    a('s_lshl_b32 s64, s6, 2'); a('s_load_dword s69, %s, s64' % sp(SSMD))
    srd(52, SSMK, 2 * MiB); srd(56, WMOD, 3 * MiB); srd(48, WS, WS_SIZE, WSOFF)
    a('s_add_u32 s66, s10, 64'); a('s_mov_b32 m0, s66')
    a('s_lshl_b32 s66, s9, 2'); a('s_add_u32 s66, s66, s11')
    C = 20; E = 24; WM_ = 80
    stamp(1)
    a('s_cmp_lg_u32 s7, 4'); a('s_cbranch_scc1 k_h_noep')
    a('s_mov_b64 s[8:9], s[60:61]') if False else None
    srd(EPR, DBG, 256)
    epoch_issue(4, 72)
    epoch_finish(4, 72)
    a('ds_write_b64 v4, v[72:73] offset:%d' % L_EP)
    a.wait(lg=0)
    a.label('k_h_noep')
    barrier(); stamp(2)
    a('s_cmp_ge_u32 s5, 24'); a('s_cbranch_scc1 k_h_nowm')
    for i in range(4): a('buffer_load_dwordx4 %s, v12, s[56:59], s%d offen' % (vq(WM_ + 4 * i), 60 + i))
    a.label('k_h_nowm')
    a.vm = a.vm[:-4] + [sum(a.vm[-4:], [])]
    a.vm[-1] = []
    for i in range(4): a('buffer_load_dwordx4 v2, s[52:55], s66 offen offset:%d%s lds' % (1024 * i, NT))
    a('buffer_load_dword v9, v4, s[52:55], s11 offen')
    a('ds_read_b64 v[72:73], v4 offset:%d' % L_EP)
    a.wait(vm=5)
    unpack(C, 18, 2)
    a('s_mov_b32 s64, 0x%x' % (LOG2E | 0x80000000))
    silu_like(E, C, 4, 64)
    a('v_readfirstlane_b32 s%d, v72' % T0S); a('v_readfirstlane_b32 s%d, v73' % T1S)
    ACCM = 40; T = 52
    for r in range(4):
        unpack(T, WM_ + 4 * r, 4)
        for e in range(8):
            if r == 0: a('v_mul_f32 v%d, v%d, v%d' % (ACCM + e, E, T + e))
            else: a('v_fmac_f32 v%d, v%d, v%d' % (ACCM + e, E + r, T + e))
    for ctl in ('row_shr:2', 'row_shr:4', 'row_shr:8'):
        for e in range(8): a('v_add_f32_dpp v%d, v%d, v%d %s row_mask:0xf bank_mask:0xf' % (ACCM + e, ACCM + e, ACCM + e, ctl))
    a('s_mov_b32 exec_lo, 0xc000c000'); a('s_mov_b32 exec_hi, 0xc000c000')
    a('ds_write_b128 v15, %s offset:%d' % (vq(ACCM), L_MP)); a('ds_write_b128 v15, %s offset:%d' % (vq(ACCM + 4), L_MP + 16))
    a('s_mov_b64 exec, 1')
    a('v_mov_b32 v8, 1')
    a.wait(lg=0)
    a('ds_add_rtn_u32 v13, v4, v8 offset:%d' % L_MC)
    a('s_mov_b64 exec, -1')
    a('v_add_u32 v3, s10, v2')
    a('v_cmp_eq_u32 vcc, 3, v1'); a('s_cmp_eq_u32 s9, 1'); a('s_cselect_b64 s[10:11], vcc, 0')
    a('v_readfirstlane_b32 s64, v13')
    a('s_cmp_lg_u32 s64, 3'); a('s_cbranch_scc1 k_h_nopub')
    a('v_lshlrev_b32 v8, 2, v1')
    for i in range(16): a('ds_read_b32 v%d, v8 offset:%d' % (40 + i, L_MP + 64 * i))
    for st in (8, 4, 2, 1):
        for i in range(st): a('v_add_f32 v%d, v%d, v%d' % (40 + i, 40 + i, 40 + i + st))
    rb(40, 40)
    a('v_add_f32 v41, 1.0, v40'); rb(41, 41)
    a('s_lshr_b32 s64, s68, 5'); a('s_cmp_eq_u32 s64, 1'); a('s_cselect_b64 s[60:61], -1, 0'); a('s_cmp_eq_u32 s64, 4'); a('s_cselect_b64 s[60:61], -1, s[60:61]')
    a('v_cndmask_b32 v40, v40, v41, s[60:61]')
    a('v_mov_b32_dpp v41, v40 row_shl:1 row_mask:0xf bank_mask:0xf')
    a('v_lshrrev_b32 v40, 16, v40'); a('v_or_b32 v40, v40, v41')
    a('v_mov_b32_dpp v41, v40 row_shl:2 row_mask:0xf bank_mask:0xf')
    a('v_mov_b32 v42, s%d' % T0S); a('v_mov_b32 v43, s%d' % T1S)
    a('s_lshl_b32 s66, s6, 7'); a('s_add_u32 s66, s66, %d' % (WS_SM + SM_MOD))
    a('s_mov_b32 s64, 0')
    a.label('k_fillwait')
    a('ds_read_b32 v44, v4 offset:%d' % L_FILL)
    a('s_add_u32 s64, s64, 1')
    a.wait(lg=0)
    a('v_readfirstlane_b32 s65, v44')
    a('s_cmp_ge_u32 s65, 1'); a('s_cbranch_scc1 k_fillwait_ok')
    a('s_sleep 1')
    a('s_cmp_lt_u32 s64, %d' % (SPIN_LIMIT * 16)); a('s_cbranch_scc1 k_fillwait')
    a.label('k_fillwait_ok')
    a('s_mov_b32 exec_lo, 0x11111111'); a('s_mov_b32 exec_hi, 0')
    a('buffer_store_dwordx4 v[40:43], v8, s[48:51], s66 offen sc1')
    a('s_mov_b64 exec, -1')
    stamp(7)
    a.label('k_h_nopub')
    a.wait(vm=0)
    a('v_cndmask_b32 v7, v7, v9, s[10:11]')
    a('s_mov_b64 exec, 15')
    a('ds_write_b128 v3, v[4:7]')
    a('s_mov_b64 exec, -1')
    stamp(3)
    a('s_mov_b32 s64, 0')
    a.label('k_ugowait')
    a('ds_read_b32 v44, v4 offset:%d' % L_UGO)
    a('s_add_u32 s64, s64, 1')
    a.wait(lg=0)
    a('v_readfirstlane_b32 s65, v44')
    a('s_cmp_ge_u32 s65, 4'); a('s_cbranch_scc1 k_ugowait_ok')
    a('s_sleep 1')
    a('s_cmp_lt_u32 s64, %d' % (SPIN_LIMIT * 16)); a('s_cbranch_scc1 k_ugowait')
    a.label('k_ugowait_ok')
    stamp(4)
    u_poll_build(40, 48)
    stamp(5)
    srd(52, Q, 2 * MiB); a('s_sub_u32 s68, s13, 4096')
    a('s_lshl_b32 s64, s7, 10'); a('s_add_u32 s64, s64, %d' % L_XB); a('s_mov_b32 m0, s64'); a('s_sub_u32 s64, s64, 4096')
    a('buffer_load_dwordx4 v2, s[52:55], s13 offen lds')
    a('s_mov_b32 m0, s64'); a.nop(1)
    a('buffer_load_dwordx4 v2, s[52:55], s68 offen lds')
    srd(56, WS, WS_SIZE, WSOFF)
    a.wait(lg=0); barrier(); stamp(6)
    a('v_lshlrev_b32 v11, 7, v10')
    a('v_lshrrev_b32 v12, 5, v10'); a('v_mul_u32_u24 v12, 24, v12'); a('v_and_b32 v13, 31, v10'); a('v_add_lshl_u32 v12, v12, v13, 5')
    a('v_cmp_gt_u32 s[10:11], 24, v13')
    a('s_mov_b32 s8, %d' % (WS_SM + SM_MOD))
    def badm():
        for g in range(4):
            a('v_xor_b32 v%d, s%d, v%d' % (48 + 2 * g, T0S, 80 + 4 * g + 2)); a('v_xor_b32 v%d, s%d, v%d' % (49 + 2 * g, T1S, 80 + 4 * g + 3))
        a('v_or3_b32 v48, v48, v49, v50'); a('v_or3_b32 v51, v51, v52, v53'); a('v_or3_b32 v48, v48, v54, v55'); a('v_or_b32 v48, v48, v51')
        a('v_cmp_ne_u32 vcc, 0, v48')
    poll(['buffer_load_dwordx4 %s, v11, s[56:59], s8 offen offset:%d sc1' % (vq(80 + 4 * g), 16 * g) for g in range(4)], badm)
    a('s_mov_b64 exec, s[10:11]')
    for g in range(4): a('ds_write_b64 v12, %s offset:%d' % (vp(80 + 4 * g), L_MOD + 8 * g))
    a('s_mov_b64 exec, -1')
    a('s_branch k_epi')
    a.label('k_loader'); a.load(st0b)
    a('s_memrealtime s[8:9]')
    a('v_mov_b32 v3, 0')
    a('ds_write_b32 v3, v3 offset:%d' % L_FILL); a('ds_write_b32 v3, v3 offset:%d' % L_MC); a('ds_write_b32 v3, v3 offset:%d' % L_UGO)
    for i in range(4): a('v_mov_b32 v%d, -1' % (4 + i))
    srd(56, WS, WS_SIZE, WSOFF)
    a('s_cmp_lg_u32 s2, 0'); a('s_cbranch_scc1 k_ld_noep')
    srd(60, DBG, 256)
    a('s_lshl_b32 s9, s9, 16'); a('s_or_b32 s9, s9, 0x80000000')
    a('v_mov_b32 v8, s8'); a('v_mov_b32 v9, s9')
    a('s_mov_b64 exec, 1')
    a('buffer_store_dwordx2 v[8:9], v3, s[60:63], 0 offen sc1')
    a('s_mov_b64 exec, -1')
    a.label('k_ld_noep')
    a('s_lshl_b32 s8, s6, 13'); a('s_add_u32 s9, s8, %d' % WS_Z); a('s_add_u32 s10, s9, 4096'); a('s_add_u32 s66, s8, %d' % WS_H2); a('s_add_u32 s67, s66, 4096')
    for sr in (9, 10):
        for i in range(4): a('buffer_store_dwordx4 v[4:7], v2, s[56:59], s%d offen offset:%d sc1' % (sr, 1024 * i))
    a('s_lshl_b32 s8, s6, 7'); a('s_add_u32 s8, s8, %d' % (WS_SM + SM_KEY))
    a('s_lshl_b32 s9, s2, 7'); a('s_add_u32 s9, s9, %d' % (WS_SM + SM_ACT))
    a('s_mov_b64 exec, 0xff')
    a('buffer_store_dwordx4 v[4:7], v2, s[56:59], s8 offen sc1'); a('buffer_store_dwordx4 v[4:7], v2, s[56:59], s9 offen sc1')
    a('s_mov_b64 exec, -1')
    a('s_cmp_ge_u32 s2, 16'); a('s_cbranch_scc1 k_ld_nox1')
    a('s_lshl_b32 s8, s2, 10'); a('s_add_u32 s8, s8, %d' % (WS_SM + SM_X1))
    a('buffer_store_dwordx4 v[4:7], v2, s[56:59], s8 offen sc1')
    a.label('k_ld_nox1')
    srd(52, WMOD, 3 * MiB)
    a('v_lshrrev_b32 v10, 2, v1'); a('s_lshl_b32 s8, s5, 4'); a('v_add_u32 v10, s8, v10'); a('v_mul_u32_u24 v10, 6144, v10')
    a('v_and_b32 v11, 3, v1'); a('v_lshl_add_u32 v11, v11, 7, v10')
    a('v_and_b32 v12, 1, v1'); a('v_lshl_add_u32 v12, v12, 7, v10')
    a('s_mul_i32 s8, s4, 768')
    a('buffer_load_dword v13, v11, s[52:55], s8 offen')
    a('s_mov_b32 exec_lo, 0x33333333'); a('s_mov_b32 exec_hi, 0x33333333')
    a('buffer_load_dword v14, v12, s[52:55], s8 offen offset:512')
    a('s_mov_b64 exec, -1')
    stamp(1)
    a('s_cmp_ge_u32 s5, 3'); a('s_cbranch_scc1 k_ld_nocode')
    a('s_getpc_b64 s[8:9]')
    a.label('k_pc')
    a('s_sub_u32 s8, s8, k_pc-%s' % KN); a('s_subb_u32 s9, s9, 0')
    a('v_lshlrev_b32 v10, 7, v1'); a('s_lshl_b32 s10, s5, 13'); a('v_add_u32 v10, s10, v10')
    a('s_mov_b32 s10, k_code_end-%s' % KN); a('v_cmp_gt_u32 vcc, s10, v10'); a('s_and_b64 exec, exec, vcc')
    a('s_cbranch_execz k_ld_nocode2')
    a('global_load_dword v11, v10, s[8:9]')
    a.label('k_ld_nocode2'); a('s_mov_b64 exec, -1')
    a.label('k_ld_nocode')
    srd(48, WRP, 1024)
    a('s_mov_b32 m0, %d' % L_WR)
    a('buffer_load_dwordx4 v2, s[48:51], 0 offen lds')
    srd(52, Q, 2 * MiB)
    a('v_lshlrev_b32 v10, 7, v1'); a('s_lshl_b32 s8, s6, 13')
    a.wait(lg=0)
    stamp(2)
    barrier()
    a('buffer_load_dword v13, v10, s[52:55], s8 offen')
    srd(48, WG_, 512 * 3584); srd(52, WU_, 512 * 3584); srd(60, WD_, 1792 * 1024)
    a('v_lshrrev_b32 v10, 2, v1'); a('s_lshl_b32 s8, s5, 4'); a('v_add_u32 v10, s8, v10'); a('v_mul_u32_u24 v10, 3584, v10')
    a('v_and_b32 v11, 3, v1'); a('v_lshl_add_u32 v10, v11, 7, v10')
    a('s_mul_i32 s8, s4, 448'); a('s_and_b32 s8, s8, 0xffffff80')
    a('s_mul_i32 s9, s5, 56'); a('v_add_u32 v11, s9, v1'); a('v_lshlrev_b32 v11, 10, v11'); a('s_lshl_b32 s9, s4, 7')
    def touches():
        a('buffer_load_dword v12, v10, s[48:51], s8 offen' + NTW); a('buffer_load_dword v13, v10, s[52:55], s8 offen' + NTW)
        a('s_mov_b32 exec_hi, 0x00ffffff')
        a('buffer_load_dword v14, v11, s[60:63], s9 offen' + NTW)
        a('s_mov_b64 exec, -1')
    if WSCHED == 'B': touches()
    a.wait(vm=4 if WSCHED == 'B' else 1)
    a('v_mov_b32 v8, 1'); a('ds_write_b32 v3, v8 offset:%d' % L_FILL)
    stamp(3)
    a.vm = []
    a('s_mul_i32 s10, s4, 28'); a('s_add_u32 s10, s10, s5'); a('s_lshl_b32 s10, s10, 4')
    a('v_mul_u32_u24 v15, 3584, v1')
    barrier()
    assert OWNER
    if WSCHED == 'A':
        touches(); a.vm = []
        barrier()
    a('s_cmp_ge_u32 s5, 28'); a('s_cbranch_scc1 k_ld_nogu')
    a('s_mov_b32 s9, %d' % L_W); a('s_mov_b32 s11, %d' % (L_W + L_GU))
    for i in range(8 if WSCHED != 'N' else 0):
        a('s_mov_b32 m0, s9'); a('s_add_u32 s9, s9, 1024'); a('buffer_load_dwordx4 v15, s[48:51], s10 offen lds')
        a('s_mov_b32 m0, s11'); a('s_add_u32 s11, s11, 1024'); a('buffer_load_dwordx4 v15, s[52:55], s10 offen lds')
        a('s_add_u32 s10, s10, %d' % (64 * 3584))
    a.label('k_ld_nogu')
    stamp(4)
    if WSCHED != 'A': barrier()
    a.wait(vm=0); stamp(5)
    a('s_branch k_end')
    a.label('k_epi')
    a('s_lshl_b32 s64, s7, 10'); a('v_add_u32 v17, s64, v2')
    a('v_lshrrev_b32 v18, 1, v17'); a('v_sub_u32 v18, %d, v18' % (L_IMG + L_U1 + 4088))
    a('s_lshl_b32 s10, s6, 13'); a('s_add_u32 s10, s10, %d' % WS_Z)
    a.wait(lg=0)
    a('ds_read_b64 v[20:21], v18'); a('ds_read_b64 v[22:23], v18 offset:%d' % L_CB)
    a('s_lshl_b32 s8, s69, 16'); a('s_and_b32 s9, s69, s3')
    barrier(); stamp(8)
    for i in range(4): a('ds_read_b128 %s, v17 offset:%d' % (vq(32 + 4 * i), L_Y + 8192 * i))
    U = 48
    for ch in range(2):
        hi(U + 4 * ch + 0, 21 + 2 * ch); lo(U + 4 * ch + 1, 21 + 2 * ch); hi(U + 4 * ch + 2, 20 + 2 * ch); lo(U + 4 * ch + 3, 20 + 2 * ch)
    for ch in range(2):
        for i in range(4): a('v_mul_f32 v%d, s%d, v%d' % (U + 4 * ch + i, 8 + ch, U + 4 * ch + i))
    for i in range(8): rb(U + i, U + i)
    for ch in range(2):
        for i in (0, 2): pk('add', 32 + 8 * ch + i, 32 + 8 * ch + i, vp(36 + 8 * ch + i))
    for ch in range(2):
        for i in range(4): rb(32 + 8 * ch + i, 32 + 8 * ch + i)
    for ch in range(2):
        for i in (0, 2): pk('add', 32 + 8 * ch + i, 32 + 8 * ch + i, vp(U + 4 * ch + i))
    for i in range(4): a('v_cvt_pk_bf16_f32 v%d, v%d, v%d' % (56 + i, 32 + i, 40 + i))
    for i in range(4): a('v_min_u32 v%d, -2, v%d' % (56 + i, 56 + i))
    a('buffer_store_dwordx4 v[56:59], v17, s[56:59], s10 offen sc1')
    stamp(9)
    X = 24; T = 32; H = 40; Z = 48; S = 60; M = 64; WRr = 112; H2P = 128
    a('ds_read_b128 v[12:15], v17 offset:%d' % L_XB)
    a('ds_read_b128 v[20:23], v2 offset:%d' % L_WR)
    a('v_lshrrev_b32 v3, 1, v0'); a('v_and_b32 v4, 1, v0')
    a('v_lshlrev_b32 v5, 13, v3'); a('v_lshl_add_u32 v5, v4, 4, v5')
    a('v_mul_u32_u24 v6, %d, v4' % (4 * ZP)); a('v_lshl_add_u32 v6, v3, 2, v6'); a('v_add_u32 v6, %d, v6' % L_ZT)
    a('s_mul_i32 s64, s7, %d' % ZP); a('s_add_u32 s64, s64, %d' % L_ZT); a('v_add_u32 v7, s64, v2')
    a('v_lshlrev_b32 v19, 7, v3'); a('v_lshl_add_u32 v19, v4, 4, v19')
    a('s_lshl_b32 s11, s6, 5'); a('s_add_u32 s11, s11, %d' % WS_Z)
    MR = 120
    for i in range(6): a('ds_read_b128 %s, v2 offset:%d' % (vq(MR + 4 * i), L_MOD + 1024 * i))
    unpack(X, 12, 4)
    fin = ln_stats(X, T, 48, 50, 52, S)
    ln_norm(H, X, 50, 52, fin)
    for i in range(8): rb(H + i, H + i)
    unpack(WRr, 20, 4)
    for i in (1, 0): unpack(M + 8 * i, MR + 4 * i, 4)
    affine(H, M + 8, M + 0)
    for i in range(2, 6): unpack(M + 8 * i, MR + 4 * i, 4)
    a.wait(vm=0); stamp(10)
    poll(['buffer_load_dwordx4 v[12:15], v5, s[56:59], s11 offen sc1'], bad_sent([12, 13, 14, 15], 16))
    stamp(11)
    for i in range(4): a('ds_write_b32 v6, v%d offset:%d' % (12 + i, ZP * i))
    a.wait(lg=0); barrier()
    a('ds_read_b128 v[12:15], v7')
    unpack(Z, 12, 4)
    for i in range(0, 8, 2): pk('mul', H + i, H + i, vp(Z + i))
    for i in range(8): rb(H + i, H + i)
    for i in range(0, 8, 2): pk('mul', H + i, H + i, vp(M + 16 + i))
    for i in range(8): rb(H + i, H + i)
    for i in range(0, 8, 2): pk('add', X + i, X + i, vp(H + i))
    for i in range(8): rb(X + i, X + i)
    fin = ln_stats(X, T, 48, 50, 52, S)
    ln_norm(H, X, 50, 52, fin)
    for i in range(8): rb(H + i, H + i)
    affine(H, M + 32, M + 24)
    pk('mul', S, H, vp(WRr)); pk('mul', S + 2, H + 2, vp(WRr + 2))
    a('v_pk_fma_f32 %s, %s, %s, %s' % (vp(S), vp(H + 4), vp(WRr + 4), vp(S))); a('v_pk_fma_f32 %s, %s, %s, %s' % (vp(S + 2), vp(H + 6), vp(WRr + 6), vp(S + 2)))
    pk('add', S, S, vp(S + 2)); a('v_add_f32 v%d, v%d, v%d' % (S, S, S + 1))
    for n, ctl in enumerate(DPPS):
        a('v_add_f32_dpp v%d, v%d, v%d %s' % (S, S, S, ctl))
        if n < 4:
            a('v_cvt_pk_bf16_f32 v%d, v%d, v%d' % (H2P + n, H + 2 * n, H + 2 * n + 1)); a('v_min_u32 v%d, -2, v%d' % (H2P + n, H2P + n))
    rb(S, S)
    a('v_ashrrev_i32 v%d, 31, v%d' % (S + 1, S)); a('v_or_b32 v%d, 0x80000000, v%d' % (S + 1, S + 1)); a('v_xor_b32 v%d, v%d, v%d' % (S, S, S + 1))
    a('s_sub_u32 s64, 2047, s12'); a('v_and_b32 v%d, s3, v%d' % (S, S)); a('v_or_b32 v%d, s64, v%d' % (S, S))
    a('s_lshl_b32 s64, s7, 2'); a('v_mov_b32 v%d, s64' % (S + 1))
    a('v_readlane_b32 s14, v%d, 63' % S)
    a('s_mov_b32 exec_lo, 0'); a('s_mov_b32 exec_hi, 0x80000000')
    a('ds_write_b32 v%d, v%d offset:%d' % (S + 1, S, L_KEYL))
    a('s_mov_b64 exec, -1')
    a('s_add_u32 s65, s13, %d' % WS_H2)
    a.wait(lg=0); barrier()
    a('s_cmp_lg_u32 s7, 0'); a('s_cbranch_scc1 k_nokey')
    a('v_and_b32 v%d, 1, v1' % (S + 1)); a('v_lshlrev_b32 v%d, 4, v%d' % (S + 1, S + 1))
    a('ds_read_b128 v[8:11], v%d offset:%d' % (S + 1, L_KEYL))
    a('s_lshl_b32 s64, s6, 7'); a('s_add_u32 s64, s64, %d' % (WS_SM + SM_KEY))
    a('s_mov_b64 exec, 0xff')
    a('buffer_store_dwordx4 v[8:11], v2, s[56:59], s64 offen sc1')
    a('s_mov_b64 exec, -1')
    a.label('k_nokey')
    if not OWNER: a('buffer_store_dwordx4 %s, v2, s[56:59], s65 offen sc1' % vq(H2P))
    stamp(12)
    OUTR = 120; X1P = 124
    for i in range(0, 8, 2): pk('mul', T + i, H + i, vp(M + 40 + i))
    for i in range(8): rb(T + i, T + i)
    for i in range(0, 8, 2): pk('add', T + i, T + i, vp(X + i))
    for i in range(4): a('v_cvt_pk_bf16_f32 v%d, v%d, v%d' % (OUTR + i, T + 2 * i, T + 2 * i + 1))
    for i in range(4): a('v_cvt_pk_bf16_f32 v%d, v%d, v%d' % (X1P + i, X + 2 * i, X + 2 * i + 1))
    for i in range(4): a('v_min_u32 v%d, -2, v%d' % (X1P + i, X1P + i))
    a('v_mov_b32 v20, 0'); a('v_lshlrev_b32 v21, 2, v1')
    a('ds_write_b32 v21, v20 offset:%d' % L_RANK); a('ds_write_b32 v21, v20 offset:%d' % L_SEG)
    a('ds_write_b32 v20, v20 offset:%d' % L_CNT); a('ds_write_b32 v20, v20 offset:%d' % L_FLAG)
    a('s_mov_b32 s11, %d' % (WS_SM + SM_KEY))
    a.wait(vm=0, lg=0)
    KEY = 12
    poll(['buffer_load_dwordx4 v[12:15], v19, s[56:59], s11 offen sc1'], bad_sent([12, 13, 14, 15], 16))
    stamp(13)
    T0 = 30
    a('v_max3_u32 v%d, v%d, v%d, v%d' % (T0, KEY, KEY + 1, KEY + 2)); a('v_max_u32 v%d, v%d, v%d' % (T0, T0, KEY + 3))
    wave_reduce('v_max_u32', [T0])
    a('s_lshl_b32 s64, s7, 2'); a('v_mov_b32 v%d, s64' % (T0 + 1))
    a('s_mov_b32 exec_lo, 0'); a('s_mov_b32 exec_hi, 0x80000000')
    a('ds_write_b32 v%d, v%d offset:%d' % (T0 + 1, T0, L_WM))
    a('s_mov_b64 exec, -1')
    a.wait(lg=0); barrier()
    a('ds_read_b128 %s, v20 offset:%d' % (vq(T0 + 4), L_WM)); a('ds_read_b128 %s, v20 offset:%d' % (vq(T0 + 8), L_WM + 16))
    a('v_min3_u32 v%d, v%d, v%d, v%d' % (T0, T0 + 4, T0 + 5, T0 + 6)); a('v_min3_u32 v%d, v%d, v%d, v%d' % (T0 + 1, T0 + 8, T0 + 9, T0 + 10))
    a('v_min3_u32 v%d, v%d, v%d, v%d' % (T0, T0, T0 + 7, T0 + 11)); a('v_min_u32 v%d, v%d, v%d' % (T0, T0, T0 + 1))
    MS = 48
    for j in range(4): a('v_cmp_ge_u32 %s, v%d, v%d' % (sp(MS + 2 * j), KEY + j, T0))
    for j in range(4): a('s_bcnt1_i32_b64 s%d, %s' % (60 + j, sp(MS + 2 * j)))
    a('s_add_u32 s61, s61, s60'); a('s_add_u32 s62, s62, s61'); a('s_add_u32 s63, s63, s62')
    a('s_lshl_b32 s64, s7, 3')
    a('s_cmp_gt_u32 s63, 8'); a('s_cbranch_scc1 k_tk_over')
    for j in range(4):
        a('v_mbcnt_lo_u32_b32 v%d, s%d, 0' % (T0 + 4 + j, MS + 2 * j)); a('v_mbcnt_hi_u32_b32 v%d, s%d, v%d' % (T0 + 4 + j, MS + 1 + 2 * j, T0 + 4 + j))
        if j > 0: a('s_add_u32 s65, s64, s%d' % (60 + j - 1))
        a('v_add_lshl_u32 v%d, v%d, s%d, 2' % (T0 + 4 + j, T0 + 4 + j, 64 if j == 0 else 65))
    for j in range(4):
        a('s_mov_b64 exec, %s' % sp(MS + 2 * j))
        a('ds_write_b32 v%d, v%d offset:%d' % (T0 + 4 + j, KEY + j, L_SEG))
    a('s_mov_b64 exec, -1')
    a('s_branch k_tk_b')
    a.label('k_tk_over')
    a('v_mov_b32 v%d, 1' % (T0 + 4)); a('ds_write_b32 v20, v%d offset:%d' % (T0 + 4, L_FLAG))
    a.label('k_tk_b')
    a('s_lshl_b32 s64, s7, 5'); a('v_mov_b32 v%d, s64' % (T0 + 1))
    a.wait(lg=0); barrier()
    a('ds_read_b32 v%d, v20 offset:%d' % (T0 + 2, L_FLAG))
    a('ds_read_b32 v%d, v21 offset:%d' % (T0 + 3, L_SEG))
    a('ds_read_b128 %s, v%d offset:%d' % (vq(T0 + 4), T0 + 1, L_SEG)); a('ds_read_b128 %s, v%d offset:%d' % (vq(T0 + 8), T0 + 1, L_SEG + 16))
    a('v_mov_b32 v%d, 0' % (T0 + 12)); a('v_mov_b32 v%d, 0' % (T0 + 13))
    a('v_readfirstlane_b32 s64, v%d' % (T0 + 2))
    a('s_cmp_lg_u32 s64, 0'); a('s_cbranch_scc1 k_tk_slow')
    for hh in range(2):
        for e in range(4): a('v_cmp_gt_u32 %s, v%d, v%d' % (sp(MS + 2 * e), T0 + 4 + 4 * hh + e, T0 + 3))
        for e in range(4): a('v_addc_co_u32 v%d, vcc, 0, v%d, %s' % (T0 + 12 + (e & 1), T0 + 12 + (e & 1), sp(MS + 2 * e)))
    a('v_add_u32 v%d, v%d, v%d' % (T0 + 12, T0 + 12, T0 + 13))
    a('ds_add_u32 v21, v%d offset:%d' % (T0 + 12, L_RANK))
    a('v_cmp_ne_u32 s[64:65], 0, v%d' % (T0 + 3))
    a.wait(lg=0); barrier()
    a('ds_read_b32 v%d, v21 offset:%d' % (T0 + 12, L_RANK))
    a('v_cmp_gt_u32 vcc, 8, v%d' % (T0 + 12)); a('v_lshlrev_b32 v%d, 2, v%d' % (T0 + 12, T0 + 12))
    a('s_and_b64 exec, vcc, s[64:65]')
    a('ds_write_b32 v%d, v%d offset:%d' % (T0 + 12, T0 + 3, L_SEL))
    a('s_mov_b64 exec, -1')
    a.wait(lg=0)
    a('s_branch k_tk_done')
    a.label('k_tk_slow')
    a.wait(lg=0)
    for j in range(4): a('v_cmp_ge_u32 %s, v%d, v%d' % (sp(MS + 2 * j), KEY + j, T0))
    a('v_mov_b32 v%d, s63' % (T0 + 1))
    a('s_mov_b64 exec, 1')
    a('ds_add_rtn_u32 v%d, v20, v%d offset:%d' % (T0 + 3, T0 + 1, L_CNT))
    a('s_mov_b64 exec, -1')
    a('v_readfirstlane_b32 s64, v%d' % (T0 + 3))
    for j in range(4):
        a('v_mbcnt_lo_u32_b32 v%d, s%d, 0' % (T0 + 4 + j, MS + 2 * j)); a('v_mbcnt_hi_u32_b32 v%d, s%d, v%d' % (T0 + 4 + j, MS + 1 + 2 * j, T0 + 4 + j))
        if j > 0: a('s_add_u32 s65, s64, s%d' % (60 + j - 1))
        a('v_add_lshl_u32 v%d, v%d, s%d, 2' % (T0 + 4 + j, T0 + 4 + j, 64 if j == 0 else 65))
        a('s_mov_b64 exec, %s' % sp(MS + 2 * j))
        a('ds_write_b32 v%d, v%d offset:%d' % (T0 + 4 + j, KEY + j, L_LIST))
        a('s_mov_b64 exec, -1')
    a.wait(lg=0); barrier()
    a('ds_read_b32 v%d, v20 offset:%d' % (T0, L_CNT))
    a('v_readfirstlane_b32 s60, v%d' % T0)
    a('s_mov_b32 s61, 0')
    a.label('k_tk_chunk')
    a('v_add_u32 v%d, s61, v0' % (T0 + 1)); a('v_lshlrev_b32 v%d, 2, v%d' % (T0 + 3, T0 + 1))
    a('ds_read_b32 v%d, v%d offset:%d' % (T0, T0 + 3, L_LIST))
    a('v_mov_b32 v%d, 0' % (T0 + 3)); a('s_mov_b32 s62, 0'); a('v_mov_b32 v%d, 0' % (T0 + 2))
    a.label('k_tk_scan')
    a('ds_read_b128 %s, v%d offset:%d' % (vq(T0 + 4), T0 + 2, L_LIST))
    a('s_sub_u32 s63, s60, s62')
    for e in range(4):
        a('v_cmp_gt_u32 vcc, v%d, v%d' % (T0 + 4 + e, T0))
        a('s_cmp_gt_u32 s63, %d' % e); a('s_cselect_b64 vcc, vcc, 0')
        a('v_addc_co_u32 v%d, vcc, 0, v%d, vcc' % (T0 + 3, T0 + 3))
    a('v_add_u32 v%d, 16, v%d' % (T0 + 2, T0 + 2))
    a('s_add_u32 s62, s62, 4'); a('s_cmp_lt_u32 s62, s60'); a('s_cbranch_scc1 k_tk_scan')
    a('v_cmp_gt_u32 vcc, s60, v%d' % (T0 + 1)); a('v_cmp_gt_u32 s[64:65], 8, v%d' % (T0 + 3)); a('s_and_b64 vcc, vcc, s[64:65]')
    a('v_lshlrev_b32 v%d, 2, v%d' % (T0 + 3, T0 + 3))
    a('s_mov_b64 exec, vcc')
    a('ds_write_b32 v%d, v%d offset:%d' % (T0 + 3, T0, L_SEL))
    a('s_mov_b64 exec, -1')
    a('s_add_u32 s61, s61, 512'); a('s_cmp_lt_u32 s61, s60'); a('s_cbranch_scc1 k_tk_chunk')
    a.wait(lg=0); barrier()
    a.label('k_tk_done')
    stamp(14)
    a('v_and_b32 v4, 7, v1'); a('v_lshlrev_b32 v5, 2, v4')
    a('ds_read_b32 v7, v5 offset:%d' % L_SEL)
    a('v_lshrrev_b32 v6, 4, v1')
    srd(48, OUT, 2 * MiB)
    a('v_and_b32 v8, 0x7ff, v7'); a('v_sub_u32 v8, 2047, v8'); a('v_lshlrev_b32 v8, 10, v8')
    a('v_cmp_eq_u32 vcc, s14, v7'); a('s_and_b32 s60, vcc_lo, 0xff')
    def own_row_store(tag):
        a('s_cmp_lg_u32 s60, 0'); a('s_cbranch_scc1 k_own_%s' % tag)
        a('buffer_store_dwordx4 %s, v2, s[48:51], s13 offen' % vq(OUTR))
        a.label('k_own_%s' % tag)
    a('s_cmp_eq_u32 s60, 0'); a('s_cbranch_scc1 k_nosel')
    a('s_ff1_i32_b32 s61, s60'); a('s_lshl_b32 s61, s61, 11'); a('s_add_u32 s61, s61, %d' % (WS_SM + SM_X1))
    if OWNER: a('buffer_store_dwordx4 %s, v2, s[56:59], s61 offen sc1' % vq(H2P))
    a('buffer_store_dwordx4 %s, v2, s[56:59], s61 offen offset:1024 sc1' % vq(X1P))
    a.label('k_nosel')
    a('s_cmp_ge_u32 s5, 28'); a('s_cbranch_scc1 k_ffn2')
    st1 = a.save()
    if OWNER:
        a('v_lshlrev_b32 v9, 11, v4'); a('v_lshl_add_u32 v9, v6, 4, v9')
        a('s_lshl_b32 s64, s7, 7'); a('s_add_u32 s11, s64, %d' % (WS_SM + SM_X1))
    else:
        a('v_lshl_add_u32 v9, v6, 4, v8')
        a('s_lshl_b32 s64, s7, 7'); a('s_add_u32 s11, s64, %d' % WS_H2)
    a('v_and_b32 v20, 3, v1'); a('v_bfe_u32 v21, v1, 2, 2')
    a('v_lshlrev_b32 v22, 7, v6'); a('v_lshl_add_u32 v22, v21, 4, v22')
    a('v_and_b32 v23, 1, v20'); a('v_lshl_add_u32 v22, v23, 3, v22')
    a('v_lshrrev_b32 v23, 1, v20'); a('v_mul_u32_u24 v23, %d, v23' % L_GU); a('v_add_u32 v22, v22, v23')
    a('s_lshl_b32 s64, s7, 10'); a('s_add_u32 s64, s64, %d' % L_W); a('v_add_u32 v22, s64, v22')
    for i in range(2):
        for hh in range(2): a('ds_read_b64_tr_b16 %s, v22 offset:%d' % (vp(24 + 4 * i + 2 * hh), 512 * i + 64 * hh))
    poll(['buffer_load_dwordx4 v[12:15], v9, s[56:59], s11 offen sc1', 'buffer_load_dwordx4 v[16:19], v9, s[56:59], s11 offen offset:64 sc1'],
         bad_sent(list(range(12, 20)), 36), exec_mask=0x00ff00ff)
    a('v_mfma_f32_16x16x32_bf16 v[32:35], v[24:27], v[12:15], 0')
    a('v_mfma_f32_16x16x32_bf16 v[32:35], v[28:31], v[16:19], v[32:35]')
    a('v_lshlrev_b32 v36, 4, v0')
    own_row_store('a')
    a.nop(5)
    a('ds_write_b128 v36, v[32:35] offset:%d' % L_P)
    a.wait(lg=0); barrier()
    a('s_cmp_lg_u32 s7, 0'); a('s_cbranch_scc1 k_end')
    for w in range(8): a('ds_read_b128 %s, v36 offset:%d' % (vq(40 + 4 * w), L_P + 1024 * w))
    a('s_mov_b32 s64, 0x%x' % (LOG2E | 0x80000000))
    a('s_mul_i32 s65, s4, 28'); a('s_add_u32 s65, s65, s5'); a('s_lshl_b32 s65, s65, 7'); a('s_add_u32 s65, s65, %d' % (WS_SM + SM_ACT))
    a('v_and_b32 v73, 15, v1'); a('v_lshlrev_b32 v74, 4, v73'); a('v_lshl_add_u32 v72, v6, 3, v74')
    for st in (16, 8, 4):
        for i in range(0, st, 2): pk('add', 40 + i, 40 + i, vp(40 + i + st))
    for i in range(4): rb(40 + i, 40 + i)
    for i in range(4): a('v_mov_b32 v%d, v%d' % (44 + i, 40 + i))
    silu_like(52, 40, 4, 64)
    for i in range(4): a('v_permlane32_swap_b32 v%d, v%d' % (44 + i, 48 + i))
    for i in range(4): a('v_mul_f32 v%d, v%d, v%d' % (52 + i, 52 + i, 48 + i))
    a('v_cvt_pk_bf16_f32 v56, v52, v53'); a('v_cvt_pk_bf16_f32 v57, v54, v55')
    a('v_min_u32 v56, -2, v56'); a('v_min_u32 v57, -2, v57')
    a('s_mov_b32 exec_lo, 0x00ff00ff'); a('s_mov_b32 exec_hi, 0')
    a('buffer_store_dwordx2 v[56:57], v72, s[56:59], s65 offen sc1')
    a('s_branch k_end')
    a.label('k_ffn2'); a.load(st1)
    own_row_store('b')
    a('s_lshl_b32 s8, s4, 2'); a('s_add_u32 s8, s8, s5'); a('s_sub_u32 s8, s8, 28')
    a('s_lshl_b32 s9, s8, 5')
    srd(52, WD_, 1792 * 1024)
    a('v_lshrrev_b32 v15, 1, v1')
    a('v_and_b32 v16, 0x13, v15'); a('v_bfe_u32 v17, v15, 2, 1'); a('v_lshl_or_b32 v16, v17, 3, v16'); a('v_bfe_u32 v17, v15, 3, 1'); a('v_lshl_or_b32 v16, v17, 2, v16')
    a('v_lshlrev_b32 v15, 10, v16'); a('v_and_b32 v16, 1, v1'); a('v_lshl_add_u32 v15, v16, 4, v15')
    a('s_mul_i32 s64, s7, 7168'); a('s_add_u32 s64, s64, %d' % L_W)
    a('s_mul_i32 s65, s7, %d' % (224 * 1024)); a('s_add_u32 s65, s65, s9'); a('s_mov_b32 s10, s64')
    for i in range(7 if WSCHED != 'N' else 0):
        a('s_mov_b32 m0, s10'); a('s_add_u32 s10, s10, 1024'); a('buffer_load_dwordx4 v15, s[52:55], s65 offen lds'); a('s_add_u32 s65, s65, 32768')
    a('v_and_b32 v20, 3, v1'); a('v_bfe_u32 v21, v1, 2, 2')
    a('v_lshrrev_b32 v22, 1, v6'); a('v_lshlrev_b32 v22, 9, v22'); a('v_and_b32 v23, 1, v6'); a('v_lshl_add_u32 v22, v23, 7, v22')
    a('v_lshl_add_u32 v22, v21, 5, v22'); a('v_lshl_add_u32 v22, v20, 3, v22')
    a('v_add_u32 v22, s64, v22')
    a('v_lshlrev_b32 v9, 7, v6'); a('v_lshl_add_u32 v9, v4, 4, v9')
    a('s_mul_i32 s11, s7, 3584'); a('s_add_u32 s11, s11, %d' % (WS_SM + SM_ACT))
    a('v_lshl_add_u32 v8, v6, 3, v8')
    a('s_cmp_lg_u32 s7, 0'); a('s_cbranch_scc1 k_f2_act')
    a('v_lshlrev_b32 v10, 11, v4'); a('v_lshl_add_u32 v10, v6, 3, v10')
    a('s_add_u32 s61, s9, %d' % WS_H2); a('s_add_u32 s62, s9, %d' % (WS_SM + SM_X1))
    a('v_lshlrev_b32 v11, 3, v6'); a('v_add_u32 v11, s9, v11')
    a('ds_read_b64 v[16:17], v11 offset:%d' % (L_MOD + 5 * 1024))
    a('v_and_b32 v30, s3, v7'); a('v_ashrrev_i32 v31, 31, v30'); a('v_not_b32 v31, v31'); a('v_or_b32 v31, 0x80000000, v31'); a('v_xor_b32 v30, v30, v31'); a('v_and_b32 v30, s3, v30')
    a('s_mov_b32 s64, 0x%x' % (LOG2E | 0x80000000))
    silu_like(31, 30, 1, 64, mulx=False)
    unpack(108, 16, 2)
    poll(['buffer_load_dwordx2 v[12:13], v10, s[56:59], s62 offen sc1' if OWNER else 'buffer_load_dwordx2 v[12:13], v8, s[56:59], s61 offen sc1',
          'buffer_load_dwordx2 v[14:15], v10, s[56:59], s62 offen offset:1024 sc1'], bad_sent([12, 13, 14, 15], 29))
    unpack(112, 12, 4)
    a.label('k_f2_act')
    a.wait(vm=0, lg=0)
    for i in range(7):
        for hh in range(2): a('ds_read_b64_tr_b16 %s, v22 offset:%d' % (vp(64 + 4 * i + 2 * hh), 1024 * i + 256 * hh))
    poll(['buffer_load_dwordx4 %s, v9, s[56:59], s11 offen offset:%d sc1' % (vq(32 + 4 * i), 512 * i) for i in range(7)], bad_sent(list(range(32, 60)), 29), exec_mask=0x00ff00ff)
    for i in range(7):
        a('v_mfma_f32_16x16x32_bf16 v[24:27], %s, %s, %s' % (vq(64 + 4 * i), vq(32 + 4 * i), '0' if i == 0 else 'v[24:27]'))
    a('v_lshlrev_b32 v28, 4, v0')
    a('ds_write_b128 v28, v[24:27] offset:%d' % L_P)
    a.wait(lg=0); barrier()
    a('s_cmp_lg_u32 s7, 0'); a('s_cbranch_scc1 k_end')
    for w in range(8): a('ds_read_b128 %s, v28 offset:%d' % (vq(40 + 4 * w), L_P + 1024 * w))
    for st in (16, 8, 4):
        for i in range(0, st, 2): pk('add', 40 + i, 40 + i, vp(40 + i + st))
    for i in range(4): rb(40 + i, 40 + i)
    for i in range(4): a('v_mul_f32 v%d, v%d, v31' % (40 + i, 40 + i))
    for i in range(4): rb(40 + i, 40 + i)
    for i in (0, 2): pk('add', 40 + i, 40 + i, vp(112 + i))
    for i in range(4): rb(40 + i, 40 + i)
    for i in (0, 2): pk('mul', 40 + i, 40 + i, vp(108 + i))
    for i in range(4): rb(40 + i, 40 + i)
    for i in (0, 2): pk('add', 40 + i, 40 + i, vp(116 + i))
    a('v_cvt_pk_bf16_f32 v44, v40, v41'); a('v_cvt_pk_bf16_f32 v45, v42, v43')
    a('s_mov_b32 exec_lo, 0x00ff00ff'); a('s_mov_b32 exec_hi, 0x00ff00ff')
    a('buffer_store_dwordx2 v[44:45], v8, s[48:51], s9 offen')
    a.label('k_end')
    if STAMP:
        a('s_memrealtime s[%d:%d]' % (SST + 30, SST + 31))
        a('s_mov_b64 exec, -1')
        a.wait(vm=0, lg=0)
        for i in range(16): a('v_writelane_b32 v2, s%d, %d' % (SST + 2 * i, i))
        a('s_mul_i32 s5, s2, 9'); a('s_add_u32 s5, s5, s7'); a('s_lshl_b32 s5, s5, 6')
        srd(8, WS, MiB, WS_STAMP)
        a('v_and_b32 v1, 63, v0'); a('v_lshlrev_b32 v1, 2, v1')
        a('s_mov_b64 exec, 0xffff')
        a('buffer_store_dword v2, v1, s[8:11], s5 offen')
    a.label('k_exit')
    a('s_endpgm')
    a.label('k_code_end')

def main(outpath):
    hdr = open('cdna_kernels/%s.s.ref' % NAME).read().split('\n')
    out = [l for l in hdr if l.startswith(';') and '@launch' not in l]
    out.append('; @launch grid=(256,1,1) block=(576,1,1) lds=%d' % LDS_SIZE)
    out.append('.amdgcn_target "amdgcn-amd-amdhsa--gfx950"'); out.append('.text')
    gen()
    body = a.text()
    m = max([int(x) for x in re.findall(r'\bv(\d+)\b', body)] + [int(x) for x in re.findall(r'\bv\[\d+:(\d+)\]', body)])
    vg = (m + 1 + 7) // 8 * 8
    assert vg <= 168
    out.append(body)
    out.append('.section .rodata,"a"')
    out.append('.p2align 6')
    out.append('.amdhsa_kernel %s' % KN)
    out.append('  .amdhsa_next_free_vgpr %d' % vg); out.append('  .amdhsa_next_free_sgpr 102'); out.append('  .amdhsa_accum_offset %d' % vg)
    out.append('  .amdhsa_group_segment_fixed_size 0'); out.append('  .amdhsa_kernarg_size 128')
    out.append('  .amdhsa_user_sgpr_count 2'); out.append('  .amdhsa_user_sgpr_kernarg_segment_ptr 1'); out.append('  .amdhsa_system_sgpr_workgroup_id_x 1')
    out.append('  .amdhsa_float_denorm_mode_32 3')
    out.append('.end_amdhsa_kernel')
    open(outpath, 'w').write('\n'.join(out) + '\n')
    print('wrote', outpath, 'vgprs', m + 1, 'nops', a.nops_inserted, 'LDS', LDS_SIZE)

if __name__ == '__main__':
    main(sys.argv[1] if len(sys.argv) > 1 else 'cdna_kernels/%s.s' % NAME)
```

```python
import sys, os, re
from asmlib import Asm

NAME = 'adaLN_cond__ssm_conv_h3__moe_arch_mod__prompt'
KN = NAME + '_kernel'
MiB = 1 << 20
WS_U = 0
WS_Z = 4 * MiB
WS_H2 = 6 * MiB
WS_SM = 8 * MiB
SM_MOD = 0
SM_KEY = 32768
SM_ACT = 65536
SM_X1 = 98304
WS_SIZE = 9 * MiB
WS_STAMP = 14 * MiB
STAMP = int(os.environ.get('STAMP', '0'))
SPIN_LIMIT = 1 << 14
DBGSPAN = int(os.environ.get('DBGSPAN', '0'))
WSCHED = os.environ.get('WSCHED', 'A')
NT = ' nt' if int(os.environ.get('NT', '0')) else ''
NTW = ' nt' if int(os.environ.get('NTW', '0')) else ''
WSOFF = int(os.environ.get('WSOFF', '0')) * MiB
OWNER = int(os.environ.get('OWNER', '1'))
LOG2E = 0x3fb8aa3b
a = Asm()
SST = 70
def stamp(i):
    if STAMP: a('s_memrealtime s[%d:%d]' % (SST + 2 * i, SST + 1 + 2 * i))
def srd(s, ptr, size, add=0):
    if add:
        a('s_add_u32 s%d, s%d, 0x%x' % (s, ptr, add)); a('s_addc_u32 s%d, s%d, 0' % (s + 1, ptr + 1))
    else:
        a('s_mov_b32 s%d, s%d' % (s, ptr)); a('s_mov_b32 s%d, s%d' % (s + 1, ptr + 1))
    a('s_mov_b32 s%d, 0x%x' % (s + 2, size)); a('s_mov_b32 s%d, 0x00020000' % (s + 3))
MASK = 3
def lo(d, s): a('v_lshlrev_b32 v%d, 16, v%d' % (d, s))
def hi(d, s): a('v_and_b32 v%d, s%d, v%d' % (d, MASK, s))
def rb(d, s): a('v_cvt_pk_bf16_f32 v%d, 0, v%d' % (d, s))
def pk(op, d, x, y, extra=''): a('v_pk_%s_f32 v[%d:%d], v[%d:%d], %s %s' % (op, d, d + 1, x, x + 1, y, extra))
def vp(r): return 'v[%d:%d]' % (r, r + 1)
def vq(r): return 'v[%d:%d]' % (r, r + 3)
def sp(r): return 's[%d:%d]' % (r, r + 1)
def sq(r): return 's[%d:%d]' % (r, r + 3)
def unpack(d, s, n):
    for i in range(n): lo(d + 2 * i, s + i); hi(d + 2 * i + 1, s + i)
DPPS = ('row_shr:1 row_mask:0xf bank_mask:0xf', 'row_shr:2 row_mask:0xf bank_mask:0xf', 'row_shr:4 row_mask:0xf bank_mask:0xf',
        'row_shr:8 row_mask:0xf bank_mask:0xf', 'row_bcast:15 row_mask:0xa bank_mask:0xf', 'row_bcast:31 row_mask:0xc bank_mask:0xf')
def wave_reduce(op, regs):
    for ctl in DPPS:
        for r in regs: a('%s_dpp v%d, v%d, v%d %s' % (op, r, r, r, ctl))
def silu_like(D, X, n, sneg, mulx=True):
    for i in range(n): a('v_mul_f32 v%d, s%d, v%d' % (D + i, sneg, X + i))
    for i in range(n): a('v_exp_f32 v%d, v%d' % (D + i, D + i))
    for i in range(n): a('v_add_f32 v%d, 1.0, v%d' % (D + i, D + i))
    for i in range(n): a('v_rcp_f32 v%d, v%d' % (D + i, D + i))
    if mulx:
        for i in range(n): a('v_mul_f32 v%d, v%d, v%d' % (D + i, D + i, X + i))
    for i in range(n): rb(D + i, D + i)
def barrier(): a('s_barrier')

L_WM = 0; L_KEYL = 32; L_SEL = 64; L_RANK = 128; L_SEG = 384; L_CNT = 640; L_FLAG = 644; L_FILL = 648; L_MC = 652; L_UGO = 656; L_EP = 664
L_WR = 1024; L_NB = 2048; L_XB = L_NB + 8192; L_MOD = L_XB + 8192; L_Y = L_MOD + 6144 + 2048
L_LIST = L_Y; L_P = L_Y + 8192; L_MP = L_Y + 16384
L_IMG = L_Y + 32768
L_U1 = 0; L_U0 = 4576; L_KA = 9216; L_KB = 13440; L_CB = 17664
assert L_IMG % 256 == 0
L_ZT = L_IMG + L_KA; ZP = 1040
L_W = L_IMG + 2 * L_CB; L_GU = 8256
LDS_SIZE = L_W + 57344
Q, KP, VP_, SHK, SSMK, SSMD, WRP = 16, 18, 20, 22, 24, 26, 30
WG_, WU_, WD_, CP, WMOD, OUT, DBG, WS = 32, 34, 36, 38, 40, 42, 44, 46
T0S, T1S = 14, 15

def ln_stats(X, T, sC, sMB, sRI, vS):
    a('v_readfirstlane_b32 s%d, v%d' % (sC, X))
    for i in range(0, 8, 2): pk('add', T + i, X + i, sp(sC), 'op_sel_hi:[1,0] neg_lo:[0,1] neg_hi:[0,1]')
    pk('add', vS, T, vp(T + 2)); pk('mul', vS + 2, T, vp(T))
    pk('add', T, T + 4, vp(T + 6))
    a('v_pk_fma_f32 %s, %s, %s, %s' % (vp(vS + 2), vp(T + 2), vp(T + 2), vp(vS + 2)))
    pk('mul', T + 2, T + 4, vp(T + 4))
    pk('add', vS, vS, vp(T))
    a('v_pk_fma_f32 %s, %s, %s, %s' % (vp(T + 2), vp(T + 6), vp(T + 6), vp(T + 2)))
    a('v_add_f32 v%d, v%d, v%d' % (vS, vS, vS + 1))
    pk('add', vS + 2, vS + 2, vp(T + 2))
    a('v_add_f32 v%d, v%d, v%d' % (vS + 1, vS + 2, vS + 3))
    wave_reduce('v_add_f32', [vS, vS + 1])
    a('v_mul_f32 v%d, 0x3b000000, v%d' % (vS, vS)); a('v_mul_f32 v%d, 0x3b000000, v%d' % (vS + 1, vS + 1))
    a('v_fma_f32 v%d, -v%d, v%d, v%d' % (vS + 1, vS, vS, vS + 1))
    a('v_add_f32 v%d, s%d, v%d' % (vS, sC, vS))
    a('v_max_f32 v%d, 0, v%d' % (vS + 1, vS + 1))
    rb(vS, vS); rb(vS + 1, vS + 1)
    a('v_readlane_b32 s%d, v%d, 63' % (sMB, vS))
    a('v_add_f32 v%d, 0x3727c5ac, v%d' % (vS + 1, vS + 1)); rb(vS + 1, vS + 1)
    a('v_sqrt_f32 v%d, v%d' % (vS + 1, vS + 1)); rb(vS + 1, vS + 1)
    a('v_rcp_f32 v%d, v%d' % (vS + 1, vS + 1))
    return lambda: a('v_readlane_b32 s%d, v%d, 63' % (sRI, vS + 1))
def ln_norm(D, X, sMB, sRI, fin):
    for i in range(0, 8, 2): pk('add', D + i, X + i, sp(sMB), 'op_sel_hi:[1,0] neg_lo:[0,1] neg_hi:[0,1]')
    for i in range(8): rb(D + i, D + i)
    fin()
    for i in range(0, 8, 2): pk('mul', D + i, D + i, sp(sRI), 'op_sel_hi:[1,0]')
def affine(D, C1, SH):
    for i in range(0, 8, 2): pk('mul', D + i, D + i, vp(C1 + i))
    for i in range(8): rb(D + i, D + i)
    for i in range(0, 8, 2): pk('add', D + i, D + i, vp(SH + i))
    for i in range(8): rb(D + i, D + i)

_pl = [0]
def poll(loads, bad, exec_mask=None):
    n = _pl[0]; _pl[0] += 1
    a('s_mov_b32 s64, 0')
    if exec_mask is not None:
        a('s_mov_b32 exec_lo, 0x%x' % exec_mask); a('s_mov_b32 exec_hi, 0x%x' % exec_mask)
    a.label('poll%d' % n)
    for l in loads: a(l)
    a.wait(vm=0)
    bad()
    a('s_add_u32 s64, s64, 1')
    a('s_and_b64 exec, exec, vcc')
    a('s_cbranch_execz poll%d_done' % n)
    a('s_cmp_lt_u32 s64, %d' % SPIN_LIMIT); a('s_cbranch_scc1 poll%d' % n)
    a.label('poll%d_done' % n)
    a('s_mov_b64 exec, -1')
def bad_sent(regs, tmp):
    def f():
        rs = list(regs); first = True
        while rs:
            if first:
                x = rs[:3]; rs = rs[3:]; first = False
                a('v_max3_u32 v%d, v%d, v%d, v%d' % (tmp, x[0], x[1], x[2]))
            elif len(rs) >= 2:
                a('v_max3_u32 v%d, v%d, v%d, v%d' % (tmp, tmp, rs[0], rs[1])); rs = rs[2:]
            else:
                a('v_max_u32 v%d, v%d, v%d' % (tmp, tmp, rs[0])); rs = rs[1:]
        a('v_cmp_eq_u32 vcc, -1, v%d' % tmp)
    return f

EPR = 28
def epoch_issue(vaddr0, vdst):
    a('buffer_load_dwordx2 %s, v%d, %s, 0 offen sc1' % (vp(vdst), vaddr0, sq(EPR)))
_ep = [0]
def epoch_finish(vaddr0, vdst):
    n = _ep[0]; _ep[0] += 1
    a('s_mov_b32 s64, 0')
    a.label('ep%d' % n)
    a.wait(vm=0)
    a('v_readfirstlane_b32 s%d, v%d' % (T1S, vdst + 1)); a('v_readfirstlane_b32 s%d, v%d' % (T0S, vdst))
    a('s_add_u32 s64, s64, 1')
    a('s_cmp_lg_u32 s%d, 0' % T1S); a('s_cbranch_scc1 ep%d_done' % n)
    a('s_cmp_ge_u32 s64, %d' % SPIN_LIMIT); a('s_cbranch_scc1 ep%d_done' % n)
    epoch_issue(vaddr0, vdst)
    a('s_branch ep%d' % n)
    a.label('ep%d_done' % n)

def ln1_own_row(qreg, X, T, S, vrow):
    unpack(X, qreg, 4)
    a('ds_write_b128 v%d, %s offset:%d' % (vrow, vq(qreg), L_XB))
    fin = ln_stats(X, T, 60 + 6, 62 + 6, 64 + 0, S) if False else ln_stats(X, T, 48, 50, 52, S)
    ln_norm(T, X, 50, 52, fin)
    for i in range(4): a('v_cvt_pk_bf16_f32 v%d, v%d, v%d' % (X + i, T + 2 * i, T + 2 * i + 1))
    a('ds_write_b128 v%d, %s offset:%d' % (vrow, vq(X), L_NB))

def u_poll_build(G, R=56):
    a('v_lshlrev_b32 v%d, 4, v0' % (G + 8))
    a('s_lshl_b32 s8, s6, 14'); a('s_add_u32 s9, s8, 8192')
    a('v_lshlrev_b32 v%d, 3, v0' % (G + 9)); a('v_add_u32 v%d, %d, v%d' % (G + 9, L_IMG, G + 9))
    def bad():
        for g in (0, 4):
            a('v_xor_b32 v%d, s%d, v%d' % (G + 10 + g // 4 * 2, T0S, G + g + 3)); a('v_xor_b32 v%d, s%d, v%d' % (G + 11 + g // 4 * 2, T1S, G + g + 2))
        a('v_or_b32 v%d, v%d, v%d' % (G + 11, G + 11, G + 13)); a('v_or_b32 v%d, v%d, v%d' % (G + 10, G + 10, G + 12))
        a('v_and_or_b32 v%d, v%d, s3, v%d' % (G + 10, G + 11, G + 10))
        a('v_cmp_ne_u32 vcc, 0, v%d' % (G + 10))
    poll(['buffer_load_dwordx4 %s, v%d, %s, s8 offen sc1' % (vq(G), G + 8, sq(R)), 'buffer_load_dwordx4 %s, v%d, %s, s9 offen sc1' % (vq(G + 4), G + 8, sq(R))], bad)
    for ch in range(2):
        g = G + 4 * ch
        a('ds_write_b64 v%d, %s offset:%d' % (G + 9, vp(g), L_U1 + L_CB * ch))
        a('v_alignbit_b32 v%d, v%d, v%d, 16' % (G + 10 + 2 * ch, g + 1, g)); a('v_alignbit_b32 v%d, v%d, v%d, 16' % (G + 11 + 2 * ch, g + 2, g + 1))
        a('ds_write_b64 v%d, %s offset:%d' % (G + 9, vp(G + 10 + 2 * ch), L_U0 + L_CB * ch))

def gen():
    a.raw('.p2align 8'); a.raw('.globl %s' % KN); a.raw('.type %s,@function' % KN); a.label(KN); a.reset()
    a('s_cmp_ge_u32 s2, 256'); a('s_cbranch_scc1 k_exit')
    a('s_load_dwordx16 s[16:31], s[0:1], 0')
    if STAMP:
        for i in range(16): a('s_mov_b32 s%d, 0' % (SST + 2 * i))
    stamp(0)
    a('s_mov_b32 s3, 0xffff0000')
    a('s_and_b32 s4, s2, 7'); a('s_lshr_b32 s5, s2, 3')
    a('s_lshl_b32 s6, s4, 5'); a('s_add_u32 s6, s6, s5')
    a('v_lshrrev_b32 v1, 6, v0'); a.nop(1); a('v_readfirstlane_b32 s7, v1')
    a('v_and_b32 v1, 63, v0'); a('v_lshlrev_b32 v2, 4, v1')
    a('s_lshl_b32 s12, s6, 3'); a('s_add_u32 s12, s12, s7')
    a('s_lshl_b32 s13, s12, 10')
    a('s_cmp_ge_u32 s7, 4'); a('s_cbranch_scc1 k_notkv')
    st0 = a.save()
    a('v_and_b32 v3, 15, v0'); a('v_lshrrev_b32 v4, 4, v0')
    a('s_lshl_b32 s8, s5, 6'); a('v_lshl_add_u32 v3, v3, 2, s8')
    a('s_lshl_b32 s8, s4, 7'); a('v_lshl_add_u32 v4, v4, 3, s8')
    a('v_lshl_add_u32 v5, v3, 10, v4')
    a('v_subrev_u32 v6, 4096, v5')
    a('v_cmp_ne_u32 s[8:9], 0, v3')
    a('v_lshlrev_b32 v7, 2, v4')
    KR = 10; VR = 26; WR = 36
    for i in range(8): a('v_mov_b32 v%d, 0' % (KR + i))
    a('v_mov_b32 v%d, 0' % VR); a('v_mov_b32 v%d, 0' % (VR + 1))
    a.wait(lg=0)
    for i in range(4): a('global_load_dwordx2 %s, v5, %s offset:%d' % (vp(KR + 8 + 2 * i), sp(KP), 1024 * i) + NT)
    for i in range(4): a('global_load_dwordx2 %s, v5, %s offset:%d' % (vp(VR + 2 + 2 * i), sp(VP_), 1024 * i) + NT)
    a('global_load_dwordx4 %s, v7, %s' % (vq(WR), sp(SHK))); a('global_load_dwordx4 %s, v7, %s offset:16' % (vq(WR + 4), sp(SHK)))
    a('s_mov_b64 exec, s[8:9]')
    for i in range(4): a('global_load_dwordx2 %s, v6, %s offset:%d' % (vp(KR + 2 * i), sp(KP), 1024 * i) + NT)
    a('global_load_dwordx2 %s, v6, %s offset:3072' % (vp(VR), sp(VP_)) + NT)
    a('s_mov_b64 exec, -1')
    stamp(1)
    a('s_load_dwordx16 s[32:47], s[0:1], 64')
    a('s_lshl_b32 s64, s6, 2'); a('s_load_dword s69, %s, s64' % sp(SSMD))
    srd(56, WS, WS_SIZE, WSOFF)
    a('v_lshlrev_b32 v8, 12, v4'); a('v_lshlrev_b32 v9, 2, v3'); a('v_sub_u32 v8, v8, v9'); a('v_add_u32 v8, 8176, v8')
    a('v_mov_b32 v9, 0')
    a.wait(vm=0); stamp(2); barrier()
    a('ds_read_b64 v[136:137], v9 offset:%d' % L_EP)
    W = 44
    for c in range(4):
        lo(W + 0 + c, WR + 2 * c); hi(W + 4 + c, WR + 2 * c); lo(W + 8 + c, WR + 2 * c + 1); hi(W + 12 + c, WR + 2 * c + 1)
    KF = 60
    unpack(KF, KR, 16)
    S = 92; P = 112
    for i in range(5):
        for h in (0, 2): pk('mul', S + 4 * i + h, KF + 4 * i + h, vp(W + 12 + h))
    for r in range(20): rb(S + r, S + r)
    for t in (1, 2, 3):
        for i in range(5):
            for h in (0, 2): pk('mul', P + 4 * i + h, KF + 4 * (i + t) + h, vp(W + 4 * (3 - t) + h))
        for r in range(20): rb(P + r, P + r)
        for r in range(0, 20, 2): pk('add', S + r, S + r, vp(P + r))
        for r in range(20): rb(S + r, S + r)
    unpack(P, VR, 10)
    for r in range(0, 20, 2): pk('mul', S + r, S + r, vp(P + r))
    O = 60
    for c in range(4):
        a('v_cvt_pk_bf16_f32 v%d, v%d, v%d' % (O + 4 * c, S + 16 + c, S + 12 + c))
        a('v_cvt_pk_bf16_f32 v%d, v%d, v%d' % (O + 4 * c + 1, S + 8 + c, S + 4 + c))
        a('v_cvt_pk_bf16_f32 v%d, v%d, 0' % (O + 4 * c + 2, S + c))
    for c in range(4): a('s_mov_b32 s%d, %d' % (8 + c, c * 8192))
    a('v_readfirstlane_b32 s%d, v136' % T0S); a('v_readfirstlane_b32 s%d, v137' % T1S)
    for c in range(4):
        a('v_or_b32 v%d, s%d, v%d' % (O + 4 * c + 2, T1S, O + 4 * c + 2)); a('v_mov_b32 v%d, s%d' % (O + 4 * c + 3, T0S))
    for c in range(4): a('buffer_store_dwordx4 %s, v8, s[56:59], s%d offen sc1' % (vq(O + 4 * c), 8 + c))
    stamp(3)
    a('s_and_b32 s8, s7, 1'); a('s_lshr_b32 s9, s7, 1')
    a('s_mul_i32 s10, s8, %d' % L_CB); a('s_add_u32 s10, s10, %d' % L_IMG)
    a('s_mul_i32 s11, s9, %d' % L_U0); a('s_add_u32 s11, s11, s10')
    for i in range(4): a('v_mov_b32 v%d, 0' % (4 + i))
    a('v_add_u32 v3, s11, v2')
    a('s_mov_b32 exec_lo, 0x0fffffff'); a('s_mov_b32 exec_hi, 0')
    a('ds_write_b128 v3, v[4:7] offset:4096')
    a('s_mov_b64 exec, -1')
    a('v_and_b32 v10, 15, v1'); a('v_lshrrev_b32 v11, 4, v1'); a('v_lshrrev_b32 v12, 1, v10'); a('v_and_b32 v13, 1, v10')
    a('v_lshlrev_b32 v3, 6, v12'); a('v_lshl_add_u32 v3, v11, 4, v3')
    a('v_mul_u32_u24 v4, %d, v13' % (L_U0 - L_U1)); a('v_add_u32 v3, v3, v4')
    a('s_lshl_b32 s64, s9, 8'); a('s_sub_u32 s65, s10, s64'); a('s_add_u32 s65, s65, %d' % (L_U0 + 283 * 16 - 64 * 59))
    a('v_sub_u32 v3, s65, v3')
    a('v_lshlrev_b32 v4, 3, v12'); a('v_lshlrev_b32 v5, 4, v11'); a('v_sub_u32 v4, v4, v5')
    a('v_mul_u32_u24 v5, %d, v13' % (L_KB + 62 * 8 - L_KA - 63 * 8)); a('v_sub_u32 v4, v4, v5')
    a('s_sub_u32 s65, s10, s64'); a('s_add_u32 s65, s65, %d' % (L_KB + 62 * 8 - 192))
    a('v_add_u32 v4, s65, v4')
    a('v_lshlrev_b32 v5, 8, v11'); a('v_lshl_add_u32 v5, v10, 3, v5')
    a('s_lshl_b32 s64, s8, 1'); a('s_add_u32 s64, s64, s9'); a('s_lshl_b32 s64, s64, 13'); a('s_add_u32 s64, s64, %d' % L_Y)
    a('v_add_u32 v5, s64, v5')
    a('v_mov_b32 v10, 1')
    a.wait(vm=0); stamp(4)
    a('s_mov_b64 exec, 1'); a('ds_add_u32 v9, v10 offset:%d' % L_UGO); a('s_mov_b64 exec, -1')
    u_poll_build(40)
    stamp(5)
    a.wait(lg=0); barrier(); stamp(6)
    if STAMP: a.wait(lg=0)
    ACC = 8; F0 = 40
    def Areg(buf, al): return F0 + buf * 64 + al * 4
    def Breg(buf, be): return F0 + buf * 64 + 32 + be * 4
    def loadA(buf, rp, al): a('ds_read_b128 %s, v3 offset:%d' % (vq(Areg(buf, al)), 64 * (59 - (rp + 8 * al))))
    def loadB(buf, rp, be):
        o = 64 * (8 * be + 3 - rp)
        a('ds_read_b64 %s, v4 offset:%d' % (vp(Breg(buf, be)), o)); a('ds_read_b64 %s, v4 offset:%d' % (vp(Breg(buf, be) + 2), o + 8))
    pairs = []
    for m in range(8):
        for o in range(m + 1):
            for (al, be) in ((m, o), (o, m)) if o != m else ((m, m),):
                if al + be <= 7: pairs.append((al, be))
    loads = []
    for m in range(8): loads.append(('A', m)); loads.append(('B', m))
    def do_load(buf, rp, it): (loadA if it[0] == 'A' else loadB)(buf, rp, it[1])
    def ywrite(tt):
        a('ds_write_b64 v5, %s offset:%d' % (vp(ACC + 4 * tt), 1024 * tt)); a('ds_write_b64 v5, %s offset:%d' % (vp(ACC + 4 * tt + 2), 1024 * tt + 128))
    for it in loads: do_load(0, 0, it)
    first = set()
    for rp in range(4):
        buf = rp & 1
        nxt = list(loads) if rp < 3 else []
        order = pairs if rp < 3 else sorted(pairs, key=lambda x: (x[0] + x[1]))
        lastof = {tt: max(i for i, (x, y) in enumerate(order) if x + y == tt) for tt in range(8)}
        for n, (al, be) in enumerate(order):
            t = al + be
            c = '0' if t not in first else vq(ACC + 4 * t)
            first.add(t)
            a('v_mfma_f32_16x16x32_bf16 %s, %s, %s, %s' % (vq(ACC + 4 * t), vq(Areg(buf, al)), vq(Breg(buf, be)), c))
            if nxt and n % 2 == 1: do_load(buf ^ 1, rp + 1, nxt.pop(0))
            if rp == 3:
                for tt in range(8):
                    if n == lastof[tt] + 8: ywrite(tt)
        if rp == 3:
            for tt in range(8):
                if lastof[tt] + 8 > 35: ywrite(tt)
    stamp(7)
    a('s_branch k_epi')
    a.label('k_notkv'); a.load(st0)
    a('s_load_dwordx16 s[32:47], s[0:1], 64')
    a('s_cmp_eq_u32 s7, 8'); a('s_cbranch_scc1 k_loader')
    st0b = a.save()
    a('v_and_b32 v10, 255, v0')
    a('s_and_b32 s8, s7, 1'); a('s_lshr_b32 s9, s7, 1'); a('s_sub_u32 s9, s9, 2')
    a('s_mul_i32 s10, s8, %d' % L_CB); a('s_add_u32 s10, s10, %d' % (L_IMG + L_KA))
    a('s_mul_i32 s11, s9, %d' % (L_KB - L_KA)); a('s_add_u32 s10, s10, s11')
    a('s_lshl_b32 s11, s6, 1'); a('s_add_u32 s11, s11, s8'); a('s_lshl_b32 s11, s11, 12')
    a('v_and_b32 v14, 1, v10'); a('v_lshrrev_b32 v11, 1, v10')
    a('s_mov_b32 s64, %d' % (4 * 6144)); a('v_mul_lo_u32 v12, v11, s64'); a('v_lshl_add_u32 v12, v14, 4, v12')
    a('v_lshlrev_b32 v11, 3, v11')
    a('v_lshrrev_b32 v15, 4, v10'); a('v_lshlrev_b32 v15, 6, v15'); a('v_lshl_add_u32 v15, v14, 5, v15')
    a('s_mul_i32 s68, s4, 24'); a('s_add_u32 s68, s68, s5')
    a('s_lshl_b32 s60, s68, 5')
    for i in range(1, 4): a('s_add_u32 s%d, s60, %d' % (60 + i, 6144 * i))
    for i in range(4): a('v_mov_b32 v%d, 0' % (4 + i))
    srd(48, CP, 1024)
    a('buffer_load_dwordx2 v[18:19], v11, s[48:51], 0 offen')
    a('s_lshl_b32 s64, s6, 2'); a('s_load_dword s69, %s, s64' % sp(SSMD))
    srd(52, SSMK, 2 * MiB); srd(56, WMOD, 3 * MiB); srd(48, WS, WS_SIZE, WSOFF)
    a('s_add_u32 s66, s10, 64'); a('s_mov_b32 m0, s66')
    a('s_lshl_b32 s66, s9, 2'); a('s_add_u32 s66, s66, s11')
    C = 20; E = 24; WM_ = 80
    stamp(1)
    a('s_cmp_lg_u32 s7, 4'); a('s_cbranch_scc1 k_h_noep')
    a('s_mov_b64 s[8:9], s[60:61]') if False else None
    srd(EPR, DBG, 256)
    epoch_issue(4, 72)
    epoch_finish(4, 72)
    a('ds_write_b64 v4, v[72:73] offset:%d' % L_EP)
    a.wait(lg=0)
    a.label('k_h_noep')
    barrier(); stamp(2)
    a('s_cmp_ge_u32 s5, 24'); a('s_cbranch_scc1 k_h_nowm')
    for i in range(4): a('buffer_load_dwordx4 %s, v12, s[56:59], s%d offen' % (vq(WM_ + 4 * i), 60 + i))
    a.label('k_h_nowm')
    a.vm = a.vm[:-4] + [sum(a.vm[-4:], [])]
    a.vm[-1] = []
    for i in range(4): a('buffer_load_dwordx4 v2, s[52:55], s66 offen offset:%d%s lds' % (1024 * i, NT))
    a('buffer_load_dword v9, v4, s[52:55], s11 offen')
    a('ds_read_b64 v[72:73], v4 offset:%d' % L_EP)
    a.wait(vm=5)
    unpack(C, 18, 2)
    a('s_mov_b32 s64, 0x%x' % (LOG2E | 0x80000000))
    silu_like(E, C, 4, 64)
    a('v_readfirstlane_b32 s%d, v72' % T0S); a('v_readfirstlane_b32 s%d, v73' % T1S)
    ACCM = 40; T = 52
    for r in range(4):
        unpack(T, WM_ + 4 * r, 4)
        for e in range(8):
            if r == 0: a('v_mul_f32 v%d, v%d, v%d' % (ACCM + e, E, T + e))
            else: a('v_fmac_f32 v%d, v%d, v%d' % (ACCM + e, E + r, T + e))
    for ctl in ('row_shr:2', 'row_shr:4', 'row_shr:8'):
        for e in range(8): a('v_add_f32_dpp v%d, v%d, v%d %s row_mask:0xf bank_mask:0xf' % (ACCM + e, ACCM + e, ACCM + e, ctl))
    a('s_mov_b32 exec_lo, 0xc000c000'); a('s_mov_b32 exec_hi, 0xc000c000')
    a('ds_write_b128 v15, %s offset:%d' % (vq(ACCM), L_MP)); a('ds_write_b128 v15, %s offset:%d' % (vq(ACCM + 4), L_MP + 16))
    a('s_mov_b64 exec, 1')
    a('v_mov_b32 v8, 1')
    a.wait(lg=0)
    a('ds_add_rtn_u32 v13, v4, v8 offset:%d' % L_MC)
    a('s_mov_b64 exec, -1')
    a('v_add_u32 v3, s10, v2')
    a('v_cmp_eq_u32 vcc, 3, v1'); a('s_cmp_eq_u32 s9, 1'); a('s_cselect_b64 s[10:11], vcc, 0')
    a('v_readfirstlane_b32 s64, v13')
    a('s_cmp_lg_u32 s64, 3'); a('s_cbranch_scc1 k_h_nopub')
    a('v_lshlrev_b32 v8, 2, v1')
    for i in range(16): a('ds_read_b32 v%d, v8 offset:%d' % (40 + i, L_MP + 64 * i))
    for st in (8, 4, 2, 1):
        for i in range(st): a('v_add_f32 v%d, v%d, v%d' % (40 + i, 40 + i, 40 + i + st))
    rb(40, 40)
    a('v_add_f32 v41, 1.0, v40'); rb(41, 41)
    a('s_lshr_b32 s64, s68, 5'); a('s_cmp_eq_u32 s64, 1'); a('s_cselect_b64 s[60:61], -1, 0'); a('s_cmp_eq_u32 s64, 4'); a('s_cselect_b64 s[60:61], -1, s[60:61]')
    a('v_cndmask_b32 v40, v40, v41, s[60:61]')
    a('v_mov_b32_dpp v41, v40 row_shl:1 row_mask:0xf bank_mask:0xf')
    a('v_lshrrev_b32 v40, 16, v40'); a('v_or_b32 v40, v40, v41')
    a('v_mov_b32_dpp v41, v40 row_shl:2 row_mask:0xf bank_mask:0xf')
    a('v_mov_b32 v42, s%d' % T0S); a('v_mov_b32 v43, s%d' % T1S)
    a('s_lshl_b32 s66, s6, 7'); a('s_add_u32 s66, s66, %d' % (WS_SM + SM_MOD))
    a('s_mov_b32 s64, 0')
    a.label('k_fillwait')
    a('ds_read_b32 v44, v4 offset:%d' % L_FILL)
    a('s_add_u32 s64, s64, 1')
    a.wait(lg=0)
    a('v_readfirstlane_b32 s65, v44')
    a('s_cmp_ge_u32 s65, 1'); a('s_cbranch_scc1 k_fillwait_ok')
    a('s_sleep 1')
    a('s_cmp_lt_u32 s64, %d' % (SPIN_LIMIT * 16)); a('s_cbranch_scc1 k_fillwait')
    a.label('k_fillwait_ok')
    a('s_mov_b32 exec_lo, 0x11111111'); a('s_mov_b32 exec_hi, 0')
    a('buffer_store_dwordx4 v[40:43], v8, s[48:51], s66 offen sc1')
    a('s_mov_b64 exec, -1')
    stamp(7)
    a.label('k_h_nopub')
    a.wait(vm=0)
    a('v_cndmask_b32 v7, v7, v9, s[10:11]')
    a('s_mov_b64 exec, 15')
    a('ds_write_b128 v3, v[4:7]')
    a('s_mov_b64 exec, -1')
    stamp(3)
    a('s_mov_b32 s64, 0')
    a.label('k_ugowait')
    a('ds_read_b32 v44, v4 offset:%d' % L_UGO)
    a('s_add_u32 s64, s64, 1')
    a.wait(lg=0)
    a('v_readfirstlane_b32 s65, v44')
    a('s_cmp_ge_u32 s65, 4'); a('s_cbranch_scc1 k_ugowait_ok')
    a('s_sleep 1')
    a('s_cmp_lt_u32 s64, %d' % (SPIN_LIMIT * 16)); a('s_cbranch_scc1 k_ugowait')
    a.label('k_ugowait_ok')
    stamp(4)
    u_poll_build(40, 48)
    stamp(5)
    srd(52, Q, 2 * MiB); a('s_sub_u32 s68, s13, 4096')
    a('s_lshl_b32 s64, s7, 10'); a('s_add_u32 s64, s64, %d' % L_XB); a('s_mov_b32 m0, s64'); a('s_sub_u32 s64, s64, 4096')
    a('buffer_load_dwordx4 v2, s[52:55], s13 offen lds')
    a('s_mov_b32 m0, s64'); a.nop(1)
    a('buffer_load_dwordx4 v2, s[52:55], s68 offen lds')
    srd(56, WS, WS_SIZE, WSOFF)
    a.wait(lg=0); barrier(); stamp(6)
    a('v_lshlrev_b32 v11, 7, v10')
    a('v_lshrrev_b32 v12, 5, v10'); a('v_mul_u32_u24 v12, 24, v12'); a('v_and_b32 v13, 31, v10'); a('v_add_lshl_u32 v12, v12, v13, 5')
    a('v_cmp_gt_u32 s[10:11], 24, v13')
    a('s_mov_b32 s8, %d' % (WS_SM + SM_MOD))
    def badm():
        for g in range(4):
            a('v_xor_b32 v%d, s%d, v%d' % (48 + 2 * g, T0S, 80 + 4 * g + 2)); a('v_xor_b32 v%d, s%d, v%d' % (49 + 2 * g, T1S, 80 + 4 * g + 3))
        a('v_or3_b32 v48, v48, v49, v50'); a('v_or3_b32 v51, v51, v52, v53'); a('v_or3_b32 v48, v48, v54, v55'); a('v_or_b32 v48, v48, v51')
        a('v_cmp_ne_u32 vcc, 0, v48')
    poll(['buffer_load_dwordx4 %s, v11, s[56:59], s8 offen offset:%d sc1' % (vq(80 + 4 * g), 16 * g) for g in range(4)], badm)
    a('s_mov_b64 exec, s[10:11]')
    for g in range(4): a('ds_write_b64 v12, %s offset:%d' % (vp(80 + 4 * g), L_MOD + 8 * g))
    a('s_mov_b64 exec, -1')
    a('s_branch k_epi')
    a.label('k_loader'); a.load(st0b)
    a('s_memrealtime s[8:9]')
    a('v_mov_b32 v3, 0')
    a('ds_write_b32 v3, v3 offset:%d' % L_FILL); a('ds_write_b32 v3, v3 offset:%d' % L_MC); a('ds_write_b32 v3, v3 offset:%d' % L_UGO)
    for i in range(4): a('v_mov_b32 v%d, -1' % (4 + i))
    srd(56, WS, WS_SIZE, WSOFF)
    a('s_cmp_lg_u32 s2, 0'); a('s_cbranch_scc1 k_ld_noep')
    srd(60, DBG, 256)
    a('s_lshl_b32 s9, s9, 16'); a('s_or_b32 s9, s9, 0x80000000')
    a('v_mov_b32 v8, s8'); a('v_mov_b32 v9, s9')
    a('s_mov_b64 exec, 1')
    a('buffer_store_dwordx2 v[8:9], v3, s[60:63], 0 offen sc1')
    a('s_mov_b64 exec, -1')
    a.label('k_ld_noep')
    a('s_lshl_b32 s8, s6, 13'); a('s_add_u32 s9, s8, %d' % WS_Z); a('s_add_u32 s10, s9, 4096'); a('s_add_u32 s66, s8, %d' % WS_H2); a('s_add_u32 s67, s66, 4096')
    for sr in (9, 10):
        for i in range(4): a('buffer_store_dwordx4 v[4:7], v2, s[56:59], s%d offen offset:%d sc1' % (sr, 1024 * i))
    a('s_lshl_b32 s8, s6, 7'); a('s_add_u32 s8, s8, %d' % (WS_SM + SM_KEY))
    a('s_lshl_b32 s9, s2, 7'); a('s_add_u32 s9, s9, %d' % (WS_SM + SM_ACT))
    a('s_mov_b64 exec, 0xff')
    a('buffer_store_dwordx4 v[4:7], v2, s[56:59], s8 offen sc1'); a('buffer_store_dwordx4 v[4:7], v2, s[56:59], s9 offen sc1')
    a('s_mov_b64 exec, -1')
    a('s_cmp_ge_u32 s2, 16'); a('s_cbranch_scc1 k_ld_nox1')
    a('s_lshl_b32 s8, s2, 10'); a('s_add_u32 s8, s8, %d' % (WS_SM + SM_X1))
    a('buffer_store_dwordx4 v[4:7], v2, s[56:59], s8 offen sc1')
    a.label('k_ld_nox1')
    srd(52, WMOD, 3 * MiB)
    a('v_lshrrev_b32 v10, 2, v1'); a('s_lshl_b32 s8, s5, 4'); a('v_add_u32 v10, s8, v10'); a('v_mul_u32_u24 v10, 6144, v10')
    a('v_and_b32 v11, 3, v1'); a('v_lshl_add_u32 v11, v11, 7, v10')
    a('v_and_b32 v12, 1, v1'); a('v_lshl_add_u32 v12, v12, 7, v10')
    a('s_mul_i32 s8, s4, 768')
    a('buffer_load_dword v13, v11, s[52:55], s8 offen')
    a('s_mov_b32 exec_lo, 0x33333333'); a('s_mov_b32 exec_hi, 0x33333333')
    a('buffer_load_dword v14, v12, s[52:55], s8 offen offset:512')
    a('s_mov_b64 exec, -1')
    stamp(1)
    a('s_cmp_ge_u32 s5, 3'); a('s_cbranch_scc1 k_ld_nocode')
    a('s_getpc_b64 s[8:9]')
    a.label('k_pc')
    a('s_sub_u32 s8, s8, k_pc-%s' % KN); a('s_subb_u32 s9, s9, 0')
    a('v_lshlrev_b32 v10, 7, v1'); a('s_lshl_b32 s10, s5, 13'); a('v_add_u32 v10, s10, v10')
    a('s_mov_b32 s10, k_code_end-%s' % KN); a('v_cmp_gt_u32 vcc, s10, v10'); a('s_and_b64 exec, exec, vcc')
    a('s_cbranch_execz k_ld_nocode2')
    a('global_load_dword v11, v10, s[8:9]')
    a.label('k_ld_nocode2'); a('s_mov_b64 exec, -1')
    a.label('k_ld_nocode')
    srd(48, WRP, 1024)
    a('s_mov_b32 m0, %d' % L_WR)
    a('buffer_load_dwordx4 v2, s[48:51], 0 offen lds')
    srd(52, Q, 2 * MiB)
    a('v_lshlrev_b32 v10, 7, v1'); a('s_lshl_b32 s8, s6, 13')
    a.wait(lg=0)
    stamp(2)
    barrier()
    a('buffer_load_dword v13, v10, s[52:55], s8 offen')
    srd(48, WG_, 512 * 3584); srd(52, WU_, 512 * 3584); srd(60, WD_, 1792 * 1024)
    a('v_lshrrev_b32 v10, 2, v1'); a('s_lshl_b32 s8, s5, 4'); a('v_add_u32 v10, s8, v10'); a('v_mul_u32_u24 v10, 3584, v10')
    a('v_and_b32 v11, 3, v1'); a('v_lshl_add_u32 v10, v11, 7, v10')
    a('s_mul_i32 s8, s4, 448'); a('s_and_b32 s8, s8, 0xffffff80')
    a('s_mul_i32 s9, s5, 56'); a('v_add_u32 v11, s9, v1'); a('v_lshlrev_b32 v11, 10, v11'); a('s_lshl_b32 s9, s4, 7')
    def touches():
        a('buffer_load_dword v12, v10, s[48:51], s8 offen' + NTW); a('buffer_load_dword v13, v10, s[52:55], s8 offen' + NTW)
        a('s_mov_b32 exec_hi, 0x00ffffff')
        a('buffer_load_dword v14, v11, s[60:63], s9 offen' + NTW)
        a('s_mov_b64 exec, -1')
    if WSCHED == 'B': touches()
    a.wait(vm=4 if WSCHED == 'B' else 1)
    a('v_mov_b32 v8, 1'); a('ds_write_b32 v3, v8 offset:%d' % L_FILL)
    stamp(3)
    a.vm = []
    a('s_mul_i32 s10, s4, 28'); a('s_add_u32 s10, s10, s5'); a('s_lshl_b32 s10, s10, 4')
    a('v_mul_u32_u24 v15, 3584, v1')
    barrier()
    assert OWNER
    if WSCHED == 'A':
        touches(); a.vm = []
        barrier()
    a('s_cmp_ge_u32 s5, 28'); a('s_cbranch_scc1 k_ld_nogu')
    a('s_mov_b32 s9, %d' % L_W); a('s_mov_b32 s11, %d' % (L_W + L_GU))
    for i in range(8 if WSCHED != 'N' else 0):
        a('s_mov_b32 m0, s9'); a('s_add_u32 s9, s9, 1024'); a('buffer_load_dwordx4 v15, s[48:51], s10 offen lds')
        a('s_mov_b32 m0, s11'); a('s_add_u32 s11, s11, 1024'); a('buffer_load_dwordx4 v15, s[52:55], s10 offen lds')
        a('s_add_u32 s10, s10, %d' % (64 * 3584))
    a.label('k_ld_nogu')
    stamp(4)
    if WSCHED != 'A': barrier()
    a.wait(vm=0); stamp(5)
    a('s_branch k_end')
    a.label('k_epi')
    a('s_lshl_b32 s64, s7, 10'); a('v_add_u32 v17, s64, v2')
    a('v_lshrrev_b32 v18, 1, v17'); a('v_sub_u32 v18, %d, v18' % (L_IMG + L_U1 + 4088))
    a('s_lshl_b32 s10, s6, 13'); a('s_add_u32 s10, s10, %d' % WS_Z)
    a.wait(lg=0)
    a('ds_read_b64 v[20:21], v18'); a('ds_read_b64 v[22:23], v18 offset:%d' % L_CB)
    a('s_lshl_b32 s8, s69, 16'); a('s_and_b32 s9, s69, s3')
    barrier(); stamp(8)
    for i in range(4): a('ds_read_b128 %s, v17 offset:%d' % (vq(32 + 4 * i), L_Y + 8192 * i))
    U = 48
    for ch in range(2):
        hi(U + 4 * ch + 0, 21 + 2 * ch); lo(U + 4 * ch + 1, 21 + 2 * ch); hi(U + 4 * ch + 2, 20 + 2 * ch); lo(U + 4 * ch + 3, 20 + 2 * ch)
    for ch in range(2):
        for i in range(4): a('v_mul_f32 v%d, s%d, v%d' % (U + 4 * ch + i, 8 + ch, U + 4 * ch + i))
    for i in range(8): rb(U + i, U + i)
    for ch in range(2):
        for i in (0, 2): pk('add', 32 + 8 * ch + i, 32 + 8 * ch + i, vp(36 + 8 * ch + i))
    for ch in range(2):
        for i in range(4): rb(32 + 8 * ch + i, 32 + 8 * ch + i)
    for ch in range(2):
        for i in (0, 2): pk('add', 32 + 8 * ch + i, 32 + 8 * ch + i, vp(U + 4 * ch + i))
    for i in range(4): a('v_cvt_pk_bf16_f32 v%d, v%d, v%d' % (56 + i, 32 + i, 40 + i))
    for i in range(4): a('v_min_u32 v%d, -2, v%d' % (56 + i, 56 + i))
    a('buffer_store_dwordx4 v[56:59], v17, s[56:59], s10 offen sc1')
    stamp(9)
    X = 24; T = 32; H = 40; Z = 48; S = 60; M = 64; WRr = 112; H2P = 128
    a('ds_read_b128 v[12:15], v17 offset:%d' % L_XB)
    a('ds_read_b128 v[20:23], v2 offset:%d' % L_WR)
    a('v_lshrrev_b32 v3, 1, v0'); a('v_and_b32 v4, 1, v0')
    a('v_lshlrev_b32 v5, 13, v3'); a('v_lshl_add_u32 v5, v4, 4, v5')
    a('v_mul_u32_u24 v6, %d, v4' % (4 * ZP)); a('v_lshl_add_u32 v6, v3, 2, v6'); a('v_add_u32 v6, %d, v6' % L_ZT)
    a('s_mul_i32 s64, s7, %d' % ZP); a('s_add_u32 s64, s64, %d' % L_ZT); a('v_add_u32 v7, s64, v2')
    a('v_lshlrev_b32 v19, 7, v3'); a('v_lshl_add_u32 v19, v4, 4, v19')
    a('s_lshl_b32 s11, s6, 5'); a('s_add_u32 s11, s11, %d' % WS_Z)
    MR = 120
    for i in range(6): a('ds_read_b128 %s, v2 offset:%d' % (vq(MR + 4 * i), L_MOD + 1024 * i))
    unpack(X, 12, 4)
    fin = ln_stats(X, T, 48, 50, 52, S)
    ln_norm(H, X, 50, 52, fin)
    for i in range(8): rb(H + i, H + i)
    unpack(WRr, 20, 4)
    for i in (1, 0): unpack(M + 8 * i, MR + 4 * i, 4)
    affine(H, M + 8, M + 0)
    for i in range(2, 6): unpack(M + 8 * i, MR + 4 * i, 4)
    a.wait(vm=0); stamp(10)
    poll(['buffer_load_dwordx4 v[12:15], v5, s[56:59], s11 offen sc1'], bad_sent([12, 13, 14, 15], 16))
    stamp(11)
    for i in range(4): a('ds_write_b32 v6, v%d offset:%d' % (12 + i, ZP * i))
    a.wait(lg=0); barrier()
    a('ds_read_b128 v[12:15], v7')
    unpack(Z, 12, 4)
    for i in range(0, 8, 2): pk('mul', H + i, H + i, vp(Z + i))
    for i in range(8): rb(H + i, H + i)
    for i in range(0, 8, 2): pk('mul', H + i, H + i, vp(M + 16 + i))
    for i in range(8): rb(H + i, H + i)
    for i in range(0, 8, 2): pk('add', X + i, X + i, vp(H + i))
    for i in range(8): rb(X + i, X + i)
    fin = ln_stats(X, T, 48, 50, 52, S)
    ln_norm(H, X, 50, 52, fin)
    for i in range(8): rb(H + i, H + i)
    affine(H, M + 32, M + 24)
    pk('mul', S, H, vp(WRr)); pk('mul', S + 2, H + 2, vp(WRr + 2))
    a('v_pk_fma_f32 %s, %s, %s, %s' % (vp(S), vp(H + 4), vp(WRr + 4), vp(S))); a('v_pk_fma_f32 %s, %s, %s, %s' % (vp(S + 2), vp(H + 6), vp(WRr + 6), vp(S + 2)))
    pk('add', S, S, vp(S + 2)); a('v_add_f32 v%d, v%d, v%d' % (S, S, S + 1))
    for n, ctl in enumerate(DPPS):
        a('v_add_f32_dpp v%d, v%d, v%d %s' % (S, S, S, ctl))
        if n < 4:
            a('v_cvt_pk_bf16_f32 v%d, v%d, v%d' % (H2P + n, H + 2 * n, H + 2 * n + 1)); a('v_min_u32 v%d, -2, v%d' % (H2P + n, H2P + n))
    rb(S, S)
    a('v_ashrrev_i32 v%d, 31, v%d' % (S + 1, S)); a('v_or_b32 v%d, 0x80000000, v%d' % (S + 1, S + 1)); a('v_xor_b32 v%d, v%d, v%d' % (S, S, S + 1))
    a('s_sub_u32 s64, 2047, s12'); a('v_and_b32 v%d, s3, v%d' % (S, S)); a('v_or_b32 v%d, s64, v%d' % (S, S))
    a('s_lshl_b32 s64, s7, 2'); a('v_mov_b32 v%d, s64' % (S + 1))
    if DBGSPAN: a('s_mov_b32 s68, s14')
    a('v_readlane_b32 s14, v%d, 63' % S)
    a('s_mov_b32 exec_lo, 0'); a('s_mov_b32 exec_hi, 0x80000000')
    a('ds_write_b32 v%d, v%d offset:%d' % (S + 1, S, L_KEYL))
    a('s_mov_b64 exec, -1')
    a('s_add_u32 s65, s13, %d' % WS_H2)
    a.wait(lg=0); barrier()
    a('s_cmp_lg_u32 s7, 0'); a('s_cbranch_scc1 k_nokey')
    a('v_and_b32 v%d, 1, v1' % (S + 1)); a('v_lshlrev_b32 v%d, 4, v%d' % (S + 1, S + 1))
    a('ds_read_b128 v[8:11], v%d offset:%d' % (S + 1, L_KEYL))
    a('s_lshl_b32 s64, s6, 7'); a('s_add_u32 s64, s64, %d' % (WS_SM + SM_KEY))
    a('s_mov_b64 exec, 0xff')
    a('buffer_store_dwordx4 v[8:11], v2, s[56:59], s64 offen sc1')
    a('s_mov_b64 exec, -1')
    a.label('k_nokey')
    if not OWNER: a('buffer_store_dwordx4 %s, v2, s[56:59], s65 offen sc1' % vq(H2P))
    stamp(12)
    OUTR = 120; X1P = 124
    for i in range(0, 8, 2): pk('mul', T + i, H + i, vp(M + 40 + i))
    for i in range(8): rb(T + i, T + i)
    for i in range(0, 8, 2): pk('add', T + i, T + i, vp(X + i))
    for i in range(4): a('v_cvt_pk_bf16_f32 v%d, v%d, v%d' % (OUTR + i, T + 2 * i, T + 2 * i + 1))
    for i in range(4): a('v_cvt_pk_bf16_f32 v%d, v%d, v%d' % (X1P + i, X + 2 * i, X + 2 * i + 1))
    for i in range(4): a('v_min_u32 v%d, -2, v%d' % (X1P + i, X1P + i))
    a('v_mov_b32 v20, 0'); a('v_lshlrev_b32 v21, 2, v1')
    a('ds_write_b32 v21, v20 offset:%d' % L_RANK); a('ds_write_b32 v21, v20 offset:%d' % L_SEG)
    a('ds_write_b32 v20, v20 offset:%d' % L_CNT); a('ds_write_b32 v20, v20 offset:%d' % L_FLAG)
    a('s_mov_b32 s11, %d' % (WS_SM + SM_KEY))
    a.wait(vm=0, lg=0)
    KEY = 12
    poll(['buffer_load_dwordx4 v[12:15], v19, s[56:59], s11 offen sc1'], bad_sent([12, 13, 14, 15], 16))
    stamp(13)
    T0 = 30
    a('v_max3_u32 v%d, v%d, v%d, v%d' % (T0, KEY, KEY + 1, KEY + 2)); a('v_max_u32 v%d, v%d, v%d' % (T0, T0, KEY + 3))
    wave_reduce('v_max_u32', [T0])
    a('s_lshl_b32 s64, s7, 2'); a('v_mov_b32 v%d, s64' % (T0 + 1))
    a('s_mov_b32 exec_lo, 0'); a('s_mov_b32 exec_hi, 0x80000000')
    a('ds_write_b32 v%d, v%d offset:%d' % (T0 + 1, T0, L_WM))
    a('s_mov_b64 exec, -1')
    a.wait(lg=0); barrier()
    a('ds_read_b128 %s, v20 offset:%d' % (vq(T0 + 4), L_WM)); a('ds_read_b128 %s, v20 offset:%d' % (vq(T0 + 8), L_WM + 16))
    a('v_min3_u32 v%d, v%d, v%d, v%d' % (T0, T0 + 4, T0 + 5, T0 + 6)); a('v_min3_u32 v%d, v%d, v%d, v%d' % (T0 + 1, T0 + 8, T0 + 9, T0 + 10))
    a('v_min3_u32 v%d, v%d, v%d, v%d' % (T0, T0, T0 + 7, T0 + 11)); a('v_min_u32 v%d, v%d, v%d' % (T0, T0, T0 + 1))
    MS = 48
    for j in range(4): a('v_cmp_ge_u32 %s, v%d, v%d' % (sp(MS + 2 * j), KEY + j, T0))
    for j in range(4): a('s_bcnt1_i32_b64 s%d, %s' % (60 + j, sp(MS + 2 * j)))
    a('s_add_u32 s61, s61, s60'); a('s_add_u32 s62, s62, s61'); a('s_add_u32 s63, s63, s62')
    a('s_lshl_b32 s64, s7, 3')
    a('s_cmp_gt_u32 s63, 8'); a('s_cbranch_scc1 k_tk_over')
    for j in range(4):
        a('v_mbcnt_lo_u32_b32 v%d, s%d, 0' % (T0 + 4 + j, MS + 2 * j)); a('v_mbcnt_hi_u32_b32 v%d, s%d, v%d' % (T0 + 4 + j, MS + 1 + 2 * j, T0 + 4 + j))
        if j > 0: a('s_add_u32 s65, s64, s%d' % (60 + j - 1))
        a('v_add_lshl_u32 v%d, v%d, s%d, 2' % (T0 + 4 + j, T0 + 4 + j, 64 if j == 0 else 65))
    for j in range(4):
        a('s_mov_b64 exec, %s' % sp(MS + 2 * j))
        a('ds_write_b32 v%d, v%d offset:%d' % (T0 + 4 + j, KEY + j, L_SEG))
    a('s_mov_b64 exec, -1')
    a('s_branch k_tk_b')
    a.label('k_tk_over')
    a('v_mov_b32 v%d, 1' % (T0 + 4)); a('ds_write_b32 v20, v%d offset:%d' % (T0 + 4, L_FLAG))
    a.label('k_tk_b')
    a('s_lshl_b32 s64, s7, 5'); a('v_mov_b32 v%d, s64' % (T0 + 1))
    a.wait(lg=0); barrier()
    a('ds_read_b32 v%d, v20 offset:%d' % (T0 + 2, L_FLAG))
    a('ds_read_b32 v%d, v21 offset:%d' % (T0 + 3, L_SEG))
    a('ds_read_b128 %s, v%d offset:%d' % (vq(T0 + 4), T0 + 1, L_SEG)); a('ds_read_b128 %s, v%d offset:%d' % (vq(T0 + 8), T0 + 1, L_SEG + 16))
    a('v_mov_b32 v%d, 0' % (T0 + 12)); a('v_mov_b32 v%d, 0' % (T0 + 13))
    a('v_readfirstlane_b32 s64, v%d' % (T0 + 2))
    a('s_cmp_lg_u32 s64, 0'); a('s_cbranch_scc1 k_tk_slow')
    for hh in range(2):
        for e in range(4): a('v_cmp_gt_u32 %s, v%d, v%d' % (sp(MS + 2 * e), T0 + 4 + 4 * hh + e, T0 + 3))
        for e in range(4): a('v_addc_co_u32 v%d, vcc, 0, v%d, %s' % (T0 + 12 + (e & 1), T0 + 12 + (e & 1), sp(MS + 2 * e)))
    a('v_add_u32 v%d, v%d, v%d' % (T0 + 12, T0 + 12, T0 + 13))
    a('ds_add_u32 v21, v%d offset:%d' % (T0 + 12, L_RANK))
    a('v_cmp_ne_u32 s[64:65], 0, v%d' % (T0 + 3))
    a.wait(lg=0); barrier()
    a('ds_read_b32 v%d, v21 offset:%d' % (T0 + 12, L_RANK))
    a('v_cmp_gt_u32 vcc, 8, v%d' % (T0 + 12)); a('v_lshlrev_b32 v%d, 2, v%d' % (T0 + 12, T0 + 12))
    a('s_and_b64 exec, vcc, s[64:65]')
    a('ds_write_b32 v%d, v%d offset:%d' % (T0 + 12, T0 + 3, L_SEL))
    a('s_mov_b64 exec, -1')
    a.wait(lg=0)
    a('s_branch k_tk_done')
    a.label('k_tk_slow')
    a.wait(lg=0)
    for j in range(4): a('v_cmp_ge_u32 %s, v%d, v%d' % (sp(MS + 2 * j), KEY + j, T0))
    a('v_mov_b32 v%d, s63' % (T0 + 1))
    a('s_mov_b64 exec, 1')
    a('ds_add_rtn_u32 v%d, v20, v%d offset:%d' % (T0 + 3, T0 + 1, L_CNT))
    a('s_mov_b64 exec, -1')
    a('v_readfirstlane_b32 s64, v%d' % (T0 + 3))
    for j in range(4):
        a('v_mbcnt_lo_u32_b32 v%d, s%d, 0' % (T0 + 4 + j, MS + 2 * j)); a('v_mbcnt_hi_u32_b32 v%d, s%d, v%d' % (T0 + 4 + j, MS + 1 + 2 * j, T0 + 4 + j))
        if j > 0: a('s_add_u32 s65, s64, s%d' % (60 + j - 1))
        a('v_add_lshl_u32 v%d, v%d, s%d, 2' % (T0 + 4 + j, T0 + 4 + j, 64 if j == 0 else 65))
        a('s_mov_b64 exec, %s' % sp(MS + 2 * j))
        a('ds_write_b32 v%d, v%d offset:%d' % (T0 + 4 + j, KEY + j, L_LIST))
        a('s_mov_b64 exec, -1')
    a.wait(lg=0); barrier()
    a('ds_read_b32 v%d, v20 offset:%d' % (T0, L_CNT))
    a('v_readfirstlane_b32 s60, v%d' % T0)
    a('s_mov_b32 s61, 0')
    a.label('k_tk_chunk')
    a('v_add_u32 v%d, s61, v0' % (T0 + 1)); a('v_lshlrev_b32 v%d, 2, v%d' % (T0 + 3, T0 + 1))
    a('ds_read_b32 v%d, v%d offset:%d' % (T0, T0 + 3, L_LIST))
    a('v_mov_b32 v%d, 0' % (T0 + 3)); a('s_mov_b32 s62, 0'); a('v_mov_b32 v%d, 0' % (T0 + 2))
    a.label('k_tk_scan')
    a('ds_read_b128 %s, v%d offset:%d' % (vq(T0 + 4), T0 + 2, L_LIST))
    a('s_sub_u32 s63, s60, s62')
    for e in range(4):
        a('v_cmp_gt_u32 vcc, v%d, v%d' % (T0 + 4 + e, T0))
        a('s_cmp_gt_u32 s63, %d' % e); a('s_cselect_b64 vcc, vcc, 0')
        a('v_addc_co_u32 v%d, vcc, 0, v%d, vcc' % (T0 + 3, T0 + 3))
    a('v_add_u32 v%d, 16, v%d' % (T0 + 2, T0 + 2))
    a('s_add_u32 s62, s62, 4'); a('s_cmp_lt_u32 s62, s60'); a('s_cbranch_scc1 k_tk_scan')
    a('v_cmp_gt_u32 vcc, s60, v%d' % (T0 + 1)); a('v_cmp_gt_u32 s[64:65], 8, v%d' % (T0 + 3)); a('s_and_b64 vcc, vcc, s[64:65]')
    a('v_lshlrev_b32 v%d, 2, v%d' % (T0 + 3, T0 + 3))
    a('s_mov_b64 exec, vcc')
    a('ds_write_b32 v%d, v%d offset:%d' % (T0 + 3, T0, L_SEL))
    a('s_mov_b64 exec, -1')
    a('s_add_u32 s61, s61, 512'); a('s_cmp_lt_u32 s61, s60'); a('s_cbranch_scc1 k_tk_chunk')
    a.wait(lg=0); barrier()
    a.label('k_tk_done')
    stamp(14)
    a('v_and_b32 v4, 7, v1'); a('v_lshlrev_b32 v5, 2, v4')
    a('ds_read_b32 v7, v5 offset:%d' % L_SEL)
    a('v_lshrrev_b32 v6, 4, v1')
    srd(48, OUT, 2 * MiB)
    a('v_and_b32 v8, 0x7ff, v7'); a('v_sub_u32 v8, 2047, v8'); a('v_lshlrev_b32 v8, 10, v8')
    a('v_cmp_eq_u32 vcc, s14, v7'); a('s_and_b32 s60, vcc_lo, 0xff')
    def own_row_store(tag):
        a('s_cmp_lg_u32 s60, 0'); a('s_cbranch_scc1 k_own_%s' % tag)
        a('buffer_store_dwordx4 %s, v2, s[48:51], s13 offen' % vq(OUTR))
        a.label('k_own_%s' % tag)
    a('s_cmp_eq_u32 s60, 0'); a('s_cbranch_scc1 k_nosel')
    a('s_ff1_i32_b32 s61, s60'); a('s_lshl_b32 s61, s61, 11'); a('s_add_u32 s61, s61, %d' % (WS_SM + SM_X1))
    if OWNER: a('buffer_store_dwordx4 %s, v2, s[56:59], s61 offen sc1' % vq(H2P))
    a('buffer_store_dwordx4 %s, v2, s[56:59], s61 offen offset:1024 sc1' % vq(X1P))
    a.label('k_nosel')
    a('s_cmp_ge_u32 s5, 28'); a('s_cbranch_scc1 k_ffn2')
    st1 = a.save()
    if OWNER:
        a('v_lshlrev_b32 v9, 11, v4'); a('v_lshl_add_u32 v9, v6, 4, v9')
        a('s_lshl_b32 s64, s7, 7'); a('s_add_u32 s11, s64, %d' % (WS_SM + SM_X1))
    else:
        a('v_lshl_add_u32 v9, v6, 4, v8')
        a('s_lshl_b32 s64, s7, 7'); a('s_add_u32 s11, s64, %d' % WS_H2)
    a('v_and_b32 v20, 3, v1'); a('v_bfe_u32 v21, v1, 2, 2')
    a('v_lshlrev_b32 v22, 7, v6'); a('v_lshl_add_u32 v22, v21, 4, v22')
    a('v_and_b32 v23, 1, v20'); a('v_lshl_add_u32 v22, v23, 3, v22')
    a('v_lshrrev_b32 v23, 1, v20'); a('v_mul_u32_u24 v23, %d, v23' % L_GU); a('v_add_u32 v22, v22, v23')
    a('s_lshl_b32 s64, s7, 10'); a('s_add_u32 s64, s64, %d' % L_W); a('v_add_u32 v22, s64, v22')
    for i in range(2):
        for hh in range(2): a('ds_read_b64_tr_b16 %s, v22 offset:%d' % (vp(24 + 4 * i + 2 * hh), 512 * i + 64 * hh))
    poll(['buffer_load_dwordx4 v[12:15], v9, s[56:59], s11 offen sc1', 'buffer_load_dwordx4 v[16:19], v9, s[56:59], s11 offen offset:64 sc1'],
         bad_sent(list(range(12, 20)), 36), exec_mask=0x00ff00ff)
    a('v_mfma_f32_16x16x32_bf16 v[32:35], v[24:27], v[12:15], 0')
    a('v_mfma_f32_16x16x32_bf16 v[32:35], v[28:31], v[16:19], v[32:35]')
    a('v_lshlrev_b32 v36, 4, v0')
    own_row_store('a')
    a.nop(5)
    a('ds_write_b128 v36, v[32:35] offset:%d' % L_P)
    a.wait(lg=0); barrier()
    a('s_cmp_lg_u32 s7, 0'); a('s_cbranch_scc1 k_end')
    for w in range(8): a('ds_read_b128 %s, v36 offset:%d' % (vq(40 + 4 * w), L_P + 1024 * w))
    a('s_mov_b32 s64, 0x%x' % (LOG2E | 0x80000000))
    a('s_mul_i32 s65, s4, 28'); a('s_add_u32 s65, s65, s5'); a('s_lshl_b32 s65, s65, 7'); a('s_add_u32 s65, s65, %d' % (WS_SM + SM_ACT))
    a('v_and_b32 v73, 15, v1'); a('v_lshlrev_b32 v74, 4, v73'); a('v_lshl_add_u32 v72, v6, 3, v74')
    for st in (16, 8, 4):
        for i in range(0, st, 2): pk('add', 40 + i, 40 + i, vp(40 + i + st))
    for i in range(4): rb(40 + i, 40 + i)
    for i in range(4): a('v_mov_b32 v%d, v%d' % (44 + i, 40 + i))
    silu_like(52, 40, 4, 64)
    for i in range(4): a('v_permlane32_swap_b32 v%d, v%d' % (44 + i, 48 + i))
    for i in range(4): a('v_mul_f32 v%d, v%d, v%d' % (52 + i, 52 + i, 48 + i))
    a('v_cvt_pk_bf16_f32 v56, v52, v53'); a('v_cvt_pk_bf16_f32 v57, v54, v55')
    a('v_min_u32 v56, -2, v56'); a('v_min_u32 v57, -2, v57')
    a('s_mov_b32 exec_lo, 0x00ff00ff'); a('s_mov_b32 exec_hi, 0')
    a('buffer_store_dwordx2 v[56:57], v72, s[56:59], s65 offen sc1')
    a('s_branch k_end')
    a.label('k_ffn2'); a.load(st1)
    own_row_store('b')
    a('s_lshl_b32 s8, s4, 2'); a('s_add_u32 s8, s8, s5'); a('s_sub_u32 s8, s8, 28')
    a('s_lshl_b32 s9, s8, 5')
    srd(52, WD_, 1792 * 1024)
    a('v_lshrrev_b32 v15, 1, v1')
    a('v_and_b32 v16, 0x13, v15'); a('v_bfe_u32 v17, v15, 2, 1'); a('v_lshl_or_b32 v16, v17, 3, v16'); a('v_bfe_u32 v17, v15, 3, 1'); a('v_lshl_or_b32 v16, v17, 2, v16')
    a('v_lshlrev_b32 v15, 10, v16'); a('v_and_b32 v16, 1, v1'); a('v_lshl_add_u32 v15, v16, 4, v15')
    a('s_mul_i32 s64, s7, 7168'); a('s_add_u32 s64, s64, %d' % L_W)
    a('s_mul_i32 s65, s7, %d' % (224 * 1024)); a('s_add_u32 s65, s65, s9'); a('s_mov_b32 s10, s64')
    for i in range(7 if WSCHED != 'N' else 0):
        a('s_mov_b32 m0, s10'); a('s_add_u32 s10, s10, 1024'); a('buffer_load_dwordx4 v15, s[52:55], s65 offen lds'); a('s_add_u32 s65, s65, 32768')
    a('v_and_b32 v20, 3, v1'); a('v_bfe_u32 v21, v1, 2, 2')
    a('v_lshrrev_b32 v22, 1, v6'); a('v_lshlrev_b32 v22, 9, v22'); a('v_and_b32 v23, 1, v6'); a('v_lshl_add_u32 v22, v23, 7, v22')
    a('v_lshl_add_u32 v22, v21, 5, v22'); a('v_lshl_add_u32 v22, v20, 3, v22')
    a('v_add_u32 v22, s64, v22')
    a('v_lshlrev_b32 v9, 7, v6'); a('v_lshl_add_u32 v9, v4, 4, v9')
    a('s_mul_i32 s11, s7, 3584'); a('s_add_u32 s11, s11, %d' % (WS_SM + SM_ACT))
    a('v_lshl_add_u32 v8, v6, 3, v8')
    a('s_cmp_lg_u32 s7, 0'); a('s_cbranch_scc1 k_f2_act')
    a('v_lshlrev_b32 v10, 11, v4'); a('v_lshl_add_u32 v10, v6, 3, v10')
    a('s_add_u32 s61, s9, %d' % WS_H2); a('s_add_u32 s62, s9, %d' % (WS_SM + SM_X1))
    a('v_lshlrev_b32 v11, 3, v6'); a('v_add_u32 v11, s9, v11')
    a('ds_read_b64 v[16:17], v11 offset:%d' % (L_MOD + 5 * 1024))
    a('v_and_b32 v30, s3, v7'); a('v_ashrrev_i32 v31, 31, v30'); a('v_not_b32 v31, v31'); a('v_or_b32 v31, 0x80000000, v31'); a('v_xor_b32 v30, v30, v31'); a('v_and_b32 v30, s3, v30')
    a('s_mov_b32 s64, 0x%x' % (LOG2E | 0x80000000))
    silu_like(31, 30, 1, 64, mulx=False)
    unpack(108, 16, 2)
    poll(['buffer_load_dwordx2 v[12:13], v10, s[56:59], s62 offen sc1' if OWNER else 'buffer_load_dwordx2 v[12:13], v8, s[56:59], s61 offen sc1',
          'buffer_load_dwordx2 v[14:15], v10, s[56:59], s62 offen offset:1024 sc1'], bad_sent([12, 13, 14, 15], 29))
    unpack(112, 12, 4)
    a.label('k_f2_act')
    a.wait(vm=0, lg=0)
    for i in range(7):
        for hh in range(2): a('ds_read_b64_tr_b16 %s, v22 offset:%d' % (vp(64 + 4 * i + 2 * hh), 1024 * i + 256 * hh))
    poll(['buffer_load_dwordx4 %s, v9, s[56:59], s11 offen offset:%d sc1' % (vq(32 + 4 * i), 512 * i) for i in range(7)], bad_sent(list(range(32, 60)), 29), exec_mask=0x00ff00ff)
    for i in range(7):
        a('v_mfma_f32_16x16x32_bf16 v[24:27], %s, %s, %s' % (vq(64 + 4 * i), vq(32 + 4 * i), '0' if i == 0 else 'v[24:27]'))
    a('v_lshlrev_b32 v28, 4, v0')
    a('ds_write_b128 v28, v[24:27] offset:%d' % L_P)
    a.wait(lg=0); barrier()
    a('s_cmp_lg_u32 s7, 0'); a('s_cbranch_scc1 k_end')
    for w in range(8): a('ds_read_b128 %s, v28 offset:%d' % (vq(40 + 4 * w), L_P + 1024 * w))
    for st in (16, 8, 4):
        for i in range(0, st, 2): pk('add', 40 + i, 40 + i, vp(40 + i + st))
    for i in range(4): rb(40 + i, 40 + i)
    for i in range(4): a('v_mul_f32 v%d, v%d, v31' % (40 + i, 40 + i))
    for i in range(4): rb(40 + i, 40 + i)
    for i in (0, 2): pk('add', 40 + i, 40 + i, vp(112 + i))
    for i in range(4): rb(40 + i, 40 + i)
    for i in (0, 2): pk('mul', 40 + i, 40 + i, vp(108 + i))
    for i in range(4): rb(40 + i, 40 + i)
    for i in (0, 2): pk('add', 40 + i, 40 + i, vp(116 + i))
    a('v_cvt_pk_bf16_f32 v44, v40, v41'); a('v_cvt_pk_bf16_f32 v45, v42, v43')
    a('s_mov_b32 exec_lo, 0x00ff00ff'); a('s_mov_b32 exec_hi, 0x00ff00ff')
    a('buffer_store_dwordx2 v[44:45], v8, s[48:51], s9 offen')
    if DBGSPAN:
        a('s_memrealtime s[64:65]'); a.wait(lg=0)
        a('s_sub_u32 s64, s64, s68'); a('v_mov_b32 v1, s64'); a('s_and_b32 s8, s8, 7'); a('s_lshl_b32 s8, s8, 2'); a('s_add_u32 s8, s8, 8')
        srd(52, DBG, 256)
        a('v_mov_b32 v2, 0'); a('s_mov_b64 exec, 1')
        a('buffer_store_dword v1, v2, s[52:55], s8 offen')
    a.label('k_end')
    if STAMP:
        a('s_memrealtime s[%d:%d]' % (SST + 30, SST + 31))
        a('s_mov_b64 exec, -1')
        a.wait(vm=0, lg=0)
        for i in range(16): a('v_writelane_b32 v2, s%d, %d' % (SST + 2 * i, i))
        a('s_mul_i32 s5, s2, 9'); a('s_add_u32 s5, s5, s7'); a('s_lshl_b32 s5, s5, 6')
        srd(8, WS, MiB, WS_STAMP)
        a('v_and_b32 v1, 63, v0'); a('v_lshlrev_b32 v1, 2, v1')
        a('s_mov_b64 exec, 0xffff')
        a('buffer_store_dword v2, v1, s[8:11], s5 offen')
    a.label('k_exit')
    a('s_endpgm')
    a.label('k_code_end')

def main(outpath):
    hdr = open('cdna_kernels/%s.s.ref' % NAME).read().split('\n')
    out = [l for l in hdr if l.startswith(';') and '@launch' not in l]
    out.append('; @launch grid=(256,1,1) block=(576,1,1) lds=%d' % LDS_SIZE)
    out.append('.amdgcn_target "amdgcn-amd-amdhsa--gfx950"'); out.append('.text')
    gen()
    body = a.text()
    m = max([int(x) for x in re.findall(r'\bv(\d+)\b', body)] + [int(x) for x in re.findall(r'\bv\[\d+:(\d+)\]', body)])
    vg = (m + 1 + 7) // 8 * 8
    assert vg <= 168
    out.append(body)
    out.append('.section .rodata,"a"')
    out.append('.p2align 6')
    out.append('.amdhsa_kernel %s' % KN)
    out.append('  .amdhsa_next_free_vgpr %d' % vg); out.append('  .amdhsa_next_free_sgpr 102'); out.append('  .amdhsa_accum_offset %d' % vg)
    out.append('  .amdhsa_group_segment_fixed_size 0'); out.append('  .amdhsa_kernarg_size 128')
    out.append('  .amdhsa_user_sgpr_count 2'); out.append('  .amdhsa_user_sgpr_kernarg_segment_ptr 1'); out.append('  .amdhsa_system_sgpr_workgroup_id_x 1')
    out.append('  .amdhsa_float_denorm_mode_32 3')
    out.append('.end_amdhsa_kernel')
    open(outpath, 'w').write('\n'.join(out) + '\n')
    print('wrote', outpath, 'vgprs', m + 1, 'nops', a.nops_inserted, 'LDS', LDS_SIZE)

if __name__ == '__main__':
    main(sys.argv[1] if len(sys.argv) > 1 else 'cdna_kernels/%s.s' % NAME)
```

```python
import sys, os, re
from asmlib import Asm

NAME = 'adaLN_cond__ssm_conv_h3__moe_arch_mod__prompt'
KN = NAME + '_kernel'
MiB = 1 << 20
WS_U = 0
WS_Z = 4 * MiB
WS_H2 = 6 * MiB
WS_SM = 8 * MiB
SM_MOD = 0
SM_KEY = 32768
SM_ACT = 65536
SM_X1 = 98304
SM_SPEC = 131072
WS_SIZE = 9 * MiB
WS_STAMP = 14 * MiB
STAMP = int(os.environ.get('STAMP', '0'))
SPIN_LIMIT = 1 << 14
DBGSPAN = int(os.environ.get('DBGSPAN', '0'))
PACE = int(os.environ.get('PACE', '1'))
PRIO = int(os.environ.get('PRIO', '1'))
WSCHED = os.environ.get('WSCHED', 'D')
NT = ' nt' if int(os.environ.get('NT', '0')) else ''
NTW = ' nt' if int(os.environ.get('NTW', '0')) else ''
WSOFF = int(os.environ.get('WSOFF', '0')) * MiB
OWNER = int(os.environ.get('OWNER', '1'))
LOG2E = 0x3fb8aa3b
a = Asm()
SST = 70
SPEC = int(os.environ.get('SPEC', '1'))
TAILST = int(os.environ.get('TAILST', '0'))
def tstamp(i):
    if STAMP and TAILST: a('s_memrealtime s[%d:%d]' % (SST + 2 * i, SST + 1 + 2 * i))
def stamp(i):
    if TAILST and 1 <= i <= 6: return
    if STAMP: a('s_memrealtime s[%d:%d]' % (SST + 2 * i, SST + 1 + 2 * i))
def srd(s, ptr, size, add=0):
    if add:
        a('s_add_u32 s%d, s%d, 0x%x' % (s, ptr, add)); a('s_addc_u32 s%d, s%d, 0' % (s + 1, ptr + 1))
    else:
        a('s_mov_b32 s%d, s%d' % (s, ptr)); a('s_mov_b32 s%d, s%d' % (s + 1, ptr + 1))
    a('s_mov_b32 s%d, 0x%x' % (s + 2, size)); a('s_mov_b32 s%d, 0x00020000' % (s + 3))
MASK = 3
def lo(d, s): a('v_lshlrev_b32 v%d, 16, v%d' % (d, s))
def hi(d, s): a('v_and_b32 v%d, s%d, v%d' % (d, MASK, s))
def rb(d, s): a('v_cvt_pk_bf16_f32 v%d, 0, v%d' % (d, s))
def pk(op, d, x, y, extra=''): a('v_pk_%s_f32 v[%d:%d], v[%d:%d], %s %s' % (op, d, d + 1, x, x + 1, y, extra))
def vp(r): return 'v[%d:%d]' % (r, r + 1)
def vq(r): return 'v[%d:%d]' % (r, r + 3)
def sp(r): return 's[%d:%d]' % (r, r + 1)
def sq(r): return 's[%d:%d]' % (r, r + 3)
def unpack(d, s, n):
    for i in range(n): lo(d + 2 * i, s + i); hi(d + 2 * i + 1, s + i)
DPPS = ('row_shr:1 row_mask:0xf bank_mask:0xf', 'row_shr:2 row_mask:0xf bank_mask:0xf', 'row_shr:4 row_mask:0xf bank_mask:0xf',
        'row_shr:8 row_mask:0xf bank_mask:0xf', 'row_bcast:15 row_mask:0xa bank_mask:0xf', 'row_bcast:31 row_mask:0xc bank_mask:0xf')
def wave_reduce(op, regs):
    for ctl in DPPS:
        for r in regs: a('%s_dpp v%d, v%d, v%d %s' % (op, r, r, r, ctl))
def silu_like(D, X, n, sneg, mulx=True):
    for i in range(n): a('v_mul_f32 v%d, s%d, v%d' % (D + i, sneg, X + i))
    for i in range(n): a('v_exp_f32 v%d, v%d' % (D + i, D + i))
    for i in range(n): a('v_add_f32 v%d, 1.0, v%d' % (D + i, D + i))
    for i in range(n): a('v_rcp_f32 v%d, v%d' % (D + i, D + i))
    if mulx:
        for i in range(n): a('v_mul_f32 v%d, v%d, v%d' % (D + i, D + i, X + i))
    for i in range(n): rb(D + i, D + i)
def barrier(): a('s_barrier')

L_WM = 0; L_KEYL = 32; L_SEL = 64; L_RANK = 128; L_SEG = 384; L_CNT = 640; L_FLAG = 644; L_KVA = 648; L_IMGC = 652; L_UGO = 656; L_UST = 660; L_EP = 664; L_YC = 672; L_MR = 676; L_QD = 680; L_MP = 704
L_WR = 1024; L_NB = 2048; L_XB = L_NB + 8192; L_MOD = L_XB + 8192; L_Y = L_MOD + 6144 + 2048
L_LIST = L_Y; L_P = L_Y + 8192
L_IMG = L_Y + 32768
L_U1 = 0; L_U0 = 4576; L_KA = 9216; L_KB = 13440; L_CB = 17664
assert L_IMG % 256 == 0
L_ZT = L_IMG + L_KA; ZP = 1040
L_W = L_IMG + 2 * L_CB; L_GU = 8256
LDS_SIZE = L_W + 57344
Q, KP, VP_, SHK, SSMK, SSMD, WRP = 16, 18, 20, 22, 24, 26, 30
WG_, WU_, WD_, CP, WMOD, OUT, DBG, WS = 32, 34, 36, 38, 40, 42, 44, 46
T0S, T1S = 14, 15

def ln_stats(X, T, sC, sMB, sRI, vS):
    a('v_readfirstlane_b32 s%d, v%d' % (sC, X))
    for i in range(0, 8, 2): pk('add', T + i, X + i, sp(sC), 'op_sel_hi:[1,0] neg_lo:[0,1] neg_hi:[0,1]')
    pk('add', vS, T, vp(T + 2)); pk('mul', vS + 2, T, vp(T))
    pk('add', T, T + 4, vp(T + 6))
    a('v_pk_fma_f32 %s, %s, %s, %s' % (vp(vS + 2), vp(T + 2), vp(T + 2), vp(vS + 2)))
    pk('mul', T + 2, T + 4, vp(T + 4))
    pk('add', vS, vS, vp(T))
    a('v_pk_fma_f32 %s, %s, %s, %s' % (vp(T + 2), vp(T + 6), vp(T + 6), vp(T + 2)))
    a('v_add_f32 v%d, v%d, v%d' % (vS, vS, vS + 1))
    pk('add', vS + 2, vS + 2, vp(T + 2))
    a('v_add_f32 v%d, v%d, v%d' % (vS + 1, vS + 2, vS + 3))
    wave_reduce('v_add_f32', [vS, vS + 1])
    a('v_mul_f32 v%d, 0x3b000000, v%d' % (vS, vS)); a('v_mul_f32 v%d, 0x3b000000, v%d' % (vS + 1, vS + 1))
    a('v_fma_f32 v%d, -v%d, v%d, v%d' % (vS + 1, vS, vS, vS + 1))
    a('v_add_f32 v%d, s%d, v%d' % (vS, sC, vS))
    a('v_max_f32 v%d, 0, v%d' % (vS + 1, vS + 1))
    rb(vS, vS); rb(vS + 1, vS + 1)
    a('v_readlane_b32 s%d, v%d, 63' % (sMB, vS))
    a('v_add_f32 v%d, 0x3727c5ac, v%d' % (vS + 1, vS + 1)); rb(vS + 1, vS + 1)
    a('v_sqrt_f32 v%d, v%d' % (vS + 1, vS + 1)); rb(vS + 1, vS + 1)
    a('v_rcp_f32 v%d, v%d' % (vS + 1, vS + 1))
    return lambda: a('v_readlane_b32 s%d, v%d, 63' % (sRI, vS + 1))
def ln_norm(D, X, sMB, sRI, fin):
    for i in range(0, 8, 2): pk('add', D + i, X + i, sp(sMB), 'op_sel_hi:[1,0] neg_lo:[0,1] neg_hi:[0,1]')
    for i in range(8): rb(D + i, D + i)
    fin()
    for i in range(0, 8, 2): pk('mul', D + i, D + i, sp(sRI), 'op_sel_hi:[1,0]')
def affine(D, C1, SH):
    for i in range(0, 8, 2): pk('mul', D + i, D + i, vp(C1 + i))
    for i in range(8): rb(D + i, D + i)
    for i in range(0, 8, 2): pk('add', D + i, D + i, vp(SH + i))
    for i in range(8): rb(D + i, D + i)

_pl = [0]
def poll(loads, bad, exec_mask=None):
    n = _pl[0]; _pl[0] += 1
    a('s_mov_b32 s64, 0')
    if exec_mask is not None:
        a('s_mov_b32 exec_lo, 0x%x' % exec_mask); a('s_mov_b32 exec_hi, 0x%x' % exec_mask)
    a.label('poll%d' % n)
    for l in loads: a(l)
    a.wait(vm=0)
    bad()
    a('s_add_u32 s64, s64, 1')
    a('s_and_b64 exec, exec, vcc')
    a('s_cbranch_execz poll%d_done' % n)
    a('s_cmp_lt_u32 s64, %d' % SPIN_LIMIT); a('s_cbranch_scc1 poll%d' % n)
    a.label('poll%d_done' % n)
    a('s_mov_b64 exec, -1')
def envi(n, d): return int(os.environ.get(n, str(d)))
def ppoll(name, loadfn, badfn, n, F, sets, exec_mask=None):
    ns = min(envi('P_%s_NS' % name, envi('P_NS', 1)), len(sets)); gap = envi('P_%s_GAP' % name, envi('P_GAP', 2)); pre = envi('P_%s_PRE' % name, envi('P_PRE', 0))
    if pre: a('s_sleep %d' % pre)
    if ns <= 1:
        poll(loadfn(F), lambda: badfn(F), exec_mask); return
    k = _pl[0]; _pl[0] += 1
    nl = len(loadfn(F))
    a('s_mov_b32 s64, 0')
    if exec_mask is not None:
        a('s_mov_b32 exec_lo, 0x%x' % exec_mask); a('s_mov_b32 exec_hi, 0x%x' % exec_mask)
    for j in range(ns - 1):
        for l in loadfn(sets[j]): a(l)
        if gap: a('s_sleep %d' % gap)
    a.label('pp%d' % k)
    for j in range(ns):
        for l in loadfn(sets[(j + ns - 1) % ns]): a(l)
        a.wait(vm=nl * (ns - 1))
        a.vm = [[] for _ in a.vm]
        badfn(sets[j])
        a('s_mov_b64 s[66:67], exec')
        a('s_andn2_b64 exec, exec, vcc')
        for i in range(n): a('v_mov_b32 v%d, v%d' % (F + i, sets[j] + i))
        a('s_and_b64 exec, s[66:67], vcc')
        a('s_cbranch_execz pp%d_done' % k)
        if gap: a('s_sleep %d' % gap)
    a('s_add_u32 s64, s64, 1')
    a('s_cmp_lt_u32 s64, %d' % SPIN_LIMIT); a('s_cbranch_scc1 pp%d' % k)
    a.label('pp%d_done' % k)
    a('s_mov_b64 exec, -1')
    a.vm = [[('v', b + i) for b in sets[:ns] for i in range(n)]]
def bad_sent(regs, tmp):
    def f():
        rs = list(regs); first = True
        while rs:
            if first:
                x = rs[:3]; rs = rs[3:]; first = False
                a('v_max3_u32 v%d, v%d, v%d, v%d' % (tmp, x[0], x[1], x[2]))
            elif len(rs) >= 2:
                a('v_max3_u32 v%d, v%d, v%d, v%d' % (tmp, tmp, rs[0], rs[1])); rs = rs[2:]
            else:
                a('v_max_u32 v%d, v%d, v%d' % (tmp, tmp, rs[0])); rs = rs[1:]
        a('v_cmp_eq_u32 vcc, -1, v%d' % tmp)
    return f

EPR = 28
def epoch_issue(vaddr0, vdst):
    a('buffer_load_dwordx2 %s, v%d, %s, 0 offen sc1' % (vp(vdst), vaddr0, sq(EPR)))
_ep = [0]
def epoch_finish(vaddr0, vdst):
    n = _ep[0]; _ep[0] += 1
    a('s_mov_b32 s64, 0')
    a.label('ep%d' % n)
    a.wait(vm=0)
    a('v_readfirstlane_b32 s%d, v%d' % (T1S, vdst + 1)); a('v_readfirstlane_b32 s%d, v%d' % (T0S, vdst))
    a('s_add_u32 s64, s64, 1')
    a('s_cmp_lg_u32 s%d, 0' % T1S); a('s_cbranch_scc1 ep%d_done' % n)
    a('s_cmp_ge_u32 s64, %d' % SPIN_LIMIT); a('s_cbranch_scc1 ep%d_done' % n)
    epoch_issue(vaddr0, vdst)
    a('s_branch ep%d' % n)
    a.label('ep%d_done' % n)

def ln1_own_row(qreg, X, T, S, vrow):
    unpack(X, qreg, 4)
    a('ds_write_b128 v%d, %s offset:%d' % (vrow, vq(qreg), L_XB))
    fin = ln_stats(X, T, 60 + 6, 62 + 6, 64 + 0, S) if False else ln_stats(X, T, 48, 50, 52, S)
    ln_norm(T, X, 50, 52, fin)
    for i in range(4): a('v_cvt_pk_bf16_f32 v%d, v%d, v%d' % (X + i, T + 2 * i, T + 2 * i + 1))
    a('ds_write_b128 v%d, %s offset:%d' % (vrow, vq(X), L_NB))

def u_poll_build(G, R=56):
    a('v_lshlrev_b32 v%d, 4, v0' % (G + 8))
    a('s_lshl_b32 s8, s6, 14'); a('s_add_u32 s9, s8, 8192')
    a('v_lshlrev_b32 v%d, 3, v0' % (G + 9)); a('v_add_u32 v%d, %d, v%d' % (G + 9, L_IMG, G + 9))
    def bad(B):
        for g in (0, 4):
            a('v_xor_b32 v%d, s%d, v%d' % (G + 10 + g // 4 * 2, T0S, B + g + 3)); a('v_xor_b32 v%d, s%d, v%d' % (G + 11 + g // 4 * 2, T1S, B + g + 2))
        a('v_or_b32 v%d, v%d, v%d' % (G + 11, G + 11, G + 13)); a('v_or_b32 v%d, v%d, v%d' % (G + 10, G + 10, G + 12))
        a('v_and_or_b32 v%d, v%d, s3, v%d' % (G + 10, G + 11, G + 10))
        a('v_cmp_ne_u32 vcc, 0, v%d' % (G + 10))
    ppoll('U', lambda B: ['buffer_load_dwordx4 %s, v%d, %s, s8 offen sc1' % (vq(B), G + 8, sq(R)), 'buffer_load_dwordx4 %s, v%d, %s, s9 offen sc1' % (vq(B + 4), G + 8, sq(R))],
          bad, 8, G, [144, 152, 160])
    for ch in range(2):
        g = G + 4 * ch
        a('ds_write_b64 v%d, %s offset:%d' % (G + 9, vp(g), L_U1 + L_CB * ch))
        a('v_alignbit_b32 v%d, v%d, v%d, 16' % (G + 10 + 2 * ch, g + 1, g)); a('v_alignbit_b32 v%d, v%d, v%d, 16' % (G + 11 + 2 * ch, g + 2, g + 1))
        a('ds_write_b64 v%d, %s offset:%d' % (G + 9, vp(G + 10 + 2 * ch), L_U0 + L_CB * ch))


_lw = [0]
def lds_wait(addr_v, tmp_v, off, thresh, sleep=1):
    n = _lw[0]; _lw[0] += 1
    a('s_mov_b32 s64, 0')
    a.label('lw%d' % n)
    a('ds_read_b32 v%d, v%d offset:%d' % (tmp_v, addr_v, off))
    a('s_add_u32 s64, s64, 1')
    a.wait(lg=0)
    a('v_readfirstlane_b32 s65, v%d' % tmp_v)
    a('s_cmp_ge_u32 s65, %d' % thresh); a('s_cbranch_scc1 lw%d_ok' % n)
    if sleep: a('s_sleep %d' % sleep)
    a('s_cmp_lt_u32 s64, %d' % (SPIN_LIMIT * 16)); a('s_cbranch_scc1 lw%d' % n)
    a.label('lw%d_ok' % n)
def lds_epoch(addr_v, tmp):
    n = _lw[0]; _lw[0] += 1
    a('s_mov_b32 s64, 0')
    a.label('lw%d' % n)
    a('ds_read_b64 %s, v%d offset:%d' % (vp(tmp), addr_v, L_EP))
    a('s_add_u32 s64, s64, 1')
    a.wait(lg=0)
    a('v_readfirstlane_b32 s%d, v%d' % (T1S, tmp + 1)); a('v_readfirstlane_b32 s%d, v%d' % (T0S, tmp))
    a('s_cmp_lg_u32 s%d, 0' % T1S); a('s_cbranch_scc1 lw%d_ok' % n)
    a('s_cmp_lt_u32 s64, %d' % (SPIN_LIMIT * 16)); a('s_cbranch_scc1 lw%d' % n)
    a.label('lw%d_ok' % n)
def lds_inc(zero_v, one_v, off):
    a('s_mov_b64 exec, 1'); a('ds_add_u32 v%d, v%d offset:%d' % (zero_v, one_v, off)); a('s_mov_b64 exec, -1')

WDE = int(os.environ.get('WDE', '5'))
def wd_addr(V):
    a('v_lshrrev_b32 v%d, 1, v1' % V)
    a('v_and_b32 v%d, 0x13, v%d' % (V + 1, V)); a('v_bfe_u32 v%d, v%d, 2, 1' % (V + 2, V)); a('v_lshl_or_b32 v%d, v%d, 3, v%d' % (V + 1, V + 2, V + 1))
    a('v_bfe_u32 v%d, v%d, 3, 1' % (V + 2, V)); a('v_lshl_or_b32 v%d, v%d, 2, v%d' % (V + 1, V + 2, V + 1))
    a('v_lshlrev_b32 v%d, 10, v%d' % (V, V + 1)); a('v_and_b32 v%d, 1, v1' % (V + 1)); a('v_lshl_add_u32 v%d, v%d, 4, v%d' % (V, V + 1, V))

def gen():
    a.raw('.p2align 8'); a.raw('.globl %s' % KN); a.raw('.type %s,@function' % KN); a.label(KN); a.reset()
    a('s_load_dwordx16 s[16:31], s[0:1], 0')
    a('s_cmp_ge_u32 s2, 256'); a('s_cbranch_scc1 k_exit')
    if STAMP:
        for i in range(16): a('s_mov_b32 s%d, 0' % (SST + 2 * i))
    stamp(0)
    a('v_lshrrev_b32 v1, 6, v0'); a('s_and_b32 s4, s2, 7'); a('v_readfirstlane_b32 s7, v1')
    a('s_lshr_b32 s5, s2, 3')
    a('v_and_b32 v1, 63, v0')
    a('s_cmp_ge_u32 s7, 4'); a('s_cbranch_scc1 k_notkv')
    st0 = a.save()
    def common2():
        a('s_mov_b32 s3, 0xffff0000')
        a('s_lshl_b32 s6, s4, 5'); a('s_add_u32 s6, s6, s5')
        a('v_lshlrev_b32 v2, 4, v1')
        a('s_lshl_b32 s12, s6, 3'); a('s_add_u32 s12, s12, s7')
        a('s_lshl_b32 s13, s12, 10')
    a('v_and_b32 v3, 60, v1'); a('s_lshl_b32 s8, s5, 6'); a('v_or_b32 v3, s8, v3')
    a('v_and_b32 v4, 3, v1'); a('s_lshl_b32 s8, s4, 7'); a('s_lshl_b32 s9, s7, 5'); a('s_add_u32 s8, s8, s9')
    a('v_lshl_add_u32 v4, v4, 3, s8')
    a('v_lshl_add_u32 v5, v3, 10, v4')
    a('v_subrev_u32 v6, 4096, v5')
    a('v_cmp_ne_u32 s[8:9], 0, v3')
    a('v_lshlrev_b32 v7, 2, v4')
    KR = 10; VR = 26; WR = 36
    for i in range(8): a('v_mov_b32 v%d, 0' % (KR + i))
    a('v_mov_b32 v%d, 0' % VR); a('v_mov_b32 v%d, 0' % (VR + 1))
    a.wait(lg=0)
    for i in range(4): a('global_load_dwordx2 %s, v5, %s offset:%d' % (vp(KR + 8 + 2 * i), sp(KP), 1024 * i) + NT)
    for i in range(4): a('global_load_dwordx2 %s, v5, %s offset:%d' % (vp(VR + 2 + 2 * i), sp(VP_), 1024 * i) + NT)
    a('s_mov_b64 exec, s[8:9]')
    for i in range(4): a('global_load_dwordx2 %s, v6, %s offset:%d' % (vp(KR + 2 * i), sp(KP), 1024 * i) + NT)
    a('global_load_dwordx2 %s, v6, %s offset:3072' % (vp(VR), sp(VP_)) + NT)
    a('s_mov_b64 exec, -1')
    a('global_load_dwordx4 %s, v7, %s' % (vq(WR), sp(SHK))); a('global_load_dwordx4 %s, v7, %s offset:16' % (vq(WR + 4), sp(SHK)))
    stamp(1)
    a('s_load_dwordx16 s[32:47], s[0:1], 64')
    common2()
    a('s_lshl_b32 s64, s6, 2'); a('s_load_dword s69, %s, s64' % sp(SSMD))
    barrier()
    a('v_and_b32 v8, 3, v1'); a('v_lshrrev_b32 v9, 2, v1'); a('v_sub_u32 v9, 15, v9'); a('v_lshlrev_b32 v132, 1, v8'); a('v_xor_b32 v9, v9, v132')
    a('v_lshlrev_b32 v9, 4, v9'); a('v_lshl_add_u32 v8, v8, 10, v9'); a('s_lshl_b32 s8, s7, 12'); a('s_add_u32 s8, s8, %d' % L_Y); a('v_add_u32 v8, s8, v8')
    a('v_lshrrev_b32 v9, 4, v1'); a('v_lshlrev_b32 v133, 8, v9'); a('v_add_u32 v133, s8, v133'); a('v_and_b32 v134, 15, v1'); a('v_lshlrev_b32 v134, 4, v134')
    for c in range(4):
        a('v_xor_b32 v%d, %d, v134' % (136 + c, 32 * c)); a('v_add_u32 v%d, v%d, v133' % (136 + c, 136 + c))
    a('v_lshl_add_u32 v140, v9, 13, v134')
    a('s_lshl_b32 s8, s4, 19'); a('s_lshl_b32 s9, s7, 17'); a('s_add_u32 s8, s8, s9'); a('s_lshl_b32 s9, s5, 8'); a('s_sub_u32 s8, s8, s9'); a('s_add_u32 s8, s8, 7936')
    for c in range(1, 4): a('s_add_u32 s%d, s8, %d' % (8 + c, 32768 * c))
    a('v_mov_b32 v9, 0'); a('v_mov_b32 v141, 1')
    srd(56, WS, WS_SIZE, WSOFF)
    a.wait(vm=0); stamp(2)
    lds_inc(9, 141, L_KVA)
    if PRIO: a('s_setprio 3')
    W = 44
    for c in range(4):
        lo(W + 0 + c, WR + 2 * c); hi(W + 4 + c, WR + 2 * c); lo(W + 8 + c, WR + 2 * c + 1); hi(W + 12 + c, WR + 2 * c + 1)
    KF = 60
    unpack(KF, KR, 16)
    S = 92; P = 112
    for i in range(5):
        for h in (0, 2): pk('mul', S + 4 * i + h, KF + 4 * i + h, vp(W + 12 + h))
    for r in range(20): rb(S + r, S + r)
    for t in (1, 2, 3):
        for i in range(5):
            for h in (0, 2): pk('mul', P + 4 * i + h, KF + 4 * (i + t) + h, vp(W + 4 * (3 - t) + h))
        for r in range(20): rb(P + r, P + r)
        for r in range(0, 20, 2): pk('add', S + r, S + r, vp(P + r))
        for r in range(20): rb(S + r, S + r)
    unpack(P, VR, 10)
    for r in range(0, 20, 2): pk('mul', S + r, S + r, vp(P + r))
    O = 60
    for c in range(4):
        a('v_cvt_pk_bf16_f32 v%d, v%d, v%d' % (O + 4 * c, S + 16 + c, S + 12 + c))
        a('v_cvt_pk_bf16_f32 v%d, v%d, v%d' % (O + 4 * c + 1, S + 8 + c, S + 4 + c))
        a('v_cvt_pk_bf16_f32 v%d, v%d, 0' % (O + 4 * c + 2, S + c))
    for c in range(4): a('ds_write_b96 v8, v[%d:%d] offset:%d' % (O + 4 * c, O + 4 * c + 2, 256 * c))
    lds_epoch(9, 142)
    for c in range(4): a('ds_read_b96 v[%d:%d], v%d offset:%d' % (O + 4 * c, O + 4 * c + 2, 136 + c, 1024 * c))
    for c in range(4): a('v_mov_b32 v%d, s%d' % (O + 4 * c + 3, T0S))
    for c in range(4):
        a('v_or_b32 v%d, s%d, v%d' % (O + 4 * c + 2, T1S, O + 4 * c + 2))
        a('buffer_store_dwordx4 %s, v140, s[56:59], s%d offen sc1' % (vq(O + 4 * c), 8 + c))
    lds_inc(9, 141, L_UST)
    stamp(3)
    if PRIO: a('s_setprio 0')
    a('s_and_b32 s8, s7, 1'); a('s_lshr_b32 s9, s7, 1')
    a('s_mul_i32 s10, s8, %d' % L_CB); a('s_add_u32 s10, s10, %d' % L_IMG)
    a('s_mul_i32 s11, s9, %d' % L_U0); a('s_add_u32 s11, s11, s10')
    for i in range(4): a('v_mov_b32 v%d, 0' % (4 + i))
    a('v_add_u32 v3, s11, v2')
    a('s_mov_b32 exec_lo, 0x0fffffff'); a('s_mov_b32 exec_hi, 0')
    a('ds_write_b128 v3, v[4:7] offset:4096')
    a('s_mov_b64 exec, -1')
    a('v_and_b32 v10, 15, v1'); a('v_lshrrev_b32 v11, 4, v1'); a('v_lshrrev_b32 v12, 1, v10'); a('v_and_b32 v13, 1, v10')
    a('v_lshlrev_b32 v3, 6, v12'); a('v_lshl_add_u32 v3, v11, 4, v3')
    a('v_mul_u32_u24 v4, %d, v13' % (L_U0 - L_U1)); a('v_add_u32 v3, v3, v4')
    a('s_lshl_b32 s64, s9, 8'); a('s_sub_u32 s65, s10, s64'); a('s_add_u32 s65, s65, %d' % (L_U0 + 283 * 16 - 64 * 59))
    a('v_sub_u32 v3, s65, v3')
    a('v_lshlrev_b32 v4, 3, v12'); a('v_lshlrev_b32 v5, 4, v11'); a('v_sub_u32 v4, v4, v5')
    a('v_mul_u32_u24 v5, %d, v13' % (L_KB + 62 * 8 - L_KA - 63 * 8)); a('v_sub_u32 v4, v4, v5')
    a('s_sub_u32 s65, s10, s64'); a('s_add_u32 s65, s65, %d' % (L_KB + 62 * 8 - 192))
    a('v_add_u32 v4, s65, v4')
    a('v_lshlrev_b32 v5, 8, v11'); a('v_lshl_add_u32 v5, v10, 3, v5')
    a('s_lshl_b32 s64, s8, 1'); a('s_add_u32 s64, s64, s9'); a('s_lshl_b32 s64, s64, 13'); a('s_add_u32 s64, s64, %d' % L_Y)
    a('v_add_u32 v5, s64, v5')
    a('v_mov_b32 v7, 1')
    a.wait(vm=0); stamp(4)
    lds_inc(6, 7, L_UGO)
    u_poll_build(40)
    stamp(5)
    a.wait(lg=0)
    lds_inc(6, 7, L_IMGC)
    lds_wait(6, 8, L_IMGC, 8, sleep=0)
    stamp(6)
    if STAMP: a.wait(lg=0)
    if PRIO: a('s_setprio 2')
    ACC = 8; F0 = 40
    def Areg(buf, al): return F0 + buf * 64 + al * 4
    def Breg(buf, be): return F0 + buf * 64 + 32 + be * 4
    def loadA(buf, rp, al): a('ds_read_b128 %s, v3 offset:%d' % (vq(Areg(buf, al)), 64 * (59 - (rp + 8 * al))))
    def loadB(buf, rp, be):
        o = 64 * (8 * be + 3 - rp)
        a('ds_read_b64 %s, v4 offset:%d' % (vp(Breg(buf, be)), o)); a('ds_read_b64 %s, v4 offset:%d' % (vp(Breg(buf, be) + 2), o + 8))
    pairs = []
    for m in range(8):
        for o in range(m + 1):
            for (al, be) in ((m, o), (o, m)) if o != m else ((m, m),):
                if al + be <= 7: pairs.append((al, be))
    loads = []
    for m in range(8): loads.append(('A', m)); loads.append(('B', m))
    def do_load(buf, rp, it): (loadA if it[0] == 'A' else loadB)(buf, rp, it[1])
    def ywrite(tt):
        a('ds_write_b64 v5, %s offset:%d' % (vp(ACC + 4 * tt), 1024 * tt)); a('ds_write_b64 v5, %s offset:%d' % (vp(ACC + 4 * tt + 2), 1024 * tt + 128))
    for it in loads: do_load(0, 0, it)
    first = set()
    for rp in range(4):
        buf = rp & 1
        nxt = list(loads) if rp < 3 else []
        order = pairs if rp < 3 else sorted(pairs, key=lambda x: (x[0] + x[1]))
        lastof = {tt: max(i for i, (x, y) in enumerate(order) if x + y == tt) for tt in range(8)}
        for n, (al, be) in enumerate(order):
            t = al + be
            c = '0' if t not in first else vq(ACC + 4 * t)
            first.add(t)
            a('v_mfma_f32_16x16x32_bf16 %s, %s, %s, %s' % (vq(ACC + 4 * t), vq(Areg(buf, al)), vq(Breg(buf, be)), c))
            if nxt and n % 2 == 1: do_load(buf ^ 1, rp + 1, nxt.pop(0))
            if rp == 3:
                for tt in range(8):
                    if n == lastof[tt] + 8: ywrite(tt)
        if rp == 3:
            for tt in range(8):
                if lastof[tt] + 8 > 35: ywrite(tt)
    stamp(7)
    if PRIO: a('s_setprio 0')
    a.wait(lg=0)
    lds_inc(6, 7, L_YC)
    a('s_branch k_epi')
    a.label('k_notkv'); a.load(st0)
    a('s_load_dwordx16 s[32:47], s[0:1], 64')
    common2()
    a('s_cmp_eq_u32 s7, 8'); a('s_cbranch_scc1 k_loader')
    st0b = a.save()
    a('v_and_b32 v10, 255, v0')
    a('s_and_b32 s8, s7, 1'); a('s_lshr_b32 s9, s7, 1'); a('s_sub_u32 s9, s9, 2')
    a('s_mul_i32 s10, s8, %d' % L_CB); a('s_add_u32 s10, s10, %d' % (L_IMG + L_KA))
    a('s_mul_i32 s11, s9, %d' % (L_KB - L_KA)); a('s_add_u32 s10, s10, s11')
    a('s_lshl_b32 s11, s6, 1'); a('s_add_u32 s11, s11, s8'); a('s_lshl_b32 s11, s11, 12')
    for i in range(4): a('v_mov_b32 v%d, 0' % (4 + i))
    a('v_mov_b32 v8, 1')
    a('s_lshl_b32 s66, s9, 2'); a('s_add_u32 s66, s66, s11')
    a('v_add_u32 v3, s10, v2')
    a('v_cmp_eq_u32 vcc, 3, v1'); a('s_cmp_eq_u32 s9, 1'); a('s_cselect_b64 s[62:63], vcc, 0')
    srd(52, SSMK, 2 * MiB)
    a('s_lshl_b32 s64, s6, 2'); a('s_load_dword s69, %s, s64' % sp(SSMD))
    srd(48, Q, 2 * MiB); srd(56, WS, WS_SIZE, WSOFF); srd(16, WG_, 512 * 3584); srd(20, WU_, 512 * 3584); srd(24, WD_, 1792 * 1024)
    stamp(1)
    barrier()
    a('s_cmp_lg_u32 s7, 4'); a('s_cbranch_scc1 k_h_noep')
    srd(EPR, DBG, 256)
    a('s_mov_b64 exec, 1'); a('s_mov_b32 s64, 0')
    for j in range(3): epoch_issue(4, 72 + 2 * j); a('s_sleep 1')
    a.label('k_ep')
    for j in range(4):
        epoch_issue(4, 72 + 2 * ((j + 3) % 4))
        a.wait(vm=3); a.vm = []
        a('v_readfirstlane_b32 s%d, v%d' % (T1S, 73 + 2 * j)); a('v_readfirstlane_b32 s%d, v%d' % (T0S, 72 + 2 * j))
        a('s_cmp_lg_u32 s%d, 0' % T1S); a('s_cbranch_scc1 k_ep_done')
        a('s_sleep 1')
    a('s_add_u32 s64, s64, 1'); a('s_cmp_lt_u32 s64, %d' % SPIN_LIMIT); a('s_cbranch_scc1 k_ep')
    a.label('k_ep_done')
    a('v_mov_b32 v70, s%d' % T0S); a('v_mov_b32 v71, s%d' % T1S)
    a('ds_write_b64 v4, v[70:71] offset:%d' % L_EP)
    a('s_mov_b64 exec, -1')
    a.label('k_h_noep')
    a.vm = []
    if PACE: lds_wait(4, 44, L_KVA, PACE)
    stamp(2)
    a('s_add_u32 s64, s10, 64'); a('s_mov_b32 m0, s64')
    for i in range(4): a('buffer_load_dwordx4 v2, s[52:55], s66 offen offset:%d%s lds' % (1024 * i, NT))
    a('buffer_load_dword v9, v4, s[52:55], s11 offen')
    a('s_sub_u32 s68, s7, 4')
    lds_epoch(4, 70)
    a('v_cndmask_b32 v7, v7, v9, s[62:63]')
    a('s_mov_b64 exec, 15')
    a('ds_write_b128 v3, v[4:7]')
    a('s_mov_b64 exec, -1')
    stamp(3)
    lds_wait(4, 44, L_UGO, 4)
    stamp(4)
    u_poll_build(40)
    stamp(5)
    a.wait(lg=0)
    lds_inc(4, 8, L_IMGC)
    a('s_lshl_b32 s64, s7, 10'); a('s_add_u32 s64, s64, %d' % L_XB); a('s_mov_b32 m0, s64'); a('s_sub_u32 s64, s64, 4096'); a('s_sub_u32 s67, s13, 4096')
    a('buffer_load_dwordx4 v2, s[48:51], s13 offen lds')
    a('s_mov_b32 m0, s64'); a.nop(1)
    a('buffer_load_dwordx4 v2, s[48:51], s67 offen lds')
    a('s_cmp_ge_u32 s5, 28'); a('s_cbranch_scc1 k_h_wd')
    a('s_mul_i32 s10, s4, 28'); a('s_add_u32 s10, s10, s5'); a('s_lshl_b32 s10, s10, 4'); a('s_mul_i32 s64, s68, %d' % (128 * 3584)); a('s_add_u32 s10, s10, s64')
    a('v_mul_u32_u24 v15, 3584, v1')
    a('s_lshl_b32 s9, s68, 11'); a('s_add_u32 s9, s9, %d' % L_W)
    for i in range(2 if WSCHED != 'N' else 0):
        a('s_mov_b32 m0, s9'); a('s_add_u32 s11, s9, %d' % L_GU); a('buffer_load_dwordx4 v15, s[16:19], s10 offen lds')
        a('s_mov_b32 m0, s11'); a('s_add_u32 s9, s9, 1024'); a('buffer_load_dwordx4 v15, s[20:23], s10 offen lds')
        a('s_add_u32 s10, s10, %d' % (64 * 3584))
    a('s_branch k_h_done')
    a.label('k_h_wd')
    a('s_lshl_b32 s8, s4, 2'); a('s_add_u32 s8, s8, s5'); a('s_sub_u32 s8, s8, 28'); a('s_lshl_b32 s8, s8, 5')
    wd_addr(15)
    a('s_mul_i32 s64, s68, %d' % (448 * 1024)); a('s_add_u32 s8, s8, s64')
    a('s_mul_i32 s9, s68, 14336'); a('s_add_u32 s9, s9, %d' % L_W)
    for hw in range(2 if WSCHED != 'N' else 0):
        for i in range(WDE):
            a('s_mov_b32 m0, s9'); a('s_add_u32 s9, s9, %d' % (1024 if i < WDE - 1 else 1024 * (8 - WDE))); a('buffer_load_dwordx4 v15, s[24:27], s8 offen lds')
            a('s_add_u32 s8, s8, %d' % (32768 if i < WDE - 1 else 32768 * (8 - WDE)))
    a.label('k_h_done')
    stamp(7)
    a.wait(vm=0)
    lds_inc(4, 8, L_QD)
    a('s_branch k_epi')
    a.label('k_loader'); a.load(st0b)
    a('s_memrealtime s[8:9]')
    for i in range(4): a('v_mov_b32 v%d, 0' % (4 + i))
    a('v_mov_b32 v3, 0')
    a('ds_write_b128 v3, v[4:7] offset:640'); a('ds_write_b128 v3, v[4:7] offset:656'); a('ds_write_b128 v3, v[4:7] offset:672')
    for i in range(4): a('v_mov_b32 v%d, -1' % (4 + i))
    a('v_and_b32 v14, 1, v1'); a('v_lshrrev_b32 v15, 1, v1')
    a('s_mov_b32 s64, %d' % (16 * 6144)); a('v_mul_lo_u32 v12, v15, s64'); a('v_lshl_add_u32 v12, v14, 4, v12')
    a('v_lshlrev_b32 v15, 5, v15')
    a('s_mul_i32 s68, s4, 24'); a('s_add_u32 s68, s68, s5')
    srd(56, WS, WS_SIZE, WSOFF)
    a('s_cmp_lg_u32 s2, 0'); a('s_cbranch_scc1 k_ld_noep')
    srd(60, DBG, 256)
    a('s_lshl_b32 s9, s9, 16'); a('s_or_b32 s9, s9, 0x80000000')
    a('v_mov_b32 v8, s8'); a('v_mov_b32 v9, s9')
    a('s_mov_b64 exec, 1')
    a('buffer_store_dwordx2 v[8:9], v3, s[60:63], 0 offen sc1')
    a('s_mov_b64 exec, -1')
    a.label('k_ld_noep')
    barrier()
    srd(52, WMOD, 3 * MiB); srd(48, CP, 1024)
    CR = 16; WM_ = 64
    a('buffer_load_dwordx4 %s, v15, s[48:51], 0 offen' % vq(CR)); a('buffer_load_dwordx4 %s, v15, s[48:51], 0 offen offset:16' % vq(CR + 4))
    a('v_lshrrev_b32 v10, 2, v1'); a('s_lshl_b32 s8, s5, 4'); a('v_add_u32 v10, s8, v10'); a('v_mul_u32_u24 v10, 6144, v10')
    a('v_and_b32 v11, 3, v1'); a('v_lshl_add_u32 v11, v11, 7, v10')
    a('v_lshl_add_u32 v13, v14, 7, v10')
    a('s_mul_i32 s8, s4, 768')
    a('buffer_load_dword v128, v11, s[52:55], s8 offen')
    a('s_mov_b32 exec_lo, 0x33333333'); a('s_mov_b32 exec_hi, 0x33333333')
    a('buffer_load_dword v129, v13, s[52:55], s8 offen offset:512')
    a('s_mov_b64 exec, -1')
    a('s_lshl_b32 s8, s6, 13'); a('s_add_u32 s9, s8, %d' % WS_Z); a('s_add_u32 s10, s9, 4096')
    for sr in (9, 10):
        for i in range(4): a('buffer_store_dwordx4 v[4:7], v2, s[56:59], s%d offen offset:%d sc1' % (sr, 1024 * i))
    a('s_lshl_b32 s8, s6, 7'); a('s_add_u32 s8, s8, %d' % (WS_SM + SM_KEY))
    a('s_lshl_b32 s9, s2, 7'); a('s_add_u32 s9, s9, %d' % (WS_SM + SM_ACT))
    a('s_mov_b64 exec, 0xff')
    a('buffer_store_dwordx4 v[4:7], v2, s[56:59], s8 offen sc1'); a('buffer_store_dwordx4 v[4:7], v2, s[56:59], s9 offen sc1')
    a('s_mov_b64 exec, -1')
    if SPEC:
        a('s_lshl_b32 s8, s6, 11'); a('s_add_u32 s8, s8, %d' % (WS_SM + SM_SPEC))
        a('buffer_store_dwordx4 v[4:7], v2, s[56:59], s8 offen sc1'); a('buffer_store_dwordx4 v[4:7], v2, s[56:59], s8 offen offset:1024 sc1')
    a('s_cmp_ge_u32 s2, 16'); a('s_cbranch_scc1 k_ld_nox1')
    a('s_lshl_b32 s8, s2, 10'); a('s_add_u32 s8, s8, %d' % (WS_SM + SM_X1))
    a('buffer_store_dwordx4 v[4:7], v2, s[56:59], s8 offen sc1')
    a.label('k_ld_nox1')
    a('s_cmp_ge_u32 s5, 3'); a('s_cbranch_scc1 k_ld_nocode')
    a('s_getpc_b64 s[8:9]')
    a.label('k_pc')
    a('s_sub_u32 s8, s8, k_pc-%s' % KN); a('s_subb_u32 s9, s9, 0')
    a('v_lshlrev_b32 v10, 7, v1'); a('s_lshl_b32 s10, s5, 13'); a('v_add_u32 v10, s10, v10')
    a('s_mov_b32 s10, k_code_end-%s' % KN); a('v_cmp_gt_u32 vcc, s10, v10'); a('s_and_b64 exec, exec, vcc')
    a('s_cbranch_execz k_ld_nocode2')
    a('global_load_dword v130, v10, s[8:9]')
    a.label('k_ld_nocode2'); a('s_mov_b64 exec, -1')
    a.label('k_ld_nocode')
    srd(48, WRP, 1024)
    a('s_mov_b32 m0, %d' % L_WR)
    a('buffer_load_dwordx4 v2, s[48:51], 0 offen lds')
    stamp(1)
    srd(48, WG_, 512 * 3584); srd(28, WU_, 512 * 3584); srd(60, WD_, 1792 * 1024)
    a('v_lshrrev_b32 v10, 2, v1'); a('s_lshl_b32 s8, s5, 4'); a('v_add_u32 v10, s8, v10'); a('v_mul_u32_u24 v10, 3584, v10')
    a('v_and_b32 v11, 3, v1'); a('v_lshl_add_u32 v10, v11, 7, v10')
    a('s_mul_i32 s8, s4, 448'); a('s_and_b32 s8, s8, 0xffffff80')
    a('s_mul_i32 s9, s5, 56'); a('v_add_u32 v11, s9, v1'); a('v_lshlrev_b32 v11, 10, v11'); a('s_lshl_b32 s9, s4, 7')
    def touches():
        a('buffer_load_dword v164, v10, s[48:51], s8 offen' + NTW); a('buffer_load_dword v165, v10, s[28:31], s8 offen' + NTW)
        a('s_mov_b32 exec_hi, 0x00ffffff')
        a('buffer_load_dword v166, v11, s[60:63], s9 offen' + NTW)
        a('s_mov_b64 exec, -1')
    a.vm = []
    C = 24; E = 40; ACCM = 132; T = 140
    a.wait(vm=0)
    a('v_mov_b32 v8, 1'); lds_inc(3, 8, L_QD)
    unpack(C, CR, 8)
    a('s_mov_b32 s64, 0x%x' % (LOG2E | 0x80000000))
    silu_like(E, C, 16, 64)
    lds_wait(3, 24, L_UST, 4)
    a('s_cmp_ge_u32 s5, 24'); a('s_cbranch_scc1 k_ld_nowm')
    a('s_lshl_b32 s10, s68, 5')
    for i in range(16):
        a('buffer_load_dwordx4 %s, v12, s[52:55], s10 offen' % vq(WM_ + 4 * i))
        if i < 15: a('s_add_u32 s10, s10, 6144')
    a.label('k_ld_nowm')
    a.vm = []
    if WSCHED == 'E': touches()
    a.wait(vm=3 if WSCHED == 'E' else 0); a.vm = []
    stamp(2)
    if WSCHED == 'F': touches(); a.vm = []
    a('s_setprio 3')
    for r in range(16):
        unpack(T + 8 * (r & 1), WM_ + 4 * r, 4)
        TT = T + 8 * (r & 1); AA = ACCM if r % 2 == 0 else 156
        for e in range(0, 8, 2):
            sel = 'op_sel_hi:[1,0%s]' if r % 2 == 0 else 'op_sel:[0,1%s] op_sel_hi:[1,1%s]'
            if r < 2: a('v_pk_mul_f32 %s, %s, %s ' % (vp(AA + e), vp(TT + e), vp(E + (r & ~1))) + ('op_sel_hi:[1,0]' if r == 0 else 'op_sel:[0,1] op_sel_hi:[1,1]'))
            else: a('v_pk_fma_f32 %s, %s, %s, %s ' % (vp(AA + e), vp(TT + e), vp(E + (r & ~1)), vp(AA + e)) + ('op_sel_hi:[1,0,1]' if r % 2 == 0 else 'op_sel:[0,1,0] op_sel_hi:[1,1,1]'))
    for e in range(0, 8, 2): pk('add', ACCM + e, ACCM + e, vp(156 + e))
    for ctl in ('row_shr:2', 'row_shr:4', 'row_shr:8'):
        for e in range(8): a('v_add_f32_dpp v%d, v%d, v%d %s row_mask:0xf bank_mask:0xf' % (ACCM + e, ACCM + e, ACCM + e, ctl))
    a('v_lshrrev_b32 v15, 4, v1'); a('v_lshlrev_b32 v15, 6, v15'); a('v_lshl_add_u32 v15, v14, 5, v15')
    a('s_mov_b32 exec_lo, 0xc000c000'); a('s_mov_b32 exec_hi, 0xc000c000')
    a('ds_write_b128 v15, %s offset:%d' % (vq(ACCM), L_MP)); a('ds_write_b128 v15, %s offset:%d' % (vq(ACCM + 4), L_MP + 16))
    a('s_mov_b64 exec, -1')
    a('v_lshlrev_b32 v8, 2, v1')
    a.wait(lg=0)
    for i in range(4): a('ds_read_b32 v%d, v8 offset:%d' % (40 + i, L_MP + 64 * i))
    a('v_add_f32 v40, v40, v41'); a('v_add_f32 v42, v42, v43'); a('v_add_f32 v40, v40, v42')
    rb(40, 40)
    a('v_add_f32 v41, 1.0, v40'); rb(41, 41)
    a('s_lshr_b32 s64, s68, 5'); a('s_cmp_eq_u32 s64, 1'); a('s_cselect_b64 s[66:67], -1, 0'); a('s_cmp_eq_u32 s64, 4'); a('s_cselect_b64 s[66:67], -1, s[66:67]')
    a('v_cndmask_b32 v40, v40, v41, s[66:67]')
    a('v_mov_b32_dpp v41, v40 row_shl:1 row_mask:0xf bank_mask:0xf')
    a('v_lshrrev_b32 v40, 16, v40'); a('v_or_b32 v40, v40, v41')
    a('v_mov_b32_dpp v41, v40 row_shl:2 row_mask:0xf bank_mask:0xf')
    a('s_lshl_b32 s66, s6, 7'); a('s_add_u32 s66, s66, %d' % (WS_SM + SM_MOD))
    lds_epoch(3, 44)
    a('v_mov_b32 v42, s%d' % T0S); a('v_mov_b32 v43, s%d' % T1S)
    a('s_mov_b32 exec_lo, 0x11111111'); a('s_mov_b32 exec_hi, 0')
    a('buffer_store_dwordx4 v[40:43], v8, s[56:59], s66 offen sc1')
    a('s_mov_b64 exec, -1')
    stamp(3)
    a('s_branch k_end')
    a.label('k_epi')
    a('s_lshl_b32 s64, s7, 10'); a('v_add_u32 v17, s64, v2')
    a('v_lshrrev_b32 v18, 1, v17'); a('v_sub_u32 v18, %d, v18' % (L_IMG + L_U1 + 4088))
    a('s_lshl_b32 s10, s6, 13'); a('s_add_u32 s10, s10, %d' % WS_Z)
    a.wait(lg=0)
    a('s_lshl_b32 s8, s69, 16'); a('s_and_b32 s9, s69, s3')
    a('v_mov_b32 v16, 0')
    lds_wait(16, 19, L_YC, 4, sleep=0); stamp(8)
    a('ds_read_b64 v[20:21], v18'); a('ds_read_b64 v[22:23], v18 offset:%d' % L_CB)
    for i in range(4): a('ds_read_b128 %s, v17 offset:%d' % (vq(32 + 4 * i), L_Y + 8192 * i))
    U = 48
    for ch in range(2):
        hi(U + 4 * ch + 0, 21 + 2 * ch); lo(U + 4 * ch + 1, 21 + 2 * ch); hi(U + 4 * ch + 2, 20 + 2 * ch); lo(U + 4 * ch + 3, 20 + 2 * ch)
    for ch in range(2):
        for i in range(4): a('v_mul_f32 v%d, s%d, v%d' % (U + 4 * ch + i, 8 + ch, U + 4 * ch + i))
    for i in range(8): rb(U + i, U + i)
    for ch in range(2):
        for i in (0, 2): pk('add', 32 + 8 * ch + i, 32 + 8 * ch + i, vp(36 + 8 * ch + i))
    for ch in range(2):
        for i in range(4): rb(32 + 8 * ch + i, 32 + 8 * ch + i)
    for ch in range(2):
        for i in (0, 2): pk('add', 32 + 8 * ch + i, 32 + 8 * ch + i, vp(U + 4 * ch + i))
    for i in range(4): a('v_cvt_pk_bf16_f32 v%d, v%d, v%d' % (56 + i, 32 + i, 40 + i))
    for i in range(4): a('v_min_u32 v%d, -2, v%d' % (56 + i, 56 + i))
    a('buffer_store_dwordx4 v[56:59], v17, s[56:59], s10 offen sc1')
    stamp(9)
    a('s_cmp_lt_u32 s7, 4'); a('s_cbranch_scc1 k_nomod')
    a('v_lshrrev_b32 v11, 2, v1'); a('v_lshlrev_b32 v11, 7, v11'); a('v_and_b32 v12, 3, v1'); a('v_lshl_add_u32 v11, v12, 4, v11')
    a('s_sub_u32 s9, s7, 4'); a('s_lshl_b32 s8, s9, 13'); a('s_add_u32 s8, s8, %d' % (WS_SM + SM_MOD)); a('s_add_u32 s10, s8, 4096')
    a('s_mul_i32 s9, s9, 1536'); a('v_lshlrev_b32 v12, 3, v1'); a('v_add_u32 v12, s9, v12')
    def badm():
        for g in range(4):
            a('v_xor_b32 v%d, s%d, v%d' % (48 + 2 * g, T0S, 80 + 4 * g + 2)); a('v_xor_b32 v%d, s%d, v%d' % (49 + 2 * g, T1S, 80 + 4 * g + 3))
        a('v_or3_b32 v48, v48, v49, v50'); a('v_or3_b32 v51, v51, v52, v53'); a('v_or3_b32 v48, v48, v54, v55'); a('v_or_b32 v48, v48, v51')
        a('v_cmp_ne_u32 vcc, 0, v48')
    poll(['buffer_load_dwordx4 %s, v11, s[56:59], s%d offen offset:%d sc1' % (vq(80 + 4 * g), 8 if g < 2 else 10, 2048 * (g & 1)) for g in range(4)], badm)
    for g in (0, 2): a('ds_write_b64 v12, %s offset:%d' % (vp(80 + 4 * g), L_MOD + 768 * (g >> 1)))
    a('s_mov_b32 exec_hi, 0')
    for g in (1, 3): a('ds_write_b64 v12, %s offset:%d' % (vp(80 + 4 * g), L_MOD + 768 * (g >> 1) + 512))
    a('s_mov_b64 exec, -1')
    a('v_mov_b32 v12, 1')
    a.wait(lg=0)
    lds_inc(16, 12, L_MR)
    a.label('k_nomod')
    X = 24; T = 32; H = 40; Z = 48; S = 60; M = 64; WRr = 112; H2P = 128
    lds_wait(16, 18, L_QD, 5)
    a('ds_read_b128 v[12:15], v17 offset:%d' % L_XB)
    a('ds_read_b128 v[20:23], v2 offset:%d' % L_WR)
    a('v_lshrrev_b32 v3, 1, v0'); a('v_and_b32 v4, 1, v0')
    a('v_lshlrev_b32 v5, 13, v3'); a('v_lshl_add_u32 v5, v4, 4, v5')
    a('v_mul_u32_u24 v6, %d, v4' % (4 * ZP)); a('v_lshl_add_u32 v6, v3, 2, v6'); a('v_add_u32 v6, %d, v6' % L_ZT)
    a('s_mul_i32 s64, s7, %d' % ZP); a('s_add_u32 s64, s64, %d' % L_ZT); a('v_add_u32 v7, s64, v2')
    a('v_lshlrev_b32 v19, 7, v3'); a('v_lshl_add_u32 v19, v4, 4, v19')
    a('s_lshl_b32 s11, s6, 5'); a('s_add_u32 s11, s11, %d' % WS_Z)
    MR = 120
    unpack(X, 12, 4)
    fin = ln_stats(X, T, 48, 50, 52, S)
    ln_norm(H, X, 50, 52, fin)
    for i in range(8): rb(H + i, H + i)
    unpack(WRr, 20, 4)
    lds_wait(16, 17, L_MR, 4)
    for i in range(6): a('ds_read_b128 %s, v2 offset:%d' % (vq(MR + 4 * i), L_MOD + 1024 * i))
    for i in (1, 0): unpack(M + 8 * i, MR + 4 * i, 4)
    affine(H, M + 8, M + 0)
    for i in range(2, 6): unpack(M + 8 * i, MR + 4 * i, 4)
    a.wait(vm=0); stamp(10)
    ppoll('Z', lambda B: ['buffer_load_dwordx4 %s, v5, s[56:59], s11 offen sc1' % vq(B)], lambda B: bad_sent([B, B + 1, B + 2, B + 3], 16)(), 4, 12, [144, 148, 152])
    stamp(11)
    for i in range(4): a('ds_write_b32 v6, v%d offset:%d' % (12 + i, ZP * i))
    a.wait(lg=0); barrier()
    a('ds_read_b128 v[12:15], v7')
    unpack(Z, 12, 4)
    for i in range(0, 8, 2): pk('mul', H + i, H + i, vp(Z + i))
    for i in range(8): rb(H + i, H + i)
    for i in range(0, 8, 2): pk('mul', H + i, H + i, vp(M + 16 + i))
    for i in range(8): rb(H + i, H + i)
    for i in range(0, 8, 2): pk('add', X + i, X + i, vp(H + i))
    for i in range(8): rb(X + i, X + i)
    fin = ln_stats(X, T, 48, 50, 52, S)
    ln_norm(H, X, 50, 52, fin)
    for i in range(8): rb(H + i, H + i)
    affine(H, M + 32, M + 24)
    pk('mul', S, H, vp(WRr)); pk('mul', S + 2, H + 2, vp(WRr + 2))
    a('v_pk_fma_f32 %s, %s, %s, %s' % (vp(S), vp(H + 4), vp(WRr + 4), vp(S))); a('v_pk_fma_f32 %s, %s, %s, %s' % (vp(S + 2), vp(H + 6), vp(WRr + 6), vp(S + 2)))
    pk('add', S, S, vp(S + 2)); a('v_add_f32 v%d, v%d, v%d' % (S, S, S + 1))
    for n, ctl in enumerate(DPPS):
        a('v_add_f32_dpp v%d, v%d, v%d %s' % (S, S, S, ctl))
        if n < 4:
            a('v_cvt_pk_bf16_f32 v%d, v%d, v%d' % (H2P + n, H + 2 * n, H + 2 * n + 1)); a('v_min_u32 v%d, -2, v%d' % (H2P + n, H2P + n))
    rb(S, S)
    a('v_ashrrev_i32 v%d, 31, v%d' % (S + 1, S)); a('v_or_b32 v%d, 0x80000000, v%d' % (S + 1, S + 1)); a('v_xor_b32 v%d, v%d, v%d' % (S, S, S + 1))
    a('s_sub_u32 s64, 2047, s12'); a('v_and_b32 v%d, s3, v%d' % (S, S)); a('v_or_b32 v%d, s64, v%d' % (S, S))
    a('s_lshl_b32 s64, s7, 2'); a('v_mov_b32 v%d, s64' % (S + 1))
    if DBGSPAN: a('s_mov_b32 s68, s14')
    a('v_readlane_b32 s14, v%d, 63' % S)
    a('s_mov_b32 exec_lo, 0'); a('s_mov_b32 exec_hi, 0x80000000')
    a('ds_write_b32 v%d, v%d offset:%d' % (S + 1, S, L_KEYL))
    a('s_mov_b64 exec, -1')
    a('s_add_u32 s65, s13, %d' % WS_H2)
    OUTR = 120; X1P = 124
    for i in range(4): a('v_cvt_pk_bf16_f32 v%d, v%d, v%d' % (X1P + i, X + 2 * i, X + 2 * i + 1))
    for i in range(4): a('v_min_u32 v%d, -2, v%d' % (X1P + i, X1P + i))
    a('v_and_b32 v%d, 1, v1' % (S + 1)); a('v_lshlrev_b32 v%d, 4, v%d' % (S + 1, S + 1))
    a('s_lshl_b32 s64, s6, 7'); a('s_add_u32 s64, s64, %d' % (WS_SM + SM_KEY))
    a('s_lshl_b32 s65, s6, 11'); a('s_add_u32 s65, s65, %d' % (WS_SM + SM_SPEC))
    a.wait(lg=0); barrier()
    a('ds_read_b128 v[8:11], v%d offset:%d' % (S + 1, L_KEYL))
    a('s_cmp_lg_u32 s7, 0'); a('s_cbranch_scc1 k_nokey')
    a('s_mov_b64 exec, 0xff')
    a('buffer_store_dwordx4 v[8:11], v2, s[56:59], s64 offen sc1')
    a('s_mov_b64 exec, -1')
    a.label('k_nokey')
    stamp(12)
    if SPEC:
        a.wait(lg=0)
        a('v_max3_u32 v16, v8, v9, v10'); a('v_max_u32 v16, v16, v11')
        a('v_cmp_lt_u32 vcc, s14, v16')
        a('s_cbranch_vccnz k_nospec')
        a('buffer_store_dwordx4 %s, v2, s[56:59], s65 offen sc1' % vq(H2P)); a('buffer_store_dwordx4 %s, v2, s[56:59], s65 offen offset:1024 sc1' % vq(X1P))
        a.label('k_nospec')
    for i in range(0, 8, 2): pk('mul', T + i, H + i, vp(M + 40 + i))
    for i in range(8): rb(T + i, T + i)
    for i in range(0, 8, 2): pk('add', T + i, T + i, vp(X + i))
    for i in range(4): a('v_cvt_pk_bf16_f32 v%d, v%d, v%d' % (OUTR + i, T + 2 * i, T + 2 * i + 1))
    a('v_mov_b32 v20, 0'); a('v_lshlrev_b32 v21, 2, v1')
    a('ds_write_b32 v21, v20 offset:%d' % L_RANK); a('ds_write_b32 v21, v20 offset:%d' % L_SEG)
    a('ds_write_b32 v20, v20 offset:%d' % L_CNT); a('ds_write_b32 v20, v20 offset:%d' % L_FLAG)
    a('s_mov_b32 s11, %d' % (WS_SM + SM_KEY))
    a.wait(vm=0, lg=0)
    KEY = 12
    ppoll('K', lambda B: ['buffer_load_dwordx4 %s, v19, s[56:59], s11 offen sc1' % vq(B)], lambda B: bad_sent([B, B + 1, B + 2, B + 3], 16)(), 4, 12, [156, 160, 164])
    stamp(13)
    T0 = 30
    a('v_max3_u32 v%d, v%d, v%d, v%d' % (T0, KEY, KEY + 1, KEY + 2)); a('v_max_u32 v%d, v%d, v%d' % (T0, T0, KEY + 3))
    wave_reduce('v_max_u32', [T0])
    a('s_lshl_b32 s64, s7, 2'); a('v_mov_b32 v%d, s64' % (T0 + 1))
    a('s_mov_b32 exec_lo, 0'); a('s_mov_b32 exec_hi, 0x80000000')
    a('ds_write_b32 v%d, v%d offset:%d' % (T0 + 1, T0, L_WM))
    a('s_mov_b64 exec, -1')
    a.wait(lg=0); barrier()
    a('ds_read_b128 %s, v20 offset:%d' % (vq(T0 + 4), L_WM)); a('ds_read_b128 %s, v20 offset:%d' % (vq(T0 + 8), L_WM + 16))
    a('v_min3_u32 v%d, v%d, v%d, v%d' % (T0, T0 + 4, T0 + 5, T0 + 6)); a('v_min3_u32 v%d, v%d, v%d, v%d' % (T0 + 1, T0 + 8, T0 + 9, T0 + 10))
    a('v_min3_u32 v%d, v%d, v%d, v%d' % (T0, T0, T0 + 7, T0 + 11)); a('v_min_u32 v%d, v%d, v%d' % (T0, T0, T0 + 1))
    MS = 48
    for j in range(4): a('v_cmp_ge_u32 %s, v%d, v%d' % (sp(MS + 2 * j), KEY + j, T0))
    for j in range(4): a('s_bcnt1_i32_b64 s%d, %s' % (60 + j, sp(MS + 2 * j)))
    a('s_add_u32 s61, s61, s60'); a('s_add_u32 s62, s62, s61'); a('s_add_u32 s63, s63, s62')
    a('s_lshl_b32 s64, s7, 3')
    a('s_cmp_gt_u32 s63, 8'); a('s_cbranch_scc1 k_tk_over')
    for j in range(4):
        a('v_mbcnt_lo_u32_b32 v%d, s%d, 0' % (T0 + 4 + j, MS + 2 * j)); a('v_mbcnt_hi_u32_b32 v%d, s%d, v%d' % (T0 + 4 + j, MS + 1 + 2 * j, T0 + 4 + j))
        if j > 0: a('s_add_u32 s65, s64, s%d' % (60 + j - 1))
        a('v_add_lshl_u32 v%d, v%d, s%d, 2' % (T0 + 4 + j, T0 + 4 + j, 64 if j == 0 else 65))
    for j in range(4):
        a('s_mov_b64 exec, %s' % sp(MS + 2 * j))
        a('ds_write_b32 v%d, v%d offset:%d' % (T0 + 4 + j, KEY + j, L_SEG))
    a('s_mov_b64 exec, -1')
    a('s_branch k_tk_b')
    a.label('k_tk_over')
    a('v_mov_b32 v%d, 1' % (T0 + 4)); a('ds_write_b32 v20, v%d offset:%d' % (T0 + 4, L_FLAG))
    a.label('k_tk_b')
    a('s_lshl_b32 s64, s7, 5'); a('v_mov_b32 v%d, s64' % (T0 + 1))
    a.wait(lg=0); barrier()
    a('ds_read_b32 v%d, v20 offset:%d' % (T0 + 2, L_FLAG))
    a('ds_read_b32 v%d, v21 offset:%d' % (T0 + 3, L_SEG))
    a('ds_read_b128 %s, v%d offset:%d' % (vq(T0 + 4), T0 + 1, L_SEG)); a('ds_read_b128 %s, v%d offset:%d' % (vq(T0 + 8), T0 + 1, L_SEG + 16))
    a('v_mov_b32 v%d, 0' % (T0 + 12)); a('v_mov_b32 v%d, 0' % (T0 + 13))
    a('v_readfirstlane_b32 s64, v%d' % (T0 + 2))
    a('s_cmp_lg_u32 s64, 0'); a('s_cbranch_scc1 k_tk_slow')
    for hh in range(2):
        for e in range(4): a('v_cmp_gt_u32 %s, v%d, v%d' % (sp(MS + 2 * e), T0 + 4 + 4 * hh + e, T0 + 3))
        for e in range(4): a('v_addc_co_u32 v%d, vcc, 0, v%d, %s' % (T0 + 12 + (e & 1), T0 + 12 + (e & 1), sp(MS + 2 * e)))
    a('v_add_u32 v%d, v%d, v%d' % (T0 + 12, T0 + 12, T0 + 13))
    a('ds_add_u32 v21, v%d offset:%d' % (T0 + 12, L_RANK))
    a('v_cmp_ne_u32 s[64:65], 0, v%d' % (T0 + 3))
    a.wait(lg=0); barrier()
    a('ds_read_b32 v%d, v21 offset:%d' % (T0 + 12, L_RANK))
    a('v_cmp_gt_u32 vcc, 8, v%d' % (T0 + 12)); a('v_lshlrev_b32 v%d, 2, v%d' % (T0 + 12, T0 + 12))
    a('s_and_b64 exec, vcc, s[64:65]')
    a('ds_write_b32 v%d, v%d offset:%d' % (T0 + 12, T0 + 3, L_SEL))
    a('s_mov_b64 exec, -1')
    a.wait(lg=0)
    a('s_branch k_tk_done')
    a.label('k_tk_slow')
    a.wait(lg=0)
    for j in range(4): a('v_cmp_ge_u32 %s, v%d, v%d' % (sp(MS + 2 * j), KEY + j, T0))
    a('v_mov_b32 v%d, s63' % (T0 + 1))
    a('s_mov_b64 exec, 1')
    a('ds_add_rtn_u32 v%d, v20, v%d offset:%d' % (T0 + 3, T0 + 1, L_CNT))
    a('s_mov_b64 exec, -1')
    a('v_readfirstlane_b32 s64, v%d' % (T0 + 3))
    for j in range(4):
        a('v_mbcnt_lo_u32_b32 v%d, s%d, 0' % (T0 + 4 + j, MS + 2 * j)); a('v_mbcnt_hi_u32_b32 v%d, s%d, v%d' % (T0 + 4 + j, MS + 1 + 2 * j, T0 + 4 + j))
        if j > 0: a('s_add_u32 s65, s64, s%d' % (60 + j - 1))
        a('v_add_lshl_u32 v%d, v%d, s%d, 2' % (T0 + 4 + j, T0 + 4 + j, 64 if j == 0 else 65))
        a('s_mov_b64 exec, %s' % sp(MS + 2 * j))
        a('ds_write_b32 v%d, v%d offset:%d' % (T0 + 4 + j, KEY + j, L_LIST))
        a('s_mov_b64 exec, -1')
    a.wait(lg=0); barrier()
    a('ds_read_b32 v%d, v20 offset:%d' % (T0, L_CNT))
    a('v_readfirstlane_b32 s60, v%d' % T0)
    a('s_mov_b32 s61, 0')
    a.label('k_tk_chunk')
    a('v_add_u32 v%d, s61, v0' % (T0 + 1)); a('v_lshlrev_b32 v%d, 2, v%d' % (T0 + 3, T0 + 1))
    a('ds_read_b32 v%d, v%d offset:%d' % (T0, T0 + 3, L_LIST))
    a('v_mov_b32 v%d, 0' % (T0 + 3)); a('s_mov_b32 s62, 0'); a('v_mov_b32 v%d, 0' % (T0 + 2))
    a.label('k_tk_scan')
    a('ds_read_b128 %s, v%d offset:%d' % (vq(T0 + 4), T0 + 2, L_LIST))
    a('s_sub_u32 s63, s60, s62')
    for e in range(4):
        a('v_cmp_gt_u32 vcc, v%d, v%d' % (T0 + 4 + e, T0))
        a('s_cmp_gt_u32 s63, %d' % e); a('s_cselect_b64 vcc, vcc, 0')
        a('v_addc_co_u32 v%d, vcc, 0, v%d, vcc' % (T0 + 3, T0 + 3))
    a('v_add_u32 v%d, 16, v%d' % (T0 + 2, T0 + 2))
    a('s_add_u32 s62, s62, 4'); a('s_cmp_lt_u32 s62, s60'); a('s_cbranch_scc1 k_tk_scan')
    a('v_cmp_gt_u32 vcc, s60, v%d' % (T0 + 1)); a('v_cmp_gt_u32 s[64:65], 8, v%d' % (T0 + 3)); a('s_and_b64 vcc, vcc, s[64:65]')
    a('v_lshlrev_b32 v%d, 2, v%d' % (T0 + 3, T0 + 3))
    a('s_mov_b64 exec, vcc')
    a('ds_write_b32 v%d, v%d offset:%d' % (T0 + 3, T0, L_SEL))
    a('s_mov_b64 exec, -1')
    a('s_add_u32 s61, s61, 512'); a('s_cmp_lt_u32 s61, s60'); a('s_cbranch_scc1 k_tk_chunk')
    a.wait(lg=0); barrier()
    a.label('k_tk_done')
    stamp(14)
    a('v_and_b32 v4, 7, v1'); a('v_lshlrev_b32 v5, 2, v4')
    a('ds_read_b32 v7, v5 offset:%d' % L_SEL)
    a('v_lshrrev_b32 v6, 3, v1'); a('v_add_lshl_u32 v6, v6, v4, 2'); a('v_and_b32 v6, 28, v6')
    a('ds_read_b32 v9, v6 offset:%d' % L_SEL)
    a('v_lshrrev_b32 v6, 4, v1')
    srd(48, OUT, 2 * MiB)
    a('v_and_b32 v8, 0x7ff, v7'); a('v_sub_u32 v8, 2047, v8')
    a('v_lshrrev_b32 v10, 3, v8'); a('v_lshlrev_b32 v10, 11, v10'); a('v_add_u32 v10, %d, v10' % (SM_SPEC - SM_X1))
    a('v_lshlrev_b32 v8, 10, v8')
    a('v_cmp_eq_u32 vcc, s14, v7'); a('s_and_b32 s60, vcc_lo, 0xff')
    a('v_xor_b32 v9, v9, v7'); a('v_and_b32 v9, 0x7f8, v9'); a('v_cmp_eq_u32 vcc, 0, v9')
    a('v_lshlrev_b32 v9, 11, v4')
    a('s_andn2_b32 s62, vcc_lo, 0xff'); a('s_or_b32 s62, s62, vcc_hi')
    if SPEC:
        a('s_cmp_eq_u32 s62, 0'); a('s_cselect_b64 vcc, -1, 0'); a('s_cselect_b32 s63, 0, s60')
        a('v_cndmask_b32 v10, v9, v10, vcc')
    else:
        a('v_mov_b32 v10, v9'); a('s_mov_b32 s63, s60')
    def own_row_store(tag):
        a('s_cmp_lg_u32 s60, 0'); a('s_cbranch_scc1 k_own_%s' % tag)
        a('buffer_store_dwordx4 %s, v2, s[48:51], s13 offen' % vq(OUTR))
        a.label('k_own_%s' % tag)
    a('s_cmp_eq_u32 s63, 0'); a('s_cbranch_scc1 k_nosel')
    a('s_ff1_i32_b32 s61, s60'); a('s_lshl_b32 s61, s61, 11'); a('s_add_u32 s61, s61, %d' % (WS_SM + SM_X1))
    if OWNER: a('buffer_store_dwordx4 %s, v2, s[56:59], s61 offen sc1' % vq(H2P))
    a('buffer_store_dwordx4 %s, v2, s[56:59], s61 offen offset:1024 sc1' % vq(X1P))
    a.label('k_nosel')
    a('s_cmp_ge_u32 s5, 28'); a('s_cbranch_scc1 k_ffn2')
    st1 = a.save()
    if OWNER:
        a('v_lshl_add_u32 v9, v6, 4, v10')
        a('s_lshl_b32 s64, s7, 7'); a('s_add_u32 s11, s64, %d' % (WS_SM + SM_X1))
    else:
        a('v_lshl_add_u32 v9, v6, 4, v8')
        a('s_lshl_b32 s64, s7, 7'); a('s_add_u32 s11, s64, %d' % WS_H2)
    a('v_and_b32 v20, 3, v1'); a('v_bfe_u32 v21, v1, 2, 2')
    a('v_lshlrev_b32 v22, 7, v6'); a('v_lshl_add_u32 v22, v21, 4, v22')
    a('v_and_b32 v23, 1, v20'); a('v_lshl_add_u32 v22, v23, 3, v22')
    a('v_lshrrev_b32 v23, 1, v20'); a('v_mul_u32_u24 v23, %d, v23' % L_GU); a('v_add_u32 v22, v22, v23')
    a('s_lshl_b32 s64, s7, 10'); a('s_add_u32 s64, s64, %d' % L_W); a('v_add_u32 v22, s64, v22')
    for i in range(2):
        for hh in range(2): a('ds_read_b64_tr_b16 %s, v22 offset:%d' % (vp(24 + 4 * i + 2 * hh), 512 * i + 64 * hh))
    ppoll('X', lambda B: ['buffer_load_dwordx4 %s, v9, s[56:59], s11 offen sc1' % vq(B), 'buffer_load_dwordx4 %s, v9, s[56:59], s11 offen offset:64 sc1' % vq(B + 4)],
          lambda B: bad_sent(list(range(B, B + 8)), 36)(), 8, 12, [80, 88, 96], exec_mask=0x00ff00ff)
    tstamp(1)
    a('v_mfma_f32_16x16x32_bf16 v[32:35], v[24:27], v[12:15], 0')
    a('v_mfma_f32_16x16x32_bf16 v[32:35], v[28:31], v[16:19], v[32:35]')
    a('v_lshlrev_b32 v36, 4, v0')
    own_row_store('a')
    a.nop(5)
    a('ds_write_b128 v36, v[32:35] offset:%d' % L_P)
    a.wait(lg=0); barrier()
    a('s_cmp_lg_u32 s7, 0'); a('s_cbranch_scc1 k_end')
    for w in range(8): a('ds_read_b128 %s, v36 offset:%d' % (vq(40 + 4 * w), L_P + 1024 * w))
    a('s_mov_b32 s64, 0x%x' % (LOG2E | 0x80000000))
    a('s_mul_i32 s65, s4, 28'); a('s_add_u32 s65, s65, s5'); a('s_lshl_b32 s65, s65, 7'); a('s_add_u32 s65, s65, %d' % (WS_SM + SM_ACT))
    a('v_and_b32 v73, 15, v1'); a('v_lshlrev_b32 v74, 4, v73'); a('v_lshl_add_u32 v72, v6, 3, v74')
    for st in (16, 8, 4):
        for i in range(0, st, 2): pk('add', 40 + i, 40 + i, vp(40 + i + st))
    for i in range(4): rb(40 + i, 40 + i)
    for i in range(4): a('v_mov_b32 v%d, v%d' % (44 + i, 40 + i))
    silu_like(52, 40, 4, 64)
    for i in range(4): a('v_permlane32_swap_b32 v%d, v%d' % (44 + i, 48 + i))
    for i in range(4): a('v_mul_f32 v%d, v%d, v%d' % (52 + i, 52 + i, 48 + i))
    a('v_cvt_pk_bf16_f32 v56, v52, v53'); a('v_cvt_pk_bf16_f32 v57, v54, v55')
    a('v_min_u32 v56, -2, v56'); a('v_min_u32 v57, -2, v57')
    a('s_mov_b32 exec_lo, 0x00ff00ff'); a('s_mov_b32 exec_hi, 0')
    a('buffer_store_dwordx2 v[56:57], v72, s[56:59], s65 offen sc1')
    tstamp(2)
    a('s_branch k_end')
    a.label('k_ffn2'); a.load(st1)
    own_row_store('b')
    a('s_lshl_b32 s8, s4, 2'); a('s_add_u32 s8, s8, s5'); a('s_sub_u32 s8, s8, 28')
    a('s_lshl_b32 s9, s8, 5')
    a('s_mul_i32 s64, s7, 7168'); a('s_add_u32 s64, s64, %d' % L_W)
    if WDE < 7 and WSCHED != 'N':
        srd(52, WD_, 1792 * 1024)
        wd_addr(15)
        a('s_mul_i32 s65, s7, %d' % (224 * 1024)); a('s_add_u32 s65, s65, s9'); a('s_add_u32 s65, s65, %d' % (32768 * WDE)); a('s_add_u32 s10, s64, %d' % (1024 * WDE))
        for i in range(WDE, 7):
            a('s_mov_b32 m0, s10'); a('s_add_u32 s10, s10, 1024'); a('buffer_load_dwordx4 v15, s[52:55], s65 offen lds'); a('s_add_u32 s65, s65, 32768')
    a('v_and_b32 v20, 3, v1'); a('v_bfe_u32 v21, v1, 2, 2')
    a('v_lshrrev_b32 v22, 1, v6'); a('v_lshlrev_b32 v22, 9, v22'); a('v_and_b32 v23, 1, v6'); a('v_lshl_add_u32 v22, v23, 7, v22')
    a('v_lshl_add_u32 v22, v21, 5, v22'); a('v_lshl_add_u32 v22, v20, 3, v22')
    a('v_add_u32 v22, s64, v22')
    for i in range(WDE):
        for hh in range(2): a('ds_read_b64_tr_b16 %s, v22 offset:%d' % (vp(64 + 4 * i + 2 * hh), 1024 * i + 256 * hh))
    a('v_lshlrev_b32 v9, 7, v6'); a('v_lshl_add_u32 v9, v4, 4, v9')
    a('s_mul_i32 s11, s7, 3584'); a('s_add_u32 s11, s11, %d' % (WS_SM + SM_ACT))
    a('v_lshl_add_u32 v8, v6, 3, v8')
    a('s_cmp_lg_u32 s7, 0'); a('s_cbranch_scc1 k_f2_act')
    a('v_lshl_add_u32 v10, v6, 3, v10')
    a('s_add_u32 s61, s9, %d' % WS_H2); a('s_add_u32 s62, s9, %d' % (WS_SM + SM_X1))
    a('v_lshlrev_b32 v11, 3, v6'); a('v_add_u32 v11, s9, v11')
    a('ds_read_b64 v[16:17], v11 offset:%d' % (L_MOD + 5 * 1024))
    a('v_and_b32 v30, s3, v7'); a('v_ashrrev_i32 v31, 31, v30'); a('v_not_b32 v31, v31'); a('v_or_b32 v31, 0x80000000, v31'); a('v_xor_b32 v30, v30, v31'); a('v_and_b32 v30, s3, v30')
    a('s_mov_b32 s64, 0x%x' % (LOG2E | 0x80000000))
    silu_like(31, 30, 1, 64, mulx=False)
    unpack(92, 16, 2)
    poll(['buffer_load_dwordx2 v[12:13], v10, s[56:59], s62 offen sc1' if OWNER else 'buffer_load_dwordx2 v[12:13], v8, s[56:59], s61 offen sc1',
          'buffer_load_dwordx2 v[14:15], v10, s[56:59], s62 offen offset:1024 sc1'], bad_sent([12, 13, 14, 15], 29))
    unpack(96, 12, 4)
    a.label('k_f2_act')
    a.wait(vm=0, lg=0)
    tstamp(3)
    for i in range(WDE, 7):
        for hh in range(2): a('ds_read_b64_tr_b16 %s, v22 offset:%d' % (vp(64 + 4 * i + 2 * hh), 1024 * i + 256 * hh))
    ppoll('A', lambda B: ['buffer_load_dwordx4 %s, v9, s[56:59], s11 offen offset:%d sc1' % (vq(B + 4 * i), 512 * i) for i in range(7)],
          lambda B: bad_sent(list(range(B, B + 28)), 29)(), 28, 32, [112, 140], exec_mask=0x00ff00ff)
    tstamp(4)
    if STAMP and TAILST: a('s_mov_b32 s%d, s64' % (SST + 12))
    for i in range(7):
        a('v_mfma_f32_16x16x32_bf16 v[24:27], %s, %s, %s' % (vq(64 + 4 * i), vq(32 + 4 * i), '0' if i == 0 else 'v[24:27]'))
    a('v_lshlrev_b32 v28, 4, v0')
    a('ds_write_b128 v28, v[24:27] offset:%d' % L_P)
    a.wait(lg=0); barrier()
    a('s_cmp_lg_u32 s7, 0'); a('s_cbranch_scc1 k_end')
    for w in range(8): a('ds_read_b128 %s, v28 offset:%d' % (vq(40 + 4 * w), L_P + 1024 * w))
    for st in (16, 8, 4):
        for i in range(0, st, 2): pk('add', 40 + i, 40 + i, vp(40 + i + st))
    for i in range(4): rb(40 + i, 40 + i)
    for i in range(4): a('v_mul_f32 v%d, v%d, v31' % (40 + i, 40 + i))
    for i in range(4): rb(40 + i, 40 + i)
    for i in (0, 2): pk('add', 40 + i, 40 + i, vp(96 + i))
    for i in range(4): rb(40 + i, 40 + i)
    for i in (0, 2): pk('mul', 40 + i, 40 + i, vp(92 + i))
    for i in range(4): rb(40 + i, 40 + i)
    for i in (0, 2): pk('add', 40 + i, 40 + i, vp(100 + i))
    a('v_cvt_pk_bf16_f32 v44, v40, v41'); a('v_cvt_pk_bf16_f32 v45, v42, v43')
    a('s_mov_b32 exec_lo, 0x00ff00ff'); a('s_mov_b32 exec_hi, 0x00ff00ff')
    a('buffer_store_dwordx2 v[44:45], v8, s[48:51], s9 offen')
    if DBGSPAN:
        a('s_memrealtime s[64:65]'); a.wait(lg=0)
        a('s_sub_u32 s64, s64, s68'); a('v_mov_b32 v1, s64'); a('s_and_b32 s8, s8, 7'); a('s_lshl_b32 s8, s8, 2'); a('s_add_u32 s8, s8, 8')
        srd(52, DBG, 256)
        a('v_mov_b32 v2, 0'); a('s_mov_b64 exec, 1')
        a('buffer_store_dword v1, v2, s[52:55], s8 offen')
    a.label('k_end')
    if STAMP:
        a('s_memrealtime s[%d:%d]' % (SST + 30, SST + 31))
        a('s_mov_b64 exec, -1')
        a.wait(vm=0, lg=0)
        for i in range(16): a('v_writelane_b32 v2, s%d, %d' % (SST + 2 * i, i))
        a('s_mul_i32 s5, s2, 9'); a('s_add_u32 s5, s5, s7'); a('s_lshl_b32 s5, s5, 6')
        srd(8, WS, MiB, WS_STAMP)
        a('v_and_b32 v1, 63, v0'); a('v_lshlrev_b32 v1, 2, v1')
        a('s_mov_b64 exec, 0xffff')
        a('buffer_store_dword v2, v1, s[8:11], s5 offen')
    a.label('k_exit')
    a('s_endpgm')
    a.label('k_code_end')

def main(outpath):
    hdr = open('cdna_kernels/%s.s.ref' % NAME).read().split('\n')
    out = [l for l in hdr if l.startswith(';') and '@launch' not in l]
    out.append('; @launch grid=(256,1,1) block=(576,1,1) lds=%d' % LDS_SIZE)
    out.append('.amdgcn_target "amdgcn-amd-amdhsa--gfx950"'); out.append('.text')
    gen()
    body = a.text()
    m = max([int(x) for x in re.findall(r'\bv(\d+)\b', body)] + [int(x) for x in re.findall(r'\bv\[\d+:(\d+)\]', body)])
    vg = (m + 1 + 7) // 8 * 8
    assert vg <= 168
    out.append(body)
    out.append('.section .rodata,"a"')
    out.append('.p2align 6')
    out.append('.amdhsa_kernel %s' % KN)
    out.append('  .amdhsa_next_free_vgpr %d' % vg); out.append('  .amdhsa_next_free_sgpr 102'); out.append('  .amdhsa_accum_offset %d' % vg)
    out.append('  .amdhsa_group_segment_fixed_size 0'); out.append('  .amdhsa_kernarg_size 128')
    out.append('  .amdhsa_user_sgpr_count 2'); out.append('  .amdhsa_user_sgpr_kernarg_segment_ptr 1'); out.append('  .amdhsa_system_sgpr_workgroup_id_x 1')
    out.append('  .amdhsa_float_denorm_mode_32 3')
    out.append('.end_amdhsa_kernel')
    open(outpath, 'w').write('\n'.join(out) + '\n')
    print('wrote', outpath, 'vgprs', m + 1, 'nops', a.nops_inserted, 'LDS', LDS_SIZE)

if __name__ == '__main__':
    main(sys.argv[1] if len(sys.argv) > 1 else 'cdna_kernels/%s.s' % NAME)
```

```python
import sys, os, re
from asmlib import Asm

NAME = 'adaLN_cond__ssm_conv_h3__moe_arch_mod__prompt'
KN = NAME + '_kernel'
MiB = 1 << 20
WS_U = 0
WS_Z = 4 * MiB
WS_H2 = 6 * MiB
WS_SM = 8 * MiB
SM_MOD = 0
SM_KEY = 32768
SM_ACT = 65536
SM_X1 = 98304
SM_SPEC = 131072
WS_SIZE = 9 * MiB
WS_STAMP = 14 * MiB
STAMP = int(os.environ.get('STAMP', '0'))
SPIN_LIMIT = 1 << 14
DBGSPAN = int(os.environ.get('DBGSPAN', '0'))
PACE = int(os.environ.get('PACE', '1'))
PRIO = int(os.environ.get('PRIO', '1'))
WSCHED = os.environ.get('WSCHED', 'F')
NT = ' nt' if int(os.environ.get('NT', '0')) else ''
NTW = ' nt' if int(os.environ.get('NTW', '0')) else ''
WSOFF = int(os.environ.get('WSOFF', '240')) * MiB
OWNER = int(os.environ.get('OWNER', '1'))
LOG2E = 0x3fb8aa3b
a = Asm()
SST = 70
SPEC = int(os.environ.get('SPEC', '1'))
TAILST = int(os.environ.get('TAILST', '0'))
def tstamp(i):
    if STAMP and TAILST: a('s_memrealtime s[%d:%d]' % (SST + 2 * i, SST + 1 + 2 * i))
def stamp(i):
    if TAILST and 1 <= i <= 6: return
    if STAMP: a('s_memrealtime s[%d:%d]' % (SST + 2 * i, SST + 1 + 2 * i))
def srd(s, ptr, size, add=0):
    if add:
        a('s_add_u32 s%d, s%d, 0x%x' % (s, ptr, add)); a('s_addc_u32 s%d, s%d, 0' % (s + 1, ptr + 1))
    else:
        a('s_mov_b32 s%d, s%d' % (s, ptr)); a('s_mov_b32 s%d, s%d' % (s + 1, ptr + 1))
    a('s_mov_b32 s%d, 0x%x' % (s + 2, size)); a('s_mov_b32 s%d, 0x00020000' % (s + 3))
MASK = 3
def lo(d, s): a('v_lshlrev_b32 v%d, 16, v%d' % (d, s))
def hi(d, s): a('v_and_b32 v%d, s%d, v%d' % (d, MASK, s))
def rb(d, s): a('v_cvt_pk_bf16_f32 v%d, 0, v%d' % (d, s))
def pk(op, d, x, y, extra=''): a('v_pk_%s_f32 v[%d:%d], v[%d:%d], %s %s' % (op, d, d + 1, x, x + 1, y, extra))
def vp(r): return 'v[%d:%d]' % (r, r + 1)
def vq(r): return 'v[%d:%d]' % (r, r + 3)
def sp(r): return 's[%d:%d]' % (r, r + 1)
def sq(r): return 's[%d:%d]' % (r, r + 3)
def unpack(d, s, n):
    for i in range(n): lo(d + 2 * i, s + i); hi(d + 2 * i + 1, s + i)
DPPS = ('row_shr:1 row_mask:0xf bank_mask:0xf', 'row_shr:2 row_mask:0xf bank_mask:0xf', 'row_shr:4 row_mask:0xf bank_mask:0xf',
        'row_shr:8 row_mask:0xf bank_mask:0xf', 'row_bcast:15 row_mask:0xa bank_mask:0xf', 'row_bcast:31 row_mask:0xc bank_mask:0xf')
def wave_reduce(op, regs):
    for ctl in DPPS:
        for r in regs: a('%s_dpp v%d, v%d, v%d %s' % (op, r, r, r, ctl))
def silu_like(D, X, n, sneg, mulx=True):
    for i in range(n): a('v_mul_f32 v%d, s%d, v%d' % (D + i, sneg, X + i))
    for i in range(n): a('v_exp_f32 v%d, v%d' % (D + i, D + i))
    for i in range(n): a('v_add_f32 v%d, 1.0, v%d' % (D + i, D + i))
    for i in range(n): a('v_rcp_f32 v%d, v%d' % (D + i, D + i))
    if mulx:
        for i in range(n): a('v_mul_f32 v%d, v%d, v%d' % (D + i, D + i, X + i))
    for i in range(n): rb(D + i, D + i)
def barrier(): a('s_barrier')

L_WM = 0; L_KEYL = 32; L_SEL = 64; L_RANK = 128; L_SEG = 384; L_CNT = 640; L_FLAG = 644; L_KVA = 648; L_IMGC = 652; L_UGO = 656; L_UST = 660; L_EP = 664; L_YC = 672; L_MR = 676; L_QD = 680; L_MP = 704
L_WR = 1024; L_NB = 2048; L_XB = L_NB + 8192; L_MOD = L_XB + 8192; L_Y = L_MOD + 6144 + 2048
L_LIST = L_Y; L_P = L_Y + 8192
L_IMG = L_Y + 32768
L_U1 = 0; L_U0 = 4576; L_KA = 9216; L_KB = 13440; L_CB = 17664
assert L_IMG % 256 == 0
L_ZT = L_IMG + L_KA; ZP = 1040
L_W = L_IMG + 2 * L_CB; L_GU = 8256
LDS_SIZE = L_W + 57344
Q, KP, VP_, SHK, SSMK, SSMD, WRP = 16, 18, 20, 22, 24, 26, 30
WG_, WU_, WD_, CP, WMOD, OUT, DBG, WS = 32, 34, 36, 38, 40, 42, 44, 46
T0S, T1S = 14, 15

def ln_stats(X, T, sC, sMB, sRI, vS):
    a('v_readfirstlane_b32 s%d, v%d' % (sC, X)); a('v_readfirstlane_b32 s%d, v%d' % (sC + 1, X))
    for i in range(0, 8, 2): pk('add', T + i, X + i, sp(sC), 'neg_lo:[0,1] neg_hi:[0,1]')
    pk('add', vS, T, vp(T + 2)); pk('mul', vS + 2, T, vp(T))
    pk('add', T, T + 4, vp(T + 6))
    a('v_pk_fma_f32 %s, %s, %s, %s' % (vp(vS + 2), vp(T + 2), vp(T + 2), vp(vS + 2)))
    pk('mul', T + 2, T + 4, vp(T + 4))
    pk('add', vS, vS, vp(T))
    a('v_pk_fma_f32 %s, %s, %s, %s' % (vp(T + 2), vp(T + 6), vp(T + 6), vp(T + 2)))
    a('v_add_f32 v%d, v%d, v%d' % (vS, vS, vS + 1))
    pk('add', vS + 2, vS + 2, vp(T + 2))
    a('v_add_f32 v%d, v%d, v%d' % (vS + 1, vS + 2, vS + 3))
    wave_reduce('v_add_f32', [vS, vS + 1])
    a('v_mul_f32 v%d, 0x3b000000, v%d' % (vS, vS)); a('v_mul_f32 v%d, 0x3b000000, v%d' % (vS + 1, vS + 1))
    a('v_fma_f32 v%d, -v%d, v%d, v%d' % (vS + 1, vS, vS, vS + 1))
    a('v_add_f32 v%d, s%d, v%d' % (vS, sC, vS))
    a('v_max_f32 v%d, 0, v%d' % (vS + 1, vS + 1))
    rb(vS, vS); rb(vS + 1, vS + 1)
    a('v_readlane_b32 s%d, v%d, 63' % (sMB, vS)); a('v_readlane_b32 s%d, v%d, 63' % (sMB + 1, vS))
    a('v_add_f32 v%d, 0x3727c5ac, v%d' % (vS + 1, vS + 1)); rb(vS + 1, vS + 1)
    a('v_sqrt_f32 v%d, v%d' % (vS + 1, vS + 1)); rb(vS + 1, vS + 1)
    a('v_rcp_f32 v%d, v%d' % (vS + 1, vS + 1))
    return lambda: (a('v_readlane_b32 s%d, v%d, 63' % (sRI, vS + 1)), a('v_readlane_b32 s%d, v%d, 63' % (sRI + 1, vS + 1)))
def ln_norm(D, X, sMB, sRI, fin):
    for i in range(0, 8, 2): pk('add', D + i, X + i, sp(sMB), 'neg_lo:[0,1] neg_hi:[0,1]')
    for i in range(8): rb(D + i, D + i)
    fin()
    for i in range(0, 8, 2): pk('mul', D + i, D + i, sp(sRI))
def affine(D, C1, SH):
    for i in range(0, 8, 2): pk('mul', D + i, D + i, vp(C1 + i))
    for i in range(8): rb(D + i, D + i)
    for i in range(0, 8, 2): pk('add', D + i, D + i, vp(SH + i))
    for i in range(8): rb(D + i, D + i)

_pl = [0]
def poll(loads, bad, exec_mask=None):
    n = _pl[0]; _pl[0] += 1
    a('s_mov_b32 s64, 0')
    if exec_mask is not None:
        a('s_mov_b32 exec_lo, 0x%x' % exec_mask); a('s_mov_b32 exec_hi, 0x%x' % exec_mask)
    a.label('poll%d' % n)
    for l in loads: a(l)
    a.wait(vm=0)
    bad()
    a('s_add_u32 s64, s64, 1')
    a('s_and_b64 exec, exec, vcc')
    a('s_cbranch_execz poll%d_done' % n)
    a('s_cmp_lt_u32 s64, %d' % SPIN_LIMIT); a('s_cbranch_scc1 poll%d' % n)
    a.label('poll%d_done' % n)
    a('s_mov_b64 exec, -1')
def envi(n, d): return int(os.environ.get(n, str(d)))
def ppoll(name, loadfn, badfn, n, F, sets, exec_mask=None):
    ns = min(envi('P_%s_NS' % name, envi('P_NS', 1)), len(sets)); gap = envi('P_%s_GAP' % name, envi('P_GAP', 2)); pre = envi('P_%s_PRE' % name, envi('P_PRE', 0))
    if pre: a('s_sleep %d' % pre)
    if ns <= 1:
        poll(loadfn(F), lambda: badfn(F), exec_mask); return
    k = _pl[0]; _pl[0] += 1
    nl = len(loadfn(F))
    a('s_mov_b32 s64, 0')
    if exec_mask is not None:
        a('s_mov_b32 exec_lo, 0x%x' % exec_mask); a('s_mov_b32 exec_hi, 0x%x' % exec_mask)
    for j in range(ns - 1):
        for l in loadfn(sets[j]): a(l)
        if gap: a('s_sleep %d' % gap)
    a.label('pp%d' % k)
    for j in range(ns):
        for l in loadfn(sets[(j + ns - 1) % ns]): a(l)
        a.wait(vm=nl * (ns - 1))
        a.vm = [[] for _ in a.vm]
        badfn(sets[j])
        a('s_mov_b64 s[66:67], exec')
        a('s_andn2_b64 exec, exec, vcc')
        for i in range(n): a('v_mov_b32 v%d, v%d' % (F + i, sets[j] + i))
        a('s_and_b64 exec, s[66:67], vcc')
        a('s_cbranch_execz pp%d_done' % k)
        if gap: a('s_sleep %d' % gap)
    a('s_add_u32 s64, s64, 1')
    a('s_cmp_lt_u32 s64, %d' % SPIN_LIMIT); a('s_cbranch_scc1 pp%d' % k)
    a.label('pp%d_done' % k)
    a('s_mov_b64 exec, -1')
    a.vm = [[('v', b + i) for b in sets[:ns] for i in range(n)]]
def bad_sent(regs, tmp):
    def f():
        rs = list(regs); first = True
        while rs:
            if first:
                x = rs[:3]; rs = rs[3:]; first = False
                a('v_max3_u32 v%d, v%d, v%d, v%d' % (tmp, x[0], x[1], x[2]))
            elif len(rs) >= 2:
                a('v_max3_u32 v%d, v%d, v%d, v%d' % (tmp, tmp, rs[0], rs[1])); rs = rs[2:]
            else:
                a('v_max_u32 v%d, v%d, v%d' % (tmp, tmp, rs[0])); rs = rs[1:]
        a('v_cmp_eq_u32 vcc, -1, v%d' % tmp)
    return f

EPR = 28
def epoch_issue(vaddr0, vdst):
    a('buffer_load_dwordx2 %s, v%d, %s, 0 offen sc1' % (vp(vdst), vaddr0, sq(EPR)))
_ep = [0]
def epoch_finish(vaddr0, vdst):
    n = _ep[0]; _ep[0] += 1
    a('s_mov_b32 s64, 0')
    a.label('ep%d' % n)
    a.wait(vm=0)
    a('v_readfirstlane_b32 s%d, v%d' % (T1S, vdst + 1)); a('v_readfirstlane_b32 s%d, v%d' % (T0S, vdst))
    a('s_add_u32 s64, s64, 1')
    a('s_cmp_lg_u32 s%d, 0' % T1S); a('s_cbranch_scc1 ep%d_done' % n)
    a('s_cmp_ge_u32 s64, %d' % SPIN_LIMIT); a('s_cbranch_scc1 ep%d_done' % n)
    epoch_issue(vaddr0, vdst)
    a('s_branch ep%d' % n)
    a.label('ep%d_done' % n)

def ln1_own_row(qreg, X, T, S, vrow):
    unpack(X, qreg, 4)
    a('ds_write_b128 v%d, %s offset:%d' % (vrow, vq(qreg), L_XB))
    fin = ln_stats(X, T, 60 + 6, 62 + 6, 64 + 0, S) if False else ln_stats(X, T, 48, 50, 52, S)
    ln_norm(T, X, 50, 52, fin)
    for i in range(4): a('v_cvt_pk_bf16_f32 v%d, v%d, v%d' % (X + i, T + 2 * i, T + 2 * i + 1))
    a('ds_write_b128 v%d, %s offset:%d' % (vrow, vq(X), L_NB))

def u_poll_build(G, R=56):
    a('v_lshlrev_b32 v%d, 4, v0' % (G + 8))
    a('s_lshl_b32 s8, s6, 14'); a('s_add_u32 s9, s8, 8192')
    a('v_lshlrev_b32 v%d, 3, v0' % (G + 9)); a('v_add_u32 v%d, %d, v%d' % (G + 9, L_IMG, G + 9))
    def bad(B):
        for g in (0, 4):
            a('v_xor_b32 v%d, s%d, v%d' % (G + 10 + g // 4 * 2, T0S, B + g + 3)); a('v_xor_b32 v%d, s%d, v%d' % (G + 11 + g // 4 * 2, T1S, B + g + 2))
        a('v_or_b32 v%d, v%d, v%d' % (G + 11, G + 11, G + 13)); a('v_or_b32 v%d, v%d, v%d' % (G + 10, G + 10, G + 12))
        a('v_and_or_b32 v%d, v%d, s3, v%d' % (G + 10, G + 11, G + 10))
        a('v_cmp_ne_u32 vcc, 0, v%d' % (G + 10))
    ppoll('U', lambda B: ['buffer_load_dwordx4 %s, v%d, %s, s8 offen sc1' % (vq(B), G + 8, sq(R)), 'buffer_load_dwordx4 %s, v%d, %s, s9 offen sc1' % (vq(B + 4), G + 8, sq(R))],
          bad, 8, G, [144, 152, 160])
    for ch in range(2):
        g = G + 4 * ch
        a('ds_write_b64 v%d, %s offset:%d' % (G + 9, vp(g), L_U1 + L_CB * ch))
        a('v_alignbit_b32 v%d, v%d, v%d, 16' % (G + 10 + 2 * ch, g + 1, g)); a('v_alignbit_b32 v%d, v%d, v%d, 16' % (G + 11 + 2 * ch, g + 2, g + 1))
        a('ds_write_b64 v%d, %s offset:%d' % (G + 9, vp(G + 10 + 2 * ch), L_U0 + L_CB * ch))


_lw = [0]
def lds_wait(addr_v, tmp_v, off, thresh, sleep=1):
    n = _lw[0]; _lw[0] += 1
    a('s_mov_b32 s64, 0')
    a.label('lw%d' % n)
    a('ds_read_b32 v%d, v%d offset:%d' % (tmp_v, addr_v, off))
    a('s_add_u32 s64, s64, 1')
    a.wait(lg=0)
    a('v_readfirstlane_b32 s65, v%d' % tmp_v)
    a('s_cmp_ge_u32 s65, %d' % thresh); a('s_cbranch_scc1 lw%d_ok' % n)
    if sleep: a('s_sleep %d' % sleep)
    a('s_cmp_lt_u32 s64, %d' % (SPIN_LIMIT * 16)); a('s_cbranch_scc1 lw%d' % n)
    a.label('lw%d_ok' % n)
def lds_epoch(addr_v, tmp):
    n = _lw[0]; _lw[0] += 1
    a('s_mov_b32 s64, 0')
    a.label('lw%d' % n)
    a('ds_read_b64 %s, v%d offset:%d' % (vp(tmp), addr_v, L_EP))
    a('s_add_u32 s64, s64, 1')
    a.wait(lg=0)
    a('v_readfirstlane_b32 s%d, v%d' % (T1S, tmp + 1)); a('v_readfirstlane_b32 s%d, v%d' % (T0S, tmp))
    a('s_cmp_lg_u32 s%d, 0' % T1S); a('s_cbranch_scc1 lw%d_ok' % n)
    a('s_cmp_lt_u32 s64, %d' % (SPIN_LIMIT * 16)); a('s_cbranch_scc1 lw%d' % n)
    a.label('lw%d_ok' % n)
def lds_inc(zero_v, one_v, off):
    a('s_mov_b64 exec, 1'); a('ds_add_u32 v%d, v%d offset:%d' % (zero_v, one_v, off)); a('s_mov_b64 exec, -1')

WDE = int(os.environ.get('WDE', '5'))
def wd_addr(V):
    a('v_lshrrev_b32 v%d, 1, v1' % V)
    a('v_and_b32 v%d, 0x13, v%d' % (V + 1, V)); a('v_bfe_u32 v%d, v%d, 2, 1' % (V + 2, V)); a('v_lshl_or_b32 v%d, v%d, 3, v%d' % (V + 1, V + 2, V + 1))
    a('v_bfe_u32 v%d, v%d, 3, 1' % (V + 2, V)); a('v_lshl_or_b32 v%d, v%d, 2, v%d' % (V + 1, V + 2, V + 1))
    a('v_lshlrev_b32 v%d, 10, v%d' % (V, V + 1)); a('v_and_b32 v%d, 1, v1' % (V + 1)); a('v_lshl_add_u32 v%d, v%d, 4, v%d' % (V, V + 1, V))

def gen():
    a.raw('.p2align 8'); a.raw('.globl %s' % KN); a.raw('.type %s,@function' % KN); a.label(KN); a.reset()
    a('s_load_dwordx16 s[16:31], s[0:1], 0')
    a('s_cmp_ge_u32 s2, 256'); a('s_cbranch_scc1 k_exit')
    if STAMP:
        for i in range(16): a('s_mov_b32 s%d, 0' % (SST + 2 * i))
    stamp(0)
    a('v_lshrrev_b32 v1, 6, v0'); a('s_and_b32 s4, s2, 7'); a('v_readfirstlane_b32 s7, v1')
    a('s_lshr_b32 s5, s2, 3')
    a('v_and_b32 v1, 63, v0')
    a('s_cmp_ge_u32 s7, 4'); a('s_cbranch_scc1 k_notkv')
    st0 = a.save()
    def common2():
        a('s_mov_b32 s3, 0xffff0000')
        a('s_lshl_b32 s6, s4, 5'); a('s_add_u32 s6, s6, s5')
        a('v_lshlrev_b32 v2, 4, v1')
        a('s_lshl_b32 s12, s6, 3'); a('s_add_u32 s12, s12, s7')
        a('s_lshl_b32 s13, s12, 10')
    a('v_and_b32 v3, 60, v1'); a('s_lshl_b32 s8, s5, 6'); a('v_or_b32 v3, s8, v3')
    a('v_and_b32 v4, 3, v1'); a('s_lshl_b32 s8, s4, 7'); a('s_lshl_b32 s9, s7, 5'); a('s_add_u32 s8, s8, s9')
    a('v_lshl_add_u32 v4, v4, 3, s8')
    a('v_lshl_add_u32 v5, v3, 10, v4')
    a('v_subrev_u32 v6, 4096, v5')
    a('v_cmp_ne_u32 s[8:9], 0, v3')
    a('v_lshlrev_b32 v7, 2, v4')
    KR = 10; VR = 26; WR = 36
    for i in range(8): a('v_mov_b32 v%d, 0' % (KR + i))
    a('v_mov_b32 v%d, 0' % VR); a('v_mov_b32 v%d, 0' % (VR + 1))
    a.wait(lg=0)
    for i in range(4): a('global_load_dwordx2 %s, v5, %s offset:%d' % (vp(KR + 8 + 2 * i), sp(KP), 1024 * i) + NT)
    for i in range(4): a('global_load_dwordx2 %s, v5, %s offset:%d' % (vp(VR + 2 + 2 * i), sp(VP_), 1024 * i) + NT)
    a('s_mov_b64 exec, s[8:9]')
    for i in range(4): a('global_load_dwordx2 %s, v6, %s offset:%d' % (vp(KR + 2 * i), sp(KP), 1024 * i) + NT)
    a('global_load_dwordx2 %s, v6, %s offset:3072' % (vp(VR), sp(VP_)) + NT)
    a('s_mov_b64 exec, -1')
    a('global_load_dwordx4 %s, v7, %s' % (vq(WR), sp(SHK))); a('global_load_dwordx4 %s, v7, %s offset:16' % (vq(WR + 4), sp(SHK)))
    stamp(1)
    a('s_load_dwordx16 s[32:47], s[0:1], 64')
    common2()
    a('s_lshl_b32 s64, s6, 2'); a('s_load_dword s69, %s, s64' % sp(SSMD))
    barrier()
    a('v_and_b32 v8, 3, v1'); a('v_lshrrev_b32 v9, 2, v1'); a('v_sub_u32 v9, 15, v9'); a('v_lshlrev_b32 v132, 1, v8'); a('v_xor_b32 v9, v9, v132')
    a('v_lshlrev_b32 v9, 4, v9'); a('v_lshl_add_u32 v8, v8, 10, v9'); a('s_lshl_b32 s8, s7, 12'); a('s_add_u32 s8, s8, %d' % L_Y); a('v_add_u32 v8, s8, v8')
    a('v_lshrrev_b32 v9, 4, v1'); a('v_lshlrev_b32 v133, 8, v9'); a('v_add_u32 v133, s8, v133'); a('v_and_b32 v134, 15, v1'); a('v_lshlrev_b32 v134, 4, v134')
    for c in range(4):
        a('v_xor_b32 v%d, %d, v134' % (136 + c, 32 * c)); a('v_add_u32 v%d, v%d, v133' % (136 + c, 136 + c))
    a('v_lshl_add_u32 v140, v9, 13, v134')
    a('s_lshl_b32 s8, s4, 19'); a('s_lshl_b32 s9, s7, 17'); a('s_add_u32 s8, s8, s9'); a('s_lshl_b32 s9, s5, 8'); a('s_sub_u32 s8, s8, s9'); a('s_add_u32 s8, s8, 7936')
    for c in range(1, 4): a('s_add_u32 s%d, s8, %d' % (8 + c, 32768 * c))
    a('v_mov_b32 v9, 0'); a('v_mov_b32 v141, 1')
    srd(56, WS, WS_SIZE, WSOFF)
    a.wait(vm=0); stamp(2)
    lds_inc(9, 141, L_KVA)
    if PRIO: a('s_setprio 3')
    W = 44
    for c in range(4):
        lo(W + 0 + c, WR + 2 * c); hi(W + 4 + c, WR + 2 * c); lo(W + 8 + c, WR + 2 * c + 1); hi(W + 12 + c, WR + 2 * c + 1)
    KF = 60
    unpack(KF, KR, 16)
    S = 92; P = 112
    for i in range(5):
        for h in (0, 2): pk('mul', S + 4 * i + h, KF + 4 * i + h, vp(W + 12 + h))
    for r in range(20): rb(S + r, S + r)
    for t in (1, 2, 3):
        for i in range(5):
            for h in (0, 2): pk('mul', P + 4 * i + h, KF + 4 * (i + t) + h, vp(W + 4 * (3 - t) + h))
        for r in range(20): rb(P + r, P + r)
        for r in range(0, 20, 2): pk('add', S + r, S + r, vp(P + r))
        for r in range(20): rb(S + r, S + r)
    unpack(P, VR, 10)
    for r in range(0, 20, 2): pk('mul', S + r, S + r, vp(P + r))
    O = 60
    for c in range(4):
        a('v_cvt_pk_bf16_f32 v%d, v%d, v%d' % (O + 4 * c, S + 16 + c, S + 12 + c))
        a('v_cvt_pk_bf16_f32 v%d, v%d, v%d' % (O + 4 * c + 1, S + 8 + c, S + 4 + c))
        a('v_cvt_pk_bf16_f32 v%d, v%d, 0' % (O + 4 * c + 2, S + c))
    for c in range(4): a('ds_write_b96 v8, v[%d:%d] offset:%d' % (O + 4 * c, O + 4 * c + 2, 256 * c))
    lds_epoch(9, 142)
    for c in range(4): a('ds_read_b96 v[%d:%d], v%d offset:%d' % (O + 4 * c, O + 4 * c + 2, 136 + c, 1024 * c))
    for c in range(4): a('v_mov_b32 v%d, s%d' % (O + 4 * c + 3, T0S))
    for c in range(4):
        a('v_or_b32 v%d, s%d, v%d' % (O + 4 * c + 2, T1S, O + 4 * c + 2))
        a('buffer_store_dwordx4 %s, v140, s[56:59], s%d offen sc1' % (vq(O + 4 * c), 8 + c))
    lds_inc(9, 141, L_UST)
    stamp(3)
    if PRIO: a('s_setprio 0')
    a('s_and_b32 s8, s7, 1'); a('s_lshr_b32 s9, s7, 1')
    a('s_mul_i32 s10, s8, %d' % L_CB); a('s_add_u32 s10, s10, %d' % L_IMG)
    a('s_mul_i32 s11, s9, %d' % L_U0); a('s_add_u32 s11, s11, s10')
    for i in range(4): a('v_mov_b32 v%d, 0' % (4 + i))
    a('v_add_u32 v3, s11, v2')
    a('s_mov_b32 exec_lo, 0x0fffffff'); a('s_mov_b32 exec_hi, 0')
    a('ds_write_b128 v3, v[4:7] offset:4096')
    a('s_mov_b64 exec, -1')
    a('v_and_b32 v10, 15, v1'); a('v_lshrrev_b32 v11, 4, v1'); a('v_lshrrev_b32 v12, 1, v10'); a('v_and_b32 v13, 1, v10')
    a('v_lshlrev_b32 v3, 6, v12'); a('v_lshl_add_u32 v3, v11, 4, v3')
    a('v_mul_u32_u24 v4, %d, v13' % (L_U0 - L_U1)); a('v_add_u32 v3, v3, v4')
    a('s_lshl_b32 s64, s9, 8'); a('s_sub_u32 s65, s10, s64'); a('s_add_u32 s65, s65, %d' % (L_U0 + 283 * 16 - 64 * 59))
    a('v_sub_u32 v3, s65, v3')
    a('v_lshlrev_b32 v4, 3, v12'); a('v_lshlrev_b32 v5, 4, v11'); a('v_sub_u32 v4, v4, v5')
    a('v_mul_u32_u24 v5, %d, v13' % (L_KB + 62 * 8 - L_KA - 63 * 8)); a('v_sub_u32 v4, v4, v5')
    a('s_sub_u32 s65, s10, s64'); a('s_add_u32 s65, s65, %d' % (L_KB + 62 * 8 - 192))
    a('v_add_u32 v4, s65, v4')
    a('v_lshlrev_b32 v5, 8, v11'); a('v_lshl_add_u32 v5, v10, 3, v5')
    a('s_lshl_b32 s64, s8, 1'); a('s_add_u32 s64, s64, s9'); a('s_lshl_b32 s64, s64, 13'); a('s_add_u32 s64, s64, %d' % L_Y)
    a('v_add_u32 v5, s64, v5')
    a('v_mov_b32 v7, 1')
    a.wait(vm=0); stamp(4)
    lds_inc(6, 7, L_UGO)
    u_poll_build(40)
    stamp(5)
    a.wait(lg=0)
    lds_inc(6, 7, L_IMGC)
    lds_wait(6, 8, L_IMGC, 8, sleep=0)
    stamp(6)
    if STAMP: a.wait(lg=0)
    if PRIO: a('s_setprio 2')
    ACC = 8; F0 = 40
    def Areg(buf, al): return F0 + buf * 64 + al * 4
    def Breg(buf, be): return F0 + buf * 64 + 32 + be * 4
    def loadA(buf, rp, al): a('ds_read_b128 %s, v3 offset:%d' % (vq(Areg(buf, al)), 64 * (59 - (rp + 8 * al))))
    def loadB(buf, rp, be):
        o = 64 * (8 * be + 3 - rp)
        a('ds_read_b64 %s, v4 offset:%d' % (vp(Breg(buf, be)), o)); a('ds_read_b64 %s, v4 offset:%d' % (vp(Breg(buf, be) + 2), o + 8))
    pairs = []
    for m in range(8):
        for o in range(m + 1):
            for (al, be) in ((m, o), (o, m)) if o != m else ((m, m),):
                if al + be <= 7: pairs.append((al, be))
    loads = []
    for m in range(8): loads.append(('A', m)); loads.append(('B', m))
    def do_load(buf, rp, it): (loadA if it[0] == 'A' else loadB)(buf, rp, it[1])
    def ywrite(tt):
        a('ds_write_b64 v5, %s offset:%d' % (vp(ACC + 4 * tt), 1024 * tt)); a('ds_write_b64 v5, %s offset:%d' % (vp(ACC + 4 * tt + 2), 1024 * tt + 128))
    for it in loads: do_load(0, 0, it)
    first = set()
    for rp in range(4):
        buf = rp & 1
        nxt = list(loads) if rp < 3 else []
        order = pairs if rp < 3 else sorted(pairs, key=lambda x: (x[0] + x[1]))
        lastof = {tt: max(i for i, (x, y) in enumerate(order) if x + y == tt) for tt in range(8)}
        for n, (al, be) in enumerate(order):
            t = al + be
            c = '0' if t not in first else vq(ACC + 4 * t)
            first.add(t)
            a('v_mfma_f32_16x16x32_bf16 %s, %s, %s, %s' % (vq(ACC + 4 * t), vq(Areg(buf, al)), vq(Breg(buf, be)), c))
            if nxt and n % 2 == 1: do_load(buf ^ 1, rp + 1, nxt.pop(0))
            if rp == 3:
                for tt in range(8):
                    if n == lastof[tt] + 8: ywrite(tt)
        if rp == 3:
            for tt in range(8):
                if lastof[tt] + 8 > 35: ywrite(tt)
    stamp(7)
    if PRIO: a('s_setprio 0')
    a.wait(lg=0)
    lds_inc(6, 7, L_YC)
    a('s_branch k_epi')
    a.label('k_notkv'); a.load(st0)
    a('s_load_dwordx16 s[32:47], s[0:1], 64')
    common2()
    a('s_cmp_eq_u32 s7, 8'); a('s_cbranch_scc1 k_loader')
    st0b = a.save()
    a('v_and_b32 v10, 255, v0')
    a('s_and_b32 s8, s7, 1'); a('s_lshr_b32 s9, s7, 1'); a('s_sub_u32 s9, s9, 2')
    a('s_mul_i32 s10, s8, %d' % L_CB); a('s_add_u32 s10, s10, %d' % (L_IMG + L_KA))
    a('s_mul_i32 s11, s9, %d' % (L_KB - L_KA)); a('s_add_u32 s10, s10, s11')
    a('s_lshl_b32 s11, s6, 1'); a('s_add_u32 s11, s11, s8'); a('s_lshl_b32 s11, s11, 12')
    for i in range(4): a('v_mov_b32 v%d, 0' % (4 + i))
    a('v_mov_b32 v8, 1')
    a('s_lshl_b32 s66, s9, 2'); a('s_add_u32 s66, s66, s11')
    a('v_add_u32 v3, s10, v2')
    a('v_cmp_eq_u32 vcc, 3, v1'); a('s_cmp_eq_u32 s9, 1'); a('s_cselect_b64 s[62:63], vcc, 0')
    srd(52, SSMK, 2 * MiB)
    a('s_lshl_b32 s64, s6, 2'); a('s_load_dword s69, %s, s64' % sp(SSMD))
    srd(48, Q, 2 * MiB); srd(56, WS, WS_SIZE, WSOFF); srd(16, WG_, 512 * 3584); srd(20, WU_, 512 * 3584); srd(24, WD_, 1792 * 1024)
    stamp(1)
    barrier()
    a('s_cmp_lg_u32 s7, 4'); a('s_cbranch_scc1 k_h_noep')
    srd(EPR, DBG, 256)
    a('s_mov_b64 exec, 1'); a('s_mov_b32 s64, 0')
    for j in range(3): epoch_issue(4, 72 + 2 * j); a('s_sleep 1')
    a.label('k_ep')
    for j in range(4):
        epoch_issue(4, 72 + 2 * ((j + 3) % 4))
        a.wait(vm=3); a.vm = []
        a('v_readfirstlane_b32 s%d, v%d' % (T1S, 73 + 2 * j)); a('v_readfirstlane_b32 s%d, v%d' % (T0S, 72 + 2 * j))
        a('s_cmp_lg_u32 s%d, 0' % T1S); a('s_cbranch_scc1 k_ep_done')
        a('s_sleep 1')
    a('s_add_u32 s64, s64, 1'); a('s_cmp_lt_u32 s64, %d' % SPIN_LIMIT); a('s_cbranch_scc1 k_ep')
    a.label('k_ep_done')
    a('v_mov_b32 v70, s%d' % T0S); a('v_mov_b32 v71, s%d' % T1S)
    a('ds_write_b64 v4, v[70:71] offset:%d' % L_EP)
    a('s_mov_b64 exec, -1')
    a.label('k_h_noep')
    a.vm = []
    if PACE: lds_wait(4, 44, L_KVA, PACE)
    stamp(2)
    a('s_add_u32 s64, s10, 64'); a('s_mov_b32 m0, s64')
    for i in range(4): a('buffer_load_dwordx4 v2, s[52:55], s66 offen offset:%d%s lds' % (1024 * i, NT))
    a('buffer_load_dword v9, v4, s[52:55], s11 offen')
    a('s_sub_u32 s68, s7, 4')
    lds_epoch(4, 70)
    a('v_cndmask_b32 v7, v7, v9, s[62:63]')
    a('s_mov_b64 exec, 15')
    a('ds_write_b128 v3, v[4:7]')
    a('s_mov_b64 exec, -1')
    stamp(3)
    lds_wait(4, 44, L_UGO, 4)
    stamp(4)
    u_poll_build(40)
    stamp(5)
    a.wait(lg=0)
    lds_inc(4, 8, L_IMGC)
    a('s_lshl_b32 s64, s7, 10'); a('s_add_u32 s64, s64, %d' % L_XB); a('s_mov_b32 m0, s64'); a('s_sub_u32 s64, s64, 4096'); a('s_sub_u32 s67, s13, 4096')
    a('buffer_load_dwordx4 v2, s[48:51], s13 offen lds')
    a('s_mov_b32 m0, s64'); a.nop(1)
    a('buffer_load_dwordx4 v2, s[48:51], s67 offen lds')
    a('s_cmp_ge_u32 s5, 28'); a('s_cbranch_scc1 k_h_wd')
    a('s_mul_i32 s10, s4, 28'); a('s_add_u32 s10, s10, s5'); a('s_lshl_b32 s10, s10, 4'); a('s_mul_i32 s64, s68, %d' % (128 * 3584)); a('s_add_u32 s10, s10, s64')
    a('v_mul_u32_u24 v15, 3584, v1')
    a('s_lshl_b32 s9, s68, 11'); a('s_add_u32 s9, s9, %d' % L_W)
    for i in range(2 if WSCHED != 'N' else 0):
        a('s_mov_b32 m0, s9'); a('s_add_u32 s11, s9, %d' % L_GU); a('buffer_load_dwordx4 v15, s[16:19], s10 offen lds')
        a('s_mov_b32 m0, s11'); a('s_add_u32 s9, s9, 1024'); a('buffer_load_dwordx4 v15, s[20:23], s10 offen lds')
        a('s_add_u32 s10, s10, %d' % (64 * 3584))
    a('s_branch k_h_done')
    a.label('k_h_wd')
    a('s_lshl_b32 s8, s4, 2'); a('s_add_u32 s8, s8, s5'); a('s_sub_u32 s8, s8, 28'); a('s_lshl_b32 s8, s8, 5')
    wd_addr(15)
    a('s_mul_i32 s64, s68, %d' % (448 * 1024)); a('s_add_u32 s8, s8, s64')
    a('s_mul_i32 s9, s68, 14336'); a('s_add_u32 s9, s9, %d' % L_W)
    for hw in range(2 if WSCHED != 'N' else 0):
        for i in range(WDE):
            a('s_mov_b32 m0, s9'); a('s_add_u32 s9, s9, %d' % (1024 if i < WDE - 1 else 1024 * (8 - WDE))); a('buffer_load_dwordx4 v15, s[24:27], s8 offen lds')
            a('s_add_u32 s8, s8, %d' % (32768 if i < WDE - 1 else 32768 * (8 - WDE)))
    a.label('k_h_done')
    stamp(7)
    a.wait(vm=0)
    lds_inc(4, 8, L_QD)
    a('s_branch k_epi')
    a.label('k_loader'); a.load(st0b)
    a('s_memrealtime s[8:9]')
    for i in range(4): a('v_mov_b32 v%d, 0' % (4 + i))
    a('v_mov_b32 v3, 0')
    a('ds_write_b128 v3, v[4:7] offset:640'); a('ds_write_b128 v3, v[4:7] offset:656'); a('ds_write_b128 v3, v[4:7] offset:672')
    for i in range(4): a('v_mov_b32 v%d, -1' % (4 + i))
    a('v_and_b32 v14, 1, v1'); a('v_lshrrev_b32 v15, 1, v1')
    a('s_mov_b32 s64, %d' % (16 * 6144)); a('v_mul_lo_u32 v12, v15, s64'); a('v_lshl_add_u32 v12, v14, 4, v12')
    a('v_lshlrev_b32 v15, 5, v15')
    a('s_mul_i32 s68, s4, 24'); a('s_add_u32 s68, s68, s5')
    srd(56, WS, WS_SIZE, WSOFF)
    a('s_cmp_lg_u32 s2, 0'); a('s_cbranch_scc1 k_ld_noep')
    srd(60, DBG, 256)
    a('s_lshl_b32 s9, s9, 16'); a('s_or_b32 s9, s9, 0x80000000')
    a('v_mov_b32 v8, s8'); a('v_mov_b32 v9, s9')
    a('s_mov_b64 exec, 1')
    a('buffer_store_dwordx2 v[8:9], v3, s[60:63], 0 offen sc1')
    a('s_mov_b64 exec, -1')
    a.label('k_ld_noep')
    barrier()
    srd(52, WMOD, 3 * MiB); srd(48, CP, 1024)
    CR = 16; WM_ = 64
    a('buffer_load_dwordx4 %s, v15, s[48:51], 0 offen' % vq(CR)); a('buffer_load_dwordx4 %s, v15, s[48:51], 0 offen offset:16' % vq(CR + 4))
    a('v_lshrrev_b32 v10, 2, v1'); a('s_lshl_b32 s8, s5, 4'); a('v_add_u32 v10, s8, v10'); a('v_mul_u32_u24 v10, 6144, v10')
    a('v_and_b32 v11, 3, v1'); a('v_lshl_add_u32 v11, v11, 7, v10')
    a('v_lshl_add_u32 v13, v14, 7, v10')
    a('s_mul_i32 s8, s4, 768')
    a('buffer_load_dword v128, v11, s[52:55], s8 offen')
    a('s_mov_b32 exec_lo, 0x33333333'); a('s_mov_b32 exec_hi, 0x33333333')
    a('buffer_load_dword v129, v13, s[52:55], s8 offen offset:512')
    a('s_mov_b64 exec, -1')
    a('s_lshl_b32 s8, s6, 13'); a('s_add_u32 s9, s8, %d' % WS_Z); a('s_add_u32 s10, s9, 4096')
    for sr in (9, 10):
        for i in range(4): a('buffer_store_dwordx4 v[4:7], v2, s[56:59], s%d offen offset:%d sc1' % (sr, 1024 * i))
    a('s_lshl_b32 s8, s6, 7'); a('s_add_u32 s8, s8, %d' % (WS_SM + SM_KEY))
    a('s_lshl_b32 s9, s2, 7'); a('s_add_u32 s9, s9, %d' % (WS_SM + SM_ACT))
    a('s_mov_b64 exec, 0xff')
    a('buffer_store_dwordx4 v[4:7], v2, s[56:59], s8 offen sc1'); a('buffer_store_dwordx4 v[4:7], v2, s[56:59], s9 offen sc1')
    a('s_mov_b64 exec, -1')
    if SPEC:
        a('s_lshl_b32 s8, s6, 11'); a('s_add_u32 s8, s8, %d' % (WS_SM + SM_SPEC))
        a('buffer_store_dwordx4 v[4:7], v2, s[56:59], s8 offen sc1'); a('buffer_store_dwordx4 v[4:7], v2, s[56:59], s8 offen offset:1024 sc1')
    a('s_cmp_ge_u32 s2, 16'); a('s_cbranch_scc1 k_ld_nox1')
    a('s_lshl_b32 s8, s2, 10'); a('s_add_u32 s8, s8, %d' % (WS_SM + SM_X1))
    a('buffer_store_dwordx4 v[4:7], v2, s[56:59], s8 offen sc1')
    a.label('k_ld_nox1')
    a('s_cmp_ge_u32 s5, 3'); a('s_cbranch_scc1 k_ld_nocode')
    a('s_getpc_b64 s[8:9]')
    a.label('k_pc')
    a('s_sub_u32 s8, s8, k_pc-%s' % KN); a('s_subb_u32 s9, s9, 0')
    a('v_lshlrev_b32 v10, 7, v1'); a('s_lshl_b32 s10, s5, 13'); a('v_add_u32 v10, s10, v10')
    a('s_mov_b32 s10, k_code_end-%s' % KN); a('v_cmp_gt_u32 vcc, s10, v10'); a('s_and_b64 exec, exec, vcc')
    a('s_cbranch_execz k_ld_nocode2')
    a('global_load_dword v130, v10, s[8:9]')
    a.label('k_ld_nocode2'); a('s_mov_b64 exec, -1')
    a.label('k_ld_nocode')
    srd(48, WRP, 1024)
    a('s_mov_b32 m0, %d' % L_WR)
    a('buffer_load_dwordx4 v2, s[48:51], 0 offen lds')
    stamp(1)
    srd(48, WG_, 512 * 3584); srd(28, WU_, 512 * 3584); srd(60, WD_, 1792 * 1024)
    a('v_lshrrev_b32 v10, 2, v1'); a('s_lshl_b32 s8, s5, 4'); a('v_add_u32 v10, s8, v10'); a('v_mul_u32_u24 v10, 3584, v10')
    a('v_and_b32 v11, 3, v1'); a('v_lshl_add_u32 v10, v11, 7, v10')
    a('s_mul_i32 s8, s4, 448'); a('s_and_b32 s8, s8, 0xffffff80')
    a('s_mul_i32 s9, s5, 56'); a('v_add_u32 v11, s9, v1'); a('v_lshlrev_b32 v11, 10, v11'); a('s_lshl_b32 s9, s4, 7')
    def touches():
        a('buffer_load_dword v164, v10, s[48:51], s8 offen' + NTW); a('buffer_load_dword v165, v10, s[28:31], s8 offen' + NTW)
        a('s_mov_b32 exec_hi, 0x00ffffff')
        a('buffer_load_dword v166, v11, s[60:63], s9 offen' + NTW)
        a('s_mov_b64 exec, -1')
    a.vm = []
    C = 24; E = 40; ACCM = 132; T = 140
    a.wait(vm=0)
    a('v_mov_b32 v8, 1'); lds_inc(3, 8, L_QD)
    unpack(C, CR, 8)
    a('s_mov_b32 s64, 0x%x' % (LOG2E | 0x80000000))
    silu_like(E, C, 16, 64)
    lds_wait(3, 24, L_UST, 4)
    a('s_cmp_ge_u32 s5, 24'); a('s_cbranch_scc1 k_ld_nowm')
    a('s_lshl_b32 s10, s68, 5')
    for i in range(16):
        a('buffer_load_dwordx4 %s, v12, s[52:55], s10 offen' % vq(WM_ + 4 * i))
        if i < 15: a('s_add_u32 s10, s10, 6144')
    a.label('k_ld_nowm')
    a.vm = []
    if WSCHED == 'E': touches()
    a.wait(vm=3 if WSCHED == 'E' else 0); a.vm = []
    stamp(2)
    if WSCHED == 'F': touches(); a.vm = []
    if envi('MODPRIO', 1): a('s_setprio 3')
    for r in range(16):
        unpack(T + 8 * (r & 1), WM_ + 4 * r, 4)
        TT = T + 8 * (r & 1); AA = ACCM if r % 2 == 0 else 156
        for e in range(0, 8, 2):
            sel = 'op_sel_hi:[1,0%s]' if r % 2 == 0 else 'op_sel:[0,1%s] op_sel_hi:[1,1%s]'
            if envi('MODSCALAR', 1):
                for ee in (e, e + 1):
                    if r < 2: a('v_mul_f32 v%d, v%d, v%d' % (AA + ee, TT + ee, E + r))
                    else: a('v_fmac_f32 v%d, v%d, v%d' % (AA + ee, TT + ee, E + r))
            elif r < 2: a('v_pk_mul_f32 %s, %s, %s ' % (vp(AA + e), vp(TT + e), vp(E + (r & ~1))) + ('op_sel_hi:[1,0]' if r == 0 else 'op_sel:[0,1] op_sel_hi:[1,1]'))
            else: a('v_pk_fma_f32 %s, %s, %s, %s ' % (vp(AA + e), vp(TT + e), vp(E + (r & ~1)), vp(AA + e)) + ('op_sel_hi:[1,0,1]' if r % 2 == 0 else 'op_sel:[0,1,0] op_sel_hi:[1,1,1]'))
    for e in range(8): a('v_add_f32 v%d, v%d, v%d' % (ACCM + e, ACCM + e, 156 + e))
    for ctl in ('row_shr:2', 'row_shr:4', 'row_shr:8'):
        for e in range(8): a('v_add_f32_dpp v%d, v%d, v%d %s row_mask:0xf bank_mask:0xf' % (ACCM + e, ACCM + e, ACCM + e, ctl))
    a('v_lshrrev_b32 v15, 4, v1'); a('v_lshlrev_b32 v15, 6, v15'); a('v_lshl_add_u32 v15, v14, 5, v15')
    a('s_mov_b32 exec_lo, 0xc000c000'); a('s_mov_b32 exec_hi, 0xc000c000')
    a('ds_write_b128 v15, %s offset:%d' % (vq(ACCM), L_MP)); a('ds_write_b128 v15, %s offset:%d' % (vq(ACCM + 4), L_MP + 16))
    a('s_mov_b64 exec, -1')
    a('v_lshlrev_b32 v8, 2, v1')
    a.wait(lg=0)
    for i in range(4): a('ds_read_b32 v%d, v8 offset:%d' % (40 + i, L_MP + 64 * i))
    a('v_add_f32 v40, v40, v41'); a('v_add_f32 v42, v42, v43'); a('v_add_f32 v40, v40, v42')
    rb(40, 40)
    a('v_add_f32 v41, 1.0, v40'); rb(41, 41)
    a('s_lshr_b32 s64, s68, 5'); a('s_cmp_eq_u32 s64, 1'); a('s_cselect_b64 s[66:67], -1, 0'); a('s_cmp_eq_u32 s64, 4'); a('s_cselect_b64 s[66:67], -1, s[66:67]')
    a('v_cndmask_b32 v40, v40, v41, s[66:67]')
    a('v_mov_b32_dpp v41, v40 row_shl:1 row_mask:0xf bank_mask:0xf')
    a('v_lshrrev_b32 v40, 16, v40'); a('v_or_b32 v40, v40, v41')
    a('v_mov_b32_dpp v41, v40 row_shl:2 row_mask:0xf bank_mask:0xf')
    a('s_lshl_b32 s66, s6, 7'); a('s_add_u32 s66, s66, %d' % (WS_SM + SM_MOD))
    lds_epoch(3, 44)
    a('v_mov_b32 v42, s%d' % T0S); a('v_mov_b32 v43, s%d' % T1S)
    a('s_mov_b32 exec_lo, 0x11111111'); a('s_mov_b32 exec_hi, 0')
    a('buffer_store_dwordx4 v[40:43], v8, s[56:59], s66 offen sc1')
    a('s_mov_b64 exec, -1')
    stamp(3)
    a('s_branch k_end')
    a.label('k_epi')
    a('s_lshl_b32 s64, s7, 10'); a('v_add_u32 v17, s64, v2')
    a('v_lshrrev_b32 v18, 1, v17'); a('v_sub_u32 v18, %d, v18' % (L_IMG + L_U1 + 4088))
    a('s_lshl_b32 s10, s6, 13'); a('s_add_u32 s10, s10, %d' % WS_Z)
    a.wait(lg=0)
    a('s_lshl_b32 s8, s69, 16'); a('s_and_b32 s9, s69, s3')
    a('v_mov_b32 v16, 0')
    lds_wait(16, 19, L_YC, 4, sleep=0); stamp(8)
    a('ds_read_b64 v[20:21], v18'); a('ds_read_b64 v[22:23], v18 offset:%d' % L_CB)
    for i in range(4): a('ds_read_b128 %s, v17 offset:%d' % (vq(32 + 4 * i), L_Y + 8192 * i))
    U = 48
    for ch in range(2):
        hi(U + 4 * ch + 0, 21 + 2 * ch); lo(U + 4 * ch + 1, 21 + 2 * ch); hi(U + 4 * ch + 2, 20 + 2 * ch); lo(U + 4 * ch + 3, 20 + 2 * ch)
    for ch in range(2):
        for i in range(4): a('v_mul_f32 v%d, s%d, v%d' % (U + 4 * ch + i, 8 + ch, U + 4 * ch + i))
    for i in range(8): rb(U + i, U + i)
    for ch in range(2):
        for i in (0, 2): pk('add', 32 + 8 * ch + i, 32 + 8 * ch + i, vp(36 + 8 * ch + i))
    for ch in range(2):
        for i in range(4): rb(32 + 8 * ch + i, 32 + 8 * ch + i)
    for ch in range(2):
        for i in (0, 2): pk('add', 32 + 8 * ch + i, 32 + 8 * ch + i, vp(U + 4 * ch + i))
    for i in range(4): a('v_cvt_pk_bf16_f32 v%d, v%d, v%d' % (56 + i, 32 + i, 40 + i))
    for i in range(4): a('v_min_u32 v%d, -2, v%d' % (56 + i, 56 + i))
    a('buffer_store_dwordx4 v[56:59], v17, s[56:59], s10 offen sc1')
    stamp(9)
    a('s_cmp_lt_u32 s7, 4'); a('s_cbranch_scc1 k_nomod')
    a('v_lshrrev_b32 v11, 2, v1'); a('v_lshlrev_b32 v11, 7, v11'); a('v_and_b32 v12, 3, v1'); a('v_lshl_add_u32 v11, v12, 4, v11')
    a('s_sub_u32 s9, s7, 4'); a('s_lshl_b32 s8, s9, 13'); a('s_add_u32 s8, s8, %d' % (WS_SM + SM_MOD)); a('s_add_u32 s10, s8, 4096')
    a('s_mul_i32 s9, s9, 1536'); a('v_lshlrev_b32 v12, 3, v1'); a('v_add_u32 v12, s9, v12')
    def badm():
        for g in range(4):
            a('v_xor_b32 v%d, s%d, v%d' % (48 + 2 * g, T0S, 80 + 4 * g + 2)); a('v_xor_b32 v%d, s%d, v%d' % (49 + 2 * g, T1S, 80 + 4 * g + 3))
        a('v_or3_b32 v48, v48, v49, v50'); a('v_or3_b32 v51, v51, v52, v53'); a('v_or3_b32 v48, v48, v54, v55'); a('v_or_b32 v48, v48, v51')
        a('v_cmp_ne_u32 vcc, 0, v48')
    poll(['buffer_load_dwordx4 %s, v11, s[56:59], s%d offen offset:%d sc1' % (vq(80 + 4 * g), 8 if g < 2 else 10, 2048 * (g & 1)) for g in range(4)], badm)
    for g in (0, 2): a('ds_write_b64 v12, %s offset:%d' % (vp(80 + 4 * g), L_MOD + 768 * (g >> 1)))
    a('s_mov_b32 exec_hi, 0')
    for g in (1, 3): a('ds_write_b64 v12, %s offset:%d' % (vp(80 + 4 * g), L_MOD + 768 * (g >> 1) + 512))
    a('s_mov_b64 exec, -1')
    a('v_mov_b32 v12, 1')
    a.wait(lg=0)
    lds_inc(16, 12, L_MR)
    a.label('k_nomod')
    X = 24; T = 32; H = 40; Z = 48; S = 60; M = 64; WRr = 112; H2P = 128
    lds_wait(16, 18, L_QD, 5)
    a('ds_read_b128 v[12:15], v17 offset:%d' % L_XB)
    a('ds_read_b128 v[20:23], v2 offset:%d' % L_WR)
    a('v_lshrrev_b32 v3, 1, v0'); a('v_and_b32 v4, 1, v0')
    a('v_lshlrev_b32 v5, 13, v3'); a('v_lshl_add_u32 v5, v4, 4, v5')
    a('v_mul_u32_u24 v6, %d, v4' % (4 * ZP)); a('v_lshl_add_u32 v6, v3, 2, v6'); a('v_add_u32 v6, %d, v6' % L_ZT)
    a('s_mul_i32 s64, s7, %d' % ZP); a('s_add_u32 s64, s64, %d' % L_ZT); a('v_add_u32 v7, s64, v2')
    a('v_lshlrev_b32 v19, 7, v3'); a('v_lshl_add_u32 v19, v4, 4, v19')
    a('s_lshl_b32 s11, s6, 5'); a('s_add_u32 s11, s11, %d' % WS_Z)
    MR = 120
    unpack(X, 12, 4)
    fin = ln_stats(X, T, 48, 50, 52, S)
    ln_norm(H, X, 50, 52, fin)
    for i in range(8): rb(H + i, H + i)
    unpack(WRr, 20, 4)
    lds_wait(16, 17, L_MR, 4)
    for i in range(6): a('ds_read_b128 %s, v2 offset:%d' % (vq(MR + 4 * i), L_MOD + 1024 * i))
    for i in (1, 0): unpack(M + 8 * i, MR + 4 * i, 4)
    affine(H, M + 8, M + 0)
    for i in range(2, 6): unpack(M + 8 * i, MR + 4 * i, 4)
    a.wait(vm=0); stamp(10)
    ppoll('Z', lambda B: ['buffer_load_dwordx4 %s, v5, s[56:59], s11 offen sc1' % vq(B)], lambda B: bad_sent([B, B + 1, B + 2, B + 3], 16)(), 4, 12, [144, 148, 152])
    stamp(11)
    for i in range(4): a('ds_write_b32 v6, v%d offset:%d' % (12 + i, ZP * i))
    a.wait(lg=0); barrier()
    a('ds_read_b128 v[12:15], v7')
    unpack(Z, 12, 4)
    for i in range(0, 8, 2): pk('mul', H + i, H + i, vp(Z + i))
    for i in range(8): rb(H + i, H + i)
    for i in range(0, 8, 2): pk('mul', H + i, H + i, vp(M + 16 + i))
    for i in range(8): rb(H + i, H + i)
    for i in range(0, 8, 2): pk('add', X + i, X + i, vp(H + i))
    for i in range(8): rb(X + i, X + i)
    fin = ln_stats(X, T, 48, 50, 52, S)
    ln_norm(H, X, 50, 52, fin)
    for i in range(8): rb(H + i, H + i)
    affine(H, M + 32, M + 24)
    pk('mul', S, H, vp(WRr)); pk('mul', S + 2, H + 2, vp(WRr + 2))
    a('v_pk_fma_f32 %s, %s, %s, %s' % (vp(S), vp(H + 4), vp(WRr + 4), vp(S))); a('v_pk_fma_f32 %s, %s, %s, %s' % (vp(S + 2), vp(H + 6), vp(WRr + 6), vp(S + 2)))
    pk('add', S, S, vp(S + 2)); a('v_add_f32 v%d, v%d, v%d' % (S, S, S + 1))
    for n, ctl in enumerate(DPPS):
        a('v_add_f32_dpp v%d, v%d, v%d %s' % (S, S, S, ctl))
        if n < 4:
            a('v_cvt_pk_bf16_f32 v%d, v%d, v%d' % (H2P + n, H + 2 * n, H + 2 * n + 1)); a('v_min_u32 v%d, -2, v%d' % (H2P + n, H2P + n))
    rb(S, S)
    a('v_ashrrev_i32 v%d, 31, v%d' % (S + 1, S)); a('v_or_b32 v%d, 0x80000000, v%d' % (S + 1, S + 1)); a('v_xor_b32 v%d, v%d, v%d' % (S, S, S + 1))
    a('s_sub_u32 s64, 2047, s12'); a('v_and_b32 v%d, s3, v%d' % (S, S)); a('v_or_b32 v%d, s64, v%d' % (S, S))
    a('s_lshl_b32 s64, s7, 2'); a('v_mov_b32 v%d, s64' % (S + 1))
    if DBGSPAN: a('s_mov_b32 s68, s14')
    a('v_readlane_b32 s14, v%d, 63' % S)
    a('s_mov_b32 exec_lo, 0'); a('s_mov_b32 exec_hi, 0x80000000')
    a('ds_write_b32 v%d, v%d offset:%d' % (S + 1, S, L_KEYL))
    a('s_mov_b64 exec, -1')
    a('s_add_u32 s65, s13, %d' % WS_H2)
    OUTR = 120; X1P = 124
    for i in range(4): a('v_cvt_pk_bf16_f32 v%d, v%d, v%d' % (X1P + i, X + 2 * i, X + 2 * i + 1))
    for i in range(4): a('v_min_u32 v%d, -2, v%d' % (X1P + i, X1P + i))
    a('v_and_b32 v%d, 1, v1' % (S + 1)); a('v_lshlrev_b32 v%d, 4, v%d' % (S + 1, S + 1))
    a('s_lshl_b32 s64, s6, 7'); a('s_add_u32 s64, s64, %d' % (WS_SM + SM_KEY))
    a('s_lshl_b32 s65, s6, 11'); a('s_add_u32 s65, s65, %d' % (WS_SM + SM_SPEC))
    a.wait(lg=0); barrier()
    a('ds_read_b128 v[8:11], v%d offset:%d' % (S + 1, L_KEYL))
    a('s_cmp_lg_u32 s7, 0'); a('s_cbranch_scc1 k_nokey')
    a('s_mov_b64 exec, 0xff')
    a('buffer_store_dwordx4 v[8:11], v2, s[56:59], s64 offen sc1')
    a('s_mov_b64 exec, -1')
    a.label('k_nokey')
    stamp(12)
    if SPEC:
        a.wait(lg=0)
        a('v_max3_u32 v16, v8, v9, v10'); a('v_max_u32 v16, v16, v11')
        a('v_cmp_lt_u32 vcc, s14, v16')
        a('s_cbranch_vccnz k_nospec')
        a('buffer_store_dwordx4 %s, v2, s[56:59], s65 offen sc1' % vq(H2P)); a('buffer_store_dwordx4 %s, v2, s[56:59], s65 offen offset:1024 sc1' % vq(X1P))
        a.label('k_nospec')
    for i in range(0, 8, 2): pk('mul', T + i, H + i, vp(M + 40 + i))
    for i in range(8): rb(T + i, T + i)
    for i in range(0, 8, 2): pk('add', T + i, T + i, vp(X + i))
    for i in range(4): a('v_cvt_pk_bf16_f32 v%d, v%d, v%d' % (OUTR + i, T + 2 * i, T + 2 * i + 1))
    a('v_mov_b32 v20, 0'); a('v_lshlrev_b32 v21, 2, v1')
    a('ds_write_b32 v21, v20 offset:%d' % L_RANK); a('ds_write_b32 v21, v20 offset:%d' % L_SEG)
    a('ds_write_b32 v20, v20 offset:%d' % L_CNT); a('ds_write_b32 v20, v20 offset:%d' % L_FLAG)
    a('s_mov_b32 s11, %d' % (WS_SM + SM_KEY))
    a.wait(vm=0, lg=0)
    KEY = 12
    ppoll('K', lambda B: ['buffer_load_dwordx4 %s, v19, s[56:59], s11 offen sc1' % vq(B)], lambda B: bad_sent([B, B + 1, B + 2, B + 3], 16)(), 4, 12, [156, 160, 164])
    stamp(13)
    T0 = 30
    a('v_max3_u32 v%d, v%d, v%d, v%d' % (T0, KEY, KEY + 1, KEY + 2)); a('v_max_u32 v%d, v%d, v%d' % (T0, T0, KEY + 3))
    wave_reduce('v_max_u32', [T0])
    a('s_lshl_b32 s64, s7, 2'); a('v_mov_b32 v%d, s64' % (T0 + 1))
    a('s_mov_b32 exec_lo, 0'); a('s_mov_b32 exec_hi, 0x80000000')
    a('ds_write_b32 v%d, v%d offset:%d' % (T0 + 1, T0, L_WM))
    a('s_mov_b64 exec, -1')
    a.wait(lg=0); barrier()
    a('ds_read_b128 %s, v20 offset:%d' % (vq(T0 + 4), L_WM)); a('ds_read_b128 %s, v20 offset:%d' % (vq(T0 + 8), L_WM + 16))
    a('v_min3_u32 v%d, v%d, v%d, v%d' % (T0, T0 + 4, T0 + 5, T0 + 6)); a('v_min3_u32 v%d, v%d, v%d, v%d' % (T0 + 1, T0 + 8, T0 + 9, T0 + 10))
    a('v_min3_u32 v%d, v%d, v%d, v%d' % (T0, T0, T0 + 7, T0 + 11)); a('v_min_u32 v%d, v%d, v%d' % (T0, T0, T0 + 1))
    MS = 48
    for j in range(4): a('v_cmp_ge_u32 %s, v%d, v%d' % (sp(MS + 2 * j), KEY + j, T0))
    for j in range(4): a('s_bcnt1_i32_b64 s%d, %s' % (60 + j, sp(MS + 2 * j)))
    a('s_add_u32 s61, s61, s60'); a('s_add_u32 s62, s62, s61'); a('s_add_u32 s63, s63, s62')
    a('s_lshl_b32 s64, s7, 3')
    a('s_cmp_gt_u32 s63, 8'); a('s_cbranch_scc1 k_tk_over')
    for j in range(4):
        a('v_mbcnt_lo_u32_b32 v%d, s%d, 0' % (T0 + 4 + j, MS + 2 * j)); a('v_mbcnt_hi_u32_b32 v%d, s%d, v%d' % (T0 + 4 + j, MS + 1 + 2 * j, T0 + 4 + j))
        if j > 0: a('s_add_u32 s65, s64, s%d' % (60 + j - 1))
        a('v_add_lshl_u32 v%d, v%d, s%d, 2' % (T0 + 4 + j, T0 + 4 + j, 64 if j == 0 else 65))
    for j in range(4):
        a('s_mov_b64 exec, %s' % sp(MS + 2 * j))
        a('ds_write_b32 v%d, v%d offset:%d' % (T0 + 4 + j, KEY + j, L_SEG))
    a('s_mov_b64 exec, -1')
    a('s_branch k_tk_b')
    a.label('k_tk_over')
    a('v_mov_b32 v%d, 1' % (T0 + 4)); a('ds_write_b32 v20, v%d offset:%d' % (T0 + 4, L_FLAG))
    a.label('k_tk_b')
    a('s_lshl_b32 s64, s7, 5'); a('v_mov_b32 v%d, s64' % (T0 + 1))
    a.wait(lg=0); barrier()
    a('ds_read_b32 v%d, v20 offset:%d' % (T0 + 2, L_FLAG))
    a('ds_read_b32 v%d, v21 offset:%d' % (T0 + 3, L_SEG))
    a('ds_read_b128 %s, v%d offset:%d' % (vq(T0 + 4), T0 + 1, L_SEG)); a('ds_read_b128 %s, v%d offset:%d' % (vq(T0 + 8), T0 + 1, L_SEG + 16))
    a('v_mov_b32 v%d, 0' % (T0 + 12)); a('v_mov_b32 v%d, 0' % (T0 + 13))
    a('v_readfirstlane_b32 s64, v%d' % (T0 + 2))
    a('s_cmp_lg_u32 s64, 0'); a('s_cbranch_scc1 k_tk_slow')
    for hh in range(2):
        for e in range(4): a('v_cmp_gt_u32 %s, v%d, v%d' % (sp(MS + 2 * e), T0 + 4 + 4 * hh + e, T0 + 3))
        for e in range(4): a('v_addc_co_u32 v%d, vcc, 0, v%d, %s' % (T0 + 12 + (e & 1), T0 + 12 + (e & 1), sp(MS + 2 * e)))
    a('v_add_u32 v%d, v%d, v%d' % (T0 + 12, T0 + 12, T0 + 13))
    a('ds_add_u32 v21, v%d offset:%d' % (T0 + 12, L_RANK))
    a('v_cmp_ne_u32 s[64:65], 0, v%d' % (T0 + 3))
    a.wait(lg=0); barrier()
    a('ds_read_b32 v%d, v21 offset:%d' % (T0 + 12, L_RANK))
    a('v_cmp_gt_u32 vcc, 8, v%d' % (T0 + 12)); a('v_lshlrev_b32 v%d, 2, v%d' % (T0 + 12, T0 + 12))
    a('s_and_b64 exec, vcc, s[64:65]')
    a('ds_write_b32 v%d, v%d offset:%d' % (T0 + 12, T0 + 3, L_SEL))
    a('s_mov_b64 exec, -1')
    a.wait(lg=0)
    a('s_branch k_tk_done')
    a.label('k_tk_slow')
    a.wait(lg=0)
    for j in range(4): a('v_cmp_ge_u32 %s, v%d, v%d' % (sp(MS + 2 * j), KEY + j, T0))
    a('v_mov_b32 v%d, s63' % (T0 + 1))
    a('s_mov_b64 exec, 1')
    a('ds_add_rtn_u32 v%d, v20, v%d offset:%d' % (T0 + 3, T0 + 1, L_CNT))
    a('s_mov_b64 exec, -1')
    a('v_readfirstlane_b32 s64, v%d' % (T0 + 3))
    for j in range(4):
        a('v_mbcnt_lo_u32_b32 v%d, s%d, 0' % (T0 + 4 + j, MS + 2 * j)); a('v_mbcnt_hi_u32_b32 v%d, s%d, v%d' % (T0 + 4 + j, MS + 1 + 2 * j, T0 + 4 + j))
        if j > 0: a('s_add_u32 s65, s64, s%d' % (60 + j - 1))
        a('v_add_lshl_u32 v%d, v%d, s%d, 2' % (T0 + 4 + j, T0 + 4 + j, 64 if j == 0 else 65))
        a('s_mov_b64 exec, %s' % sp(MS + 2 * j))
        a('ds_write_b32 v%d, v%d offset:%d' % (T0 + 4 + j, KEY + j, L_LIST))
        a('s_mov_b64 exec, -1')
    a.wait(lg=0); barrier()
    a('ds_read_b32 v%d, v20 offset:%d' % (T0, L_CNT))
    a('v_readfirstlane_b32 s60, v%d' % T0)
    a('s_mov_b32 s61, 0')
    a.label('k_tk_chunk')
    a('v_add_u32 v%d, s61, v0' % (T0 + 1)); a('v_lshlrev_b32 v%d, 2, v%d' % (T0 + 3, T0 + 1))
    a('ds_read_b32 v%d, v%d offset:%d' % (T0, T0 + 3, L_LIST))
    a('v_mov_b32 v%d, 0' % (T0 + 3)); a('s_mov_b32 s62, 0'); a('v_mov_b32 v%d, 0' % (T0 + 2))
    a.label('k_tk_scan')
    a('ds_read_b128 %s, v%d offset:%d' % (vq(T0 + 4), T0 + 2, L_LIST))
    a('s_sub_u32 s63, s60, s62')
    for e in range(4):
        a('v_cmp_gt_u32 vcc, v%d, v%d' % (T0 + 4 + e, T0))
        a('s_cmp_gt_u32 s63, %d' % e); a('s_cselect_b64 vcc, vcc, 0')
        a('v_addc_co_u32 v%d, vcc, 0, v%d, vcc' % (T0 + 3, T0 + 3))
    a('v_add_u32 v%d, 16, v%d' % (T0 + 2, T0 + 2))
    a('s_add_u32 s62, s62, 4'); a('s_cmp_lt_u32 s62, s60'); a('s_cbranch_scc1 k_tk_scan')
    a('v_cmp_gt_u32 vcc, s60, v%d' % (T0 + 1)); a('v_cmp_gt_u32 s[64:65], 8, v%d' % (T0 + 3)); a('s_and_b64 vcc, vcc, s[64:65]')
    a('v_lshlrev_b32 v%d, 2, v%d' % (T0 + 3, T0 + 3))
    a('s_mov_b64 exec, vcc')
    a('ds_write_b32 v%d, v%d offset:%d' % (T0 + 3, T0, L_SEL))
    a('s_mov_b64 exec, -1')
    a('s_add_u32 s61, s61, 512'); a('s_cmp_lt_u32 s61, s60'); a('s_cbranch_scc1 k_tk_chunk')
    a.wait(lg=0); barrier()
    a.label('k_tk_done')
    stamp(14)
    a('v_and_b32 v4, 7, v1'); a('v_lshlrev_b32 v5, 2, v4')
    a('ds_read_b32 v7, v5 offset:%d' % L_SEL)
    a('v_lshrrev_b32 v6, 3, v1'); a('v_add_lshl_u32 v6, v6, v4, 2'); a('v_and_b32 v6, 28, v6')
    a('ds_read_b32 v9, v6 offset:%d' % L_SEL)
    a('v_lshrrev_b32 v6, 4, v1')
    srd(48, OUT, 2 * MiB)
    a('v_and_b32 v8, 0x7ff, v7'); a('v_sub_u32 v8, 2047, v8')
    a('v_lshrrev_b32 v10, 3, v8'); a('v_lshlrev_b32 v10, 11, v10'); a('v_add_u32 v10, %d, v10' % (SM_SPEC - SM_X1))
    a('v_lshlrev_b32 v8, 10, v8')
    a('v_cmp_eq_u32 vcc, s14, v7'); a('s_and_b32 s60, vcc_lo, 0xff')
    a('v_xor_b32 v9, v9, v7'); a('v_and_b32 v9, 0x7f8, v9'); a('v_cmp_eq_u32 vcc, 0, v9')
    a('v_lshlrev_b32 v9, 11, v4')
    a('s_andn2_b32 s62, vcc_lo, 0xff'); a('s_or_b32 s62, s62, vcc_hi')
    if SPEC:
        a('s_cmp_eq_u32 s62, 0'); a('s_cselect_b64 vcc, -1, 0'); a('s_cselect_b32 s63, 0, s60')
        a('v_cndmask_b32 v10, v9, v10, vcc')
    else:
        a('v_mov_b32 v10, v9'); a('s_mov_b32 s63, s60')
    def own_row_store(tag):
        a('s_cmp_lg_u32 s60, 0'); a('s_cbranch_scc1 k_own_%s' % tag)
        a('buffer_store_dwordx4 %s, v2, s[48:51], s13 offen' % vq(OUTR))
        a.label('k_own_%s' % tag)
    a('s_cmp_eq_u32 s63, 0'); a('s_cbranch_scc1 k_nosel')
    a('s_ff1_i32_b32 s61, s60'); a('s_lshl_b32 s61, s61, 11'); a('s_add_u32 s61, s61, %d' % (WS_SM + SM_X1))
    if OWNER: a('buffer_store_dwordx4 %s, v2, s[56:59], s61 offen sc1' % vq(H2P))
    a('buffer_store_dwordx4 %s, v2, s[56:59], s61 offen offset:1024 sc1' % vq(X1P))
    a.label('k_nosel')
    a('s_cmp_ge_u32 s5, 28'); a('s_cbranch_scc1 k_ffn2')
    st1 = a.save()
    if OWNER:
        a('v_lshl_add_u32 v9, v6, 4, v10')
        a('s_lshl_b32 s64, s7, 7'); a('s_add_u32 s11, s64, %d' % (WS_SM + SM_X1))
    else:
        a('v_lshl_add_u32 v9, v6, 4, v8')
        a('s_lshl_b32 s64, s7, 7'); a('s_add_u32 s11, s64, %d' % WS_H2)
    a('v_and_b32 v20, 3, v1'); a('v_bfe_u32 v21, v1, 2, 2')
    a('v_lshlrev_b32 v22, 7, v6'); a('v_lshl_add_u32 v22, v21, 4, v22')
    a('v_and_b32 v23, 1, v20'); a('v_lshl_add_u32 v22, v23, 3, v22')
    a('v_lshrrev_b32 v23, 1, v20'); a('v_mul_u32_u24 v23, %d, v23' % L_GU); a('v_add_u32 v22, v22, v23')
    a('s_lshl_b32 s64, s7, 10'); a('s_add_u32 s64, s64, %d' % L_W); a('v_add_u32 v22, s64, v22')
    for i in range(2):
        for hh in range(2): a('ds_read_b64_tr_b16 %s, v22 offset:%d' % (vp(24 + 4 * i + 2 * hh), 512 * i + 64 * hh))
    ppoll('X', lambda B: ['buffer_load_dwordx4 %s, v9, s[56:59], s11 offen sc1' % vq(B), 'buffer_load_dwordx4 %s, v9, s[56:59], s11 offen offset:64 sc1' % vq(B + 4)],
          lambda B: bad_sent(list(range(B, B + 8)), 36)(), 8, 12, [80, 88, 96], exec_mask=0x00ff00ff)
    tstamp(1)
    a('v_mfma_f32_16x16x32_bf16 v[32:35], v[24:27], v[12:15], 0')
    a('v_mfma_f32_16x16x32_bf16 v[32:35], v[28:31], v[16:19], v[32:35]')
    a('v_lshlrev_b32 v36, 4, v0')
    own_row_store('a')
    a.nop(5)
    a('ds_write_b128 v36, v[32:35] offset:%d' % L_P)
    a.wait(lg=0); barrier()
    a('s_cmp_lg_u32 s7, 0'); a('s_cbranch_scc1 k_end')
    for w in range(8): a('ds_read_b128 %s, v36 offset:%d' % (vq(40 + 4 * w), L_P + 1024 * w))
    a('s_mov_b32 s64, 0x%x' % (LOG2E | 0x80000000))
    a('s_mul_i32 s65, s4, 28'); a('s_add_u32 s65, s65, s5'); a('s_lshl_b32 s65, s65, 7'); a('s_add_u32 s65, s65, %d' % (WS_SM + SM_ACT))
    a('v_and_b32 v73, 15, v1'); a('v_lshlrev_b32 v74, 4, v73'); a('v_lshl_add_u32 v72, v6, 3, v74')
    for st in (16, 8, 4):
        for i in range(0, st, 2): pk('add', 40 + i, 40 + i, vp(40 + i + st))
    for i in range(4): rb(40 + i, 40 + i)
    for i in range(4): a('v_mov_b32 v%d, v%d' % (44 + i, 40 + i))
    silu_like(52, 40, 4, 64)
    for i in range(4): a('v_permlane32_swap_b32 v%d, v%d' % (44 + i, 48 + i))
    for i in range(4): a('v_mul_f32 v%d, v%d, v%d' % (52 + i, 52 + i, 48 + i))
    a('v_cvt_pk_bf16_f32 v56, v52, v53'); a('v_cvt_pk_bf16_f32 v57, v54, v55')
    a('v_min_u32 v56, -2, v56'); a('v_min_u32 v57, -2, v57')
    a('s_mov_b32 exec_lo, 0x00ff00ff'); a('s_mov_b32 exec_hi, 0')
    a('buffer_store_dwordx2 v[56:57], v72, s[56:59], s65 offen sc1')
    tstamp(2)
    a('s_branch k_end')
    a.label('k_ffn2'); a.load(st1)
    own_row_store('b')
    a('s_lshl_b32 s8, s4, 2'); a('s_add_u32 s8, s8, s5'); a('s_sub_u32 s8, s8, 28')
    a('s_lshl_b32 s9, s8, 5')
    a('s_mul_i32 s64, s7, 7168'); a('s_add_u32 s64, s64, %d' % L_W)
    if WDE < 7 and WSCHED != 'N':
        srd(52, WD_, 1792 * 1024)
        wd_addr(15)
        a('s_mul_i32 s65, s7, %d' % (224 * 1024)); a('s_add_u32 s65, s65, s9'); a('s_add_u32 s65, s65, %d' % (32768 * WDE)); a('s_add_u32 s10, s64, %d' % (1024 * WDE))
        for i in range(WDE, 7):
            a('s_mov_b32 m0, s10'); a('s_add_u32 s10, s10, 1024'); a('buffer_load_dwordx4 v15, s[52:55], s65 offen lds'); a('s_add_u32 s65, s65, 32768')
    a('v_and_b32 v20, 3, v1'); a('v_bfe_u32 v21, v1, 2, 2')
    a('v_lshrrev_b32 v22, 1, v6'); a('v_lshlrev_b32 v22, 9, v22'); a('v_and_b32 v23, 1, v6'); a('v_lshl_add_u32 v22, v23, 7, v22')
    a('v_lshl_add_u32 v22, v21, 5, v22'); a('v_lshl_add_u32 v22, v20, 3, v22')
    a('v_add_u32 v22, s64, v22')
    for i in range(WDE):
        for hh in range(2): a('ds_read_b64_tr_b16 %s, v22 offset:%d' % (vp(64 + 4 * i + 2 * hh), 1024 * i + 256 * hh))
    a('v_lshlrev_b32 v9, 7, v6'); a('v_lshl_add_u32 v9, v4, 4, v9')
    a('s_mul_i32 s11, s7, 3584'); a('s_add_u32 s11, s11, %d' % (WS_SM + SM_ACT))
    a('v_lshl_add_u32 v8, v6, 3, v8')
    a('s_cmp_lg_u32 s7, 0'); a('s_cbranch_scc1 k_f2_act')
    a('v_lshl_add_u32 v10, v6, 3, v10')
    a('s_add_u32 s61, s9, %d' % WS_H2); a('s_add_u32 s62, s9, %d' % (WS_SM + SM_X1))
    a('v_lshlrev_b32 v11, 3, v6'); a('v_add_u32 v11, s9, v11')
    a('ds_read_b64 v[16:17], v11 offset:%d' % (L_MOD + 5 * 1024))
    a('v_and_b32 v30, s3, v7'); a('v_ashrrev_i32 v31, 31, v30'); a('v_not_b32 v31, v31'); a('v_or_b32 v31, 0x80000000, v31'); a('v_xor_b32 v30, v30, v31'); a('v_and_b32 v30, s3, v30')
    a('s_mov_b32 s64, 0x%x' % (LOG2E | 0x80000000))
    silu_like(31, 30, 1, 64, mulx=False)
    unpack(92, 16, 2)
    poll(['buffer_load_dwordx2 v[12:13], v10, s[56:59], s62 offen sc1' if OWNER else 'buffer_load_dwordx2 v[12:13], v8, s[56:59], s61 offen sc1',
          'buffer_load_dwordx2 v[14:15], v10, s[56:59], s62 offen offset:1024 sc1'], bad_sent([12, 13, 14, 15], 29))
    unpack(96, 12, 4)
    a.label('k_f2_act')
    a.wait(vm=0, lg=0)
    tstamp(3)
    for i in range(WDE, 7):
        for hh in range(2): a('ds_read_b64_tr_b16 %s, v22 offset:%d' % (vp(64 + 4 * i + 2 * hh), 1024 * i + 256 * hh))
    ppoll('A', lambda B: ['buffer_load_dwordx4 %s, v9, s[56:59], s11 offen offset:%d sc1' % (vq(B + 4 * i), 512 * i) for i in range(7)],
          lambda B: bad_sent(list(range(B, B + 28)), 29)(), 28, 32, [112, 140], exec_mask=0x00ff00ff)
    tstamp(4)
    if STAMP and TAILST: a('s_mov_b32 s%d, s64' % (SST + 12))
    for i in range(7):
        a('v_mfma_f32_16x16x32_bf16 v[24:27], %s, %s, %s' % (vq(64 + 4 * i), vq(32 + 4 * i), '0' if i == 0 else 'v[24:27]'))
    a('v_lshlrev_b32 v28, 4, v0')
    a('ds_write_b128 v28, v[24:27] offset:%d' % L_P)
    a.wait(lg=0); barrier()
    a('s_cmp_lg_u32 s7, 0'); a('s_cbranch_scc1 k_end')
    for w in range(8): a('ds_read_b128 %s, v28 offset:%d' % (vq(40 + 4 * w), L_P + 1024 * w))
    for st in (16, 8, 4):
        for i in range(0, st, 2): pk('add', 40 + i, 40 + i, vp(40 + i + st))
    for i in range(4): rb(40 + i, 40 + i)
    for i in range(4): a('v_mul_f32 v%d, v%d, v31' % (40 + i, 40 + i))
    for i in range(4): rb(40 + i, 40 + i)
    for i in (0, 2): pk('add', 40 + i, 40 + i, vp(96 + i))
    for i in range(4): rb(40 + i, 40 + i)
    for i in (0, 2): pk('mul', 40 + i, 40 + i, vp(92 + i))
    for i in range(4): rb(40 + i, 40 + i)
    for i in (0, 2): pk('add', 40 + i, 40 + i, vp(100 + i))
    a('v_cvt_pk_bf16_f32 v44, v40, v41'); a('v_cvt_pk_bf16_f32 v45, v42, v43')
    a('s_mov_b32 exec_lo, 0x00ff00ff'); a('s_mov_b32 exec_hi, 0x00ff00ff')
    a('buffer_store_dwordx2 v[44:45], v8, s[48:51], s9 offen')
    if DBGSPAN:
        a('s_memrealtime s[64:65]'); a.wait(lg=0)
        a('s_sub_u32 s64, s64, s68'); a('v_mov_b32 v1, s64'); a('s_and_b32 s8, s8, 7'); a('s_lshl_b32 s8, s8, 2'); a('s_add_u32 s8, s8, 8')
        srd(52, DBG, 256)
        a('v_mov_b32 v2, 0'); a('s_mov_b64 exec, 1')
        a('buffer_store_dword v1, v2, s[52:55], s8 offen')
    a.label('k_end')
    if STAMP:
        a('s_memrealtime s[%d:%d]' % (SST + 30, SST + 31))
        a('s_mov_b64 exec, -1')
        a.wait(vm=0, lg=0)
        for i in range(16): a('v_writelane_b32 v2, s%d, %d' % (SST + 2 * i, i))
        a('s_mul_i32 s5, s2, 9'); a('s_add_u32 s5, s5, s7'); a('s_lshl_b32 s5, s5, 6')
        srd(8, WS, MiB, WS_STAMP)
        a('v_and_b32 v1, 63, v0'); a('v_lshlrev_b32 v1, 2, v1')
        a('s_mov_b64 exec, 0xffff')
        a('buffer_store_dword v2, v1, s[8:11], s5 offen')
    a.label('k_exit')
    a('s_endpgm')
    a.label('k_code_end')

def main(outpath):
    hdr = open('cdna_kernels/%s.s.ref' % NAME).read().split('\n')
    out = [l for l in hdr if l.startswith(';') and '@launch' not in l]
    out.append('; @launch grid=(256,1,1) block=(576,1,1) lds=%d' % LDS_SIZE)
    out.append('.amdgcn_target "amdgcn-amd-amdhsa--gfx950"'); out.append('.text')
    gen()
    body = a.text()
    m = max([int(x) for x in re.findall(r'\bv(\d+)\b', body)] + [int(x) for x in re.findall(r'\bv\[\d+:(\d+)\]', body)])
    vg = (m + 1 + 7) // 8 * 8
    assert vg <= 168
    out.append(body)
    out.append('.section .rodata,"a"')
    out.append('.p2align 6')
    out.append('.amdhsa_kernel %s' % KN)
    out.append('  .amdhsa_next_free_vgpr %d' % vg); out.append('  .amdhsa_next_free_sgpr 102'); out.append('  .amdhsa_accum_offset %d' % vg)
    out.append('  .amdhsa_group_segment_fixed_size 0'); out.append('  .amdhsa_kernarg_size 128')
    out.append('  .amdhsa_user_sgpr_count 2'); out.append('  .amdhsa_user_sgpr_kernarg_segment_ptr 1'); out.append('  .amdhsa_system_sgpr_workgroup_id_x 1')
    out.append('  .amdhsa_float_denorm_mode_32 3')
    out.append('.end_amdhsa_kernel')
    open(outpath, 'w').write('\n'.join(out) + '\n')
    print('wrote', outpath, 'vgprs', m + 1, 'nops', a.nops_inserted, 'LDS', LDS_SIZE)

if __name__ == '__main__':
    main(sys.argv[1] if len(sys.argv) > 1 else 'cdna_kernels/%s.s' % NAME)
```

```python
import sys, os, re
from asmlib import Asm

NAME = 'adaLN_cond__ssm_conv_h3__moe_arch_mod__prompt'
KN = NAME + '_kernel'
MiB = 1 << 20
WS_U = 0
WS_Z = 4 * MiB
WS_H2 = 6 * MiB
WS_SM = 8 * MiB
SM_MOD = 0
SM_KEY = 32768
SM_ACT = 65536
SM_X1 = 98304
SM_SPEC = 131072
WS_SIZE = 9 * MiB
WS_STAMP = 14 * MiB
STAMP = int(os.environ.get('STAMP', '0'))
SPIN_LIMIT = 1 << 14
DBGSPAN = int(os.environ.get('DBGSPAN', '0'))
PACE = int(os.environ.get('PACE', '1'))
PRIO = int(os.environ.get('PRIO', '1'))
WSCHED = os.environ.get('WSCHED', 'F')
NT = ' nt' if int(os.environ.get('NT', '0')) else ''
NTW = ' nt' if int(os.environ.get('NTW', '0')) else ''
WSOFF = int(os.environ.get('WSOFF', '240')) * MiB
OWNER = int(os.environ.get('OWNER', '1'))
LOG2E = 0x3fb8aa3b
a = Asm()
SST = 70
SPEC = int(os.environ.get('SPEC', '1'))
UWIN = 2048; UDELTA = 250; UTRIES = int(os.environ.get('UTRIES', '40'))
FLO, FHI = 28, 29
TAILST = int(os.environ.get('TAILST', '0'))
def tstamp(i):
    if STAMP and TAILST: a('s_memrealtime s[%d:%d]' % (SST + 2 * i, SST + 1 + 2 * i))
def stamp(i):
    if TAILST and 1 <= i <= 6: return
    if STAMP: a('s_memrealtime s[%d:%d]' % (SST + 2 * i, SST + 1 + 2 * i))
def srd(s, ptr, size, add=0):
    if add:
        a('s_add_u32 s%d, s%d, 0x%x' % (s, ptr, add)); a('s_addc_u32 s%d, s%d, 0' % (s + 1, ptr + 1))
    else:
        a('s_mov_b32 s%d, s%d' % (s, ptr)); a('s_mov_b32 s%d, s%d' % (s + 1, ptr + 1))
    a('s_mov_b32 s%d, 0x%x' % (s + 2, size)); a('s_mov_b32 s%d, 0x00020000' % (s + 3))
MASK = 3
def lo(d, s): a('v_lshlrev_b32 v%d, 16, v%d' % (d, s))
def hi(d, s): a('v_and_b32 v%d, s%d, v%d' % (d, MASK, s))
def rb(d, s): a('v_cvt_pk_bf16_f32 v%d, 0, v%d' % (d, s))
def pk(op, d, x, y, extra=''): a('v_pk_%s_f32 v[%d:%d], v[%d:%d], %s %s' % (op, d, d + 1, x, x + 1, y, extra))
def vp(r): return 'v[%d:%d]' % (r, r + 1)
def vq(r): return 'v[%d:%d]' % (r, r + 3)
def sp(r): return 's[%d:%d]' % (r, r + 1)
def sq(r): return 's[%d:%d]' % (r, r + 3)
def unpack(d, s, n):
    for i in range(n): lo(d + 2 * i, s + i); hi(d + 2 * i + 1, s + i)
DPPS = ('row_shr:1 row_mask:0xf bank_mask:0xf', 'row_shr:2 row_mask:0xf bank_mask:0xf', 'row_shr:4 row_mask:0xf bank_mask:0xf',
        'row_shr:8 row_mask:0xf bank_mask:0xf', 'row_bcast:15 row_mask:0xa bank_mask:0xf', 'row_bcast:31 row_mask:0xc bank_mask:0xf')
def wave_reduce(op, regs):
    for ctl in DPPS:
        for r in regs: a('%s_dpp v%d, v%d, v%d %s' % (op, r, r, r, ctl))
def silu_like(D, X, n, sneg, mulx=True):
    for i in range(n): a('v_mul_f32 v%d, s%d, v%d' % (D + i, sneg, X + i))
    for i in range(n): a('v_exp_f32 v%d, v%d' % (D + i, D + i))
    for i in range(n): a('v_add_f32 v%d, 1.0, v%d' % (D + i, D + i))
    for i in range(n): a('v_rcp_f32 v%d, v%d' % (D + i, D + i))
    if mulx:
        for i in range(n): a('v_mul_f32 v%d, v%d, v%d' % (D + i, D + i, X + i))
    for i in range(n): rb(D + i, D + i)
def barrier(): a('s_barrier')

L_WM = 0; L_KEYL = 32; L_SEL = 64; L_RANK = 128; L_SEG = 384; L_CNT = 640; L_FLAG = 644; L_KVA = 648; L_IMGC = 652; L_UGO = 656; L_UST = 660; L_EP = 664; L_YC = 672; L_MR = 676; L_QD = 680; L_MP = 704
L_WR = 1024; L_NB = 2048; L_XB = L_NB + 8192; L_MOD = L_XB + 8192; L_Y = L_MOD + 6144 + 2048
L_LIST = L_Y; L_P = L_Y + 8192; L_RK = L_Y; L_RV = L_Y + 9216
L_IMG = L_Y + 32768
L_U1 = 0; L_U0 = 4576; L_KA = 9216; L_KB = 13440; L_CB = 17664
assert L_IMG % 256 == 0
L_ZT = L_IMG + L_KA; ZP = 1040
L_W = L_IMG + 2 * L_CB; L_GU = 8256; L_WMT = L_W + 16896; L_SC = L_WMT + 16384
LDS_SIZE = L_W + 57344
Q, KP, VP_, SHK, SSMK, SSMD, WRP = 16, 18, 20, 22, 24, 26, 30
WG_, WU_, WD_, CP, WMOD, OUT, DBG, WS = 32, 34, 36, 38, 40, 42, 44, 46
T0S, T1S = 14, 15

def ln_stats(X, T, sC, sMB, sRI, vS):
    a('v_readfirstlane_b32 s%d, v%d' % (sC, X)); a('v_readfirstlane_b32 s%d, v%d' % (sC + 1, X))
    for i in range(0, 8, 2): pk('add', T + i, X + i, sp(sC), 'neg_lo:[0,1] neg_hi:[0,1]')
    pk('add', vS, T, vp(T + 2)); pk('mul', vS + 2, T, vp(T))
    pk('add', T, T + 4, vp(T + 6))
    a('v_pk_fma_f32 %s, %s, %s, %s' % (vp(vS + 2), vp(T + 2), vp(T + 2), vp(vS + 2)))
    pk('mul', T + 2, T + 4, vp(T + 4))
    pk('add', vS, vS, vp(T))
    a('v_pk_fma_f32 %s, %s, %s, %s' % (vp(T + 2), vp(T + 6), vp(T + 6), vp(T + 2)))
    a('v_add_f32 v%d, v%d, v%d' % (vS, vS, vS + 1))
    pk('add', vS + 2, vS + 2, vp(T + 2))
    a('v_add_f32 v%d, v%d, v%d' % (vS + 1, vS + 2, vS + 3))
    wave_reduce('v_add_f32', [vS, vS + 1])
    a('v_mul_f32 v%d, 0x3b000000, v%d' % (vS, vS)); a('v_mul_f32 v%d, 0x3b000000, v%d' % (vS + 1, vS + 1))
    a('v_fma_f32 v%d, -v%d, v%d, v%d' % (vS + 1, vS, vS, vS + 1))
    a('v_add_f32 v%d, s%d, v%d' % (vS, sC, vS))
    a('v_max_f32 v%d, 0, v%d' % (vS + 1, vS + 1))
    rb(vS, vS); rb(vS + 1, vS + 1)
    a('v_readlane_b32 s%d, v%d, 63' % (sMB, vS)); a('v_readlane_b32 s%d, v%d, 63' % (sMB + 1, vS))
    a('v_add_f32 v%d, 0x3727c5ac, v%d' % (vS + 1, vS + 1)); rb(vS + 1, vS + 1)
    a('v_sqrt_f32 v%d, v%d' % (vS + 1, vS + 1)); rb(vS + 1, vS + 1)
    a('v_rcp_f32 v%d, v%d' % (vS + 1, vS + 1))
    return lambda: (a('v_readlane_b32 s%d, v%d, 63' % (sRI, vS + 1)), a('v_readlane_b32 s%d, v%d, 63' % (sRI + 1, vS + 1)))
def ln_norm(D, X, sMB, sRI, fin):
    for i in range(0, 8, 2): pk('add', D + i, X + i, sp(sMB), 'neg_lo:[0,1] neg_hi:[0,1]')
    for i in range(8): rb(D + i, D + i)
    fin()
    for i in range(0, 8, 2): pk('mul', D + i, D + i, sp(sRI))
def affine(D, C1, SH):
    for i in range(0, 8, 2): pk('mul', D + i, D + i, vp(C1 + i))
    for i in range(8): rb(D + i, D + i)
    for i in range(0, 8, 2): pk('add', D + i, D + i, vp(SH + i))
    for i in range(8): rb(D + i, D + i)

_pl = [0]
def poll(loads, bad, exec_mask=None):
    n = _pl[0]; _pl[0] += 1
    a('s_mov_b32 s64, 0')
    if exec_mask is not None:
        a('s_mov_b32 exec_lo, 0x%x' % exec_mask); a('s_mov_b32 exec_hi, 0x%x' % exec_mask)
    a.label('poll%d' % n)
    for l in loads: a(l)
    a.wait(vm=0)
    bad()
    a('s_add_u32 s64, s64, 1')
    a('s_and_b64 exec, exec, vcc')
    a('s_cbranch_execz poll%d_done' % n)
    a('s_cmp_lt_u32 s64, %d' % SPIN_LIMIT); a('s_cbranch_scc1 poll%d' % n)
    a.label('poll%d_done' % n)
    a('s_mov_b64 exec, -1')
def envi(n, d): return int(os.environ.get(n, str(d)))
def ppoll(name, loadfn, badfn, n, F, sets, exec_mask=None):
    ns = min(envi('P_%s_NS' % name, envi('P_NS', 1)), len(sets)); gap = envi('P_%s_GAP' % name, envi('P_GAP', 2)); pre = envi('P_%s_PRE' % name, envi('P_PRE', 0))
    if pre: a('s_sleep %d' % pre)
    if ns <= 1:
        poll(loadfn(F), lambda: badfn(F), exec_mask); return
    k = _pl[0]; _pl[0] += 1
    nl = len(loadfn(F))
    a('s_mov_b32 s64, 0')
    if exec_mask is not None:
        a('s_mov_b32 exec_lo, 0x%x' % exec_mask); a('s_mov_b32 exec_hi, 0x%x' % exec_mask)
    for j in range(ns - 1):
        for l in loadfn(sets[j]): a(l)
        if gap: a('s_sleep %d' % gap)
    a.label('pp%d' % k)
    for j in range(ns):
        for l in loadfn(sets[(j + ns - 1) % ns]): a(l)
        a.wait(vm=nl * (ns - 1))
        a.vm = [[] for _ in a.vm]
        badfn(sets[j])
        a('s_mov_b64 s[66:67], exec')
        a('s_andn2_b64 exec, exec, vcc')
        for i in range(n): a('v_mov_b32 v%d, v%d' % (F + i, sets[j] + i))
        a('s_and_b64 exec, s[66:67], vcc')
        a('s_cbranch_execz pp%d_done' % k)
        if gap: a('s_sleep %d' % gap)
    a('s_add_u32 s64, s64, 1')
    a('s_cmp_lt_u32 s64, %d' % SPIN_LIMIT); a('s_cbranch_scc1 pp%d' % k)
    a.label('pp%d_done' % k)
    a('s_mov_b64 exec, -1')
    a.vm = [[('v', b + i) for b in sets[:ns] for i in range(n)]]
def bad_sent(regs, tmp):
    def f():
        rs = list(regs); first = True
        while rs:
            if first:
                x = rs[:3]; rs = rs[3:]; first = False
                a('v_max3_u32 v%d, v%d, v%d, v%d' % (tmp, x[0], x[1], x[2]))
            elif len(rs) >= 2:
                a('v_max3_u32 v%d, v%d, v%d, v%d' % (tmp, tmp, rs[0], rs[1])); rs = rs[2:]
            else:
                a('v_max_u32 v%d, v%d, v%d' % (tmp, tmp, rs[0])); rs = rs[1:]
        a('v_cmp_eq_u32 vcc, -1, v%d' % tmp)
    return f

EPR = 28
def epoch_issue(vaddr0, vdst):
    a('buffer_load_dwordx2 %s, v%d, %s, 0 offen sc1' % (vp(vdst), vaddr0, sq(EPR)))
_ep = [0]
def epoch_finish(vaddr0, vdst):
    n = _ep[0]; _ep[0] += 1
    a('s_mov_b32 s64, 0')
    a.label('ep%d' % n)
    a.wait(vm=0)
    a('v_readfirstlane_b32 s%d, v%d' % (T1S, vdst + 1)); a('v_readfirstlane_b32 s%d, v%d' % (T0S, vdst))
    a('s_add_u32 s64, s64, 1')
    a('s_cmp_lg_u32 s%d, 0' % T1S); a('s_cbranch_scc1 ep%d_done' % n)
    a('s_cmp_ge_u32 s64, %d' % SPIN_LIMIT); a('s_cbranch_scc1 ep%d_done' % n)
    epoch_issue(vaddr0, vdst)
    a('s_branch ep%d' % n)
    a.label('ep%d_done' % n)

def ln1_own_row(qreg, X, T, S, vrow):
    unpack(X, qreg, 4)
    a('ds_write_b128 v%d, %s offset:%d' % (vrow, vq(qreg), L_XB))
    fin = ln_stats(X, T, 60 + 6, 62 + 6, 64 + 0, S) if False else ln_stats(X, T, 48, 50, 52, S)
    ln_norm(T, X, 50, 52, fin)
    for i in range(4): a('v_cvt_pk_bf16_f32 v%d, v%d, v%d' % (X + i, T + 2 * i, T + 2 * i + 1))
    a('ds_write_b128 v%d, %s offset:%d' % (vrow, vq(X), L_NB))

def kv_weights(W, WR):
    for c in range(2):
        lo(W + 0 + c, WR + 2 * c); hi(W + 2 + c, WR + 2 * c); lo(W + 4 + c, WR + 2 * c + 1); hi(W + 6 + c, WR + 2 * c + 1)
def kv_compute(KR, VR, W, KF, S, P, O):
    unpack(KF, KR, 8)
    for i in range(5): pk('mul', S + 2 * i, KF + 2 * i, vp(W + 6))
    for r in range(10): rb(S + r, S + r)
    for t in (1, 2, 3):
        for i in range(5): pk('mul', P + 2 * i, KF + 2 * (i + t), vp(W + 2 * (3 - t)))
        for r in range(10): rb(P + r, P + r)
        for r in range(0, 10, 2): pk('add', S + r, S + r, vp(P + r))
        for r in range(10): rb(S + r, S + r)
    unpack(P, VR, 5)
    for r in range(0, 10, 2): pk('mul', S + r, S + r, vp(P + r))
    for c in range(2):
        a('v_cvt_pk_bf16_f32 v%d, v%d, v%d' % (O + 4 * c, S + 8 + c, S + 6 + c))
        a('v_cvt_pk_bf16_f32 v%d, v%d, v%d' % (O + 4 * c + 1, S + 4 + c, S + 2 + c))
        a('v_cvt_pk_bf16_f32 v%d, v%d, 0' % (O + 4 * c + 2, S + c))
def u_poll_build(G, R=56):
    a('v_lshlrev_b32 v%d, 4, v0' % (G + 8))
    a('s_lshl_b32 s8, s6, 14'); a('s_add_u32 s9, s8, 8192')
    a('v_lshlrev_b32 v%d, 3, v0' % (G + 9)); a('v_add_u32 v%d, %d, v%d' % (G + 9, L_IMG, G + 9))
    n = _pl[0]; _pl[0] += 1
    a('s_mov_b32 s64, 0')
    a.label('uf%d' % n)
    a('buffer_load_dwordx4 %s, v%d, %s, s8 offen sc1' % (vq(G), G + 8, sq(R))); a('buffer_load_dwordx4 %s, v%d, %s, s9 offen sc1' % (vq(G + 4), G + 8, sq(R)))
    a.wait(vm=0)
    a('v_subrev_u32 v%d, s%d, v%d' % (G + 10, FLO, G + 3)); a('v_subrev_u32 v%d, s%d, v%d' % (G + 11, FLO, G + 7))
    a('v_xor_b32 v%d, s%d, v%d' % (G + 12, FHI, G + 2)); a('v_xor_b32 v%d, s%d, v%d' % (G + 13, FHI, G + 6))
    a('v_max_u32 v%d, v%d, v%d' % (G + 10, G + 10, G + 11)); a('v_or_b32 v%d, v%d, v%d' % (G + 12, G + 12, G + 13))
    a('v_and_or_b32 v%d, v%d, s3, v%d' % (G + 10, G + 12, G + 10))
    a('v_cmp_le_u32 vcc, %d, v%d' % (UWIN, G + 10))
    a('s_add_u32 s64, s64, 1')
    a('s_and_b64 exec, exec, vcc')
    a('s_cbranch_execz uf%d_done' % n)
    a('s_cmp_lt_u32 s64, %d' % UTRIES); a('s_cbranch_scc1 uf%d' % n)
    a('s_mov_b64 exec, -1')
    srd(48, KP, 2 * MiB); srd(52, VP_, 2 * MiB)
    a('v_lshlrev_b32 v56, 12, v0'); a('v_sub_u32 v56, %d, v56' % (2044 * 1024)); a('s_lshl_b32 s64, s6, 2'); a('v_add_u32 v56, s64, v56')
    a('v_subrev_u32 v57, 4096, v56'); a('v_mov_b32 v58, 0x80000000'); a('v_cmp_eq_u32 vcc, 511, v0'); a('v_cndmask_b32 v57, v57, v58, vcc')
    a('s_lshl_b32 s64, s6, 4'); a('v_mov_b32 v58, s64')
    for i in range(8): a('buffer_load_dword v%d, v%d, s[48:51], 0 offen offset:%d' % (104 + i, 57 if i < 4 else 56, 1024 * (i & 3)))
    a('buffer_load_dword v112, v57, s[52:55], 0 offen offset:3072')
    for i in range(4): a('buffer_load_dword v%d, v56, s[52:55], 0 offen offset:%d' % (113 + i, 1024 * i))
    a('global_load_dwordx4 v[120:123], v58, %s' % sp(SHK))
    kv_weights(124, 120)
    kv_compute(104, 112, 124, 60, 80, 92, G)
    a.label('uf%d_done' % n)
    a('s_mov_b64 exec, -1')
    for ch in range(2):
        g = G + 4 * ch
        a('ds_write_b64 v%d, %s offset:%d' % (G + 9, vp(g), L_U1 + L_CB * ch))
        a('v_alignbit_b32 v%d, v%d, v%d, 16' % (G + 10 + 2 * ch, g + 1, g)); a('v_alignbit_b32 v%d, v%d, v%d, 16' % (G + 11 + 2 * ch, g + 2, g + 1))
        a('ds_write_b64 v%d, %s offset:%d' % (G + 9, vp(G + 10 + 2 * ch), L_U0 + L_CB * ch))


_lw = [0]
def lds_wait(addr_v, tmp_v, off, thresh, sleep=1):
    n = _lw[0]; _lw[0] += 1
    a('s_mov_b32 s64, 0')
    a.label('lw%d' % n)
    a('ds_read_b32 v%d, v%d offset:%d' % (tmp_v, addr_v, off))
    a('s_add_u32 s64, s64, 1')
    a.wait(lg=0)
    a('v_readfirstlane_b32 s65, v%d' % tmp_v)
    a('s_cmp_ge_u32 s65, %d' % thresh); a('s_cbranch_scc1 lw%d_ok' % n)
    if sleep: a('s_sleep %d' % sleep)
    a('s_cmp_lt_u32 s64, %d' % (SPIN_LIMIT * 16)); a('s_cbranch_scc1 lw%d' % n)
    a.label('lw%d_ok' % n)
def lds_epoch(addr_v, tmp):
    n = _lw[0]; _lw[0] += 1
    a('s_mov_b32 s64, 0')
    a.label('lw%d' % n)
    a('ds_read_b64 %s, v%d offset:%d' % (vp(tmp), addr_v, L_EP))
    a('s_add_u32 s64, s64, 1')
    a.wait(lg=0)
    a('v_readfirstlane_b32 s%d, v%d' % (T1S, tmp + 1)); a('v_readfirstlane_b32 s%d, v%d' % (T0S, tmp))
    a('s_cmp_lg_u32 s%d, 0' % T1S); a('s_cbranch_scc1 lw%d_ok' % n)
    a('s_cmp_lt_u32 s64, %d' % (SPIN_LIMIT * 16)); a('s_cbranch_scc1 lw%d' % n)
    a.label('lw%d_ok' % n)
def lds_inc(zero_v, one_v, off):
    a('s_mov_b64 exec, 1'); a('ds_add_u32 v%d, v%d offset:%d' % (zero_v, one_v, off)); a('s_mov_b64 exec, -1')

WDE = int(os.environ.get('WDE', '5'))
def wd_addr(V):
    a('v_lshrrev_b32 v%d, 1, v1' % V)
    a('v_and_b32 v%d, 0x13, v%d' % (V + 1, V)); a('v_bfe_u32 v%d, v%d, 2, 1' % (V + 2, V)); a('v_lshl_or_b32 v%d, v%d, 3, v%d' % (V + 1, V + 2, V + 1))
    a('v_bfe_u32 v%d, v%d, 3, 1' % (V + 2, V)); a('v_lshl_or_b32 v%d, v%d, 2, v%d' % (V + 1, V + 2, V + 1))
    a('v_lshlrev_b32 v%d, 10, v%d' % (V, V + 1)); a('v_and_b32 v%d, 1, v1' % (V + 1)); a('v_lshl_add_u32 v%d, v%d, 4, v%d' % (V, V + 1, V))

def gen():
    a.raw('.p2align 8'); a.raw('.globl %s' % KN); a.raw('.type %s,@function' % KN); a.label(KN); a.reset()
    a('s_load_dwordx16 s[16:31], s[0:1], 0')
    a('s_cmp_ge_u32 s2, 256'); a('s_cbranch_scc1 k_exit')
    if STAMP:
        for i in range(16): a('s_mov_b32 s%d, 0' % (SST + 2 * i))
    stamp(0)
    a('v_lshrrev_b32 v1, 6, v0'); a('s_and_b32 s4, s2, 7'); a('v_readfirstlane_b32 s7, v1')
    a('s_lshr_b32 s5, s2, 3')
    a('v_and_b32 v1, 63, v0')
    a('s_cmp_ge_u32 s7, 8'); a('s_cbranch_scc1 k_aux')
    st0 = a.save()
    def common2():
        a('s_mov_b32 s3, 0xffff0000')
        a('s_lshl_b32 s6, s4, 5'); a('s_add_u32 s6, s6, s5')
        a('v_lshlrev_b32 v2, 4, v1')
        a('s_lshl_b32 s12, s6, 3'); a('s_add_u32 s12, s12, s7')
        a('s_lshl_b32 s13, s12, 10')
    a('v_lshrrev_b32 v3, 5, v1'); a('s_lshl_b32 s8, s7, 1'); a('s_add_u32 s8, s8, 2'); a('v_add_u32 v4, s8, v3')
    a('v_xor_b32 v4, v4, v1'); a('v_and_b32 v4, 7, v4'); a('v_lshrrev_b32 v5, 3, v1'); a('v_lshlrev_b32 v5, 10, v5'); a('v_lshl_add_u32 v4, v4, 4, v5')
    a('s_lshl_b32 s8, s5, 16'); a('s_lshl_b32 s9, s4, 7'); a('s_add_u32 s8, s8, s9'); a('s_lshl_b32 s9, s7, 13'); a('s_add_u32 s9, s9, s8')
    a('s_lshl_b32 s10, s7, 10'); a('s_add_u32 s10, s10, %d' % (L_RK + 1024)); a('s_mov_b32 m0, s10'); a('s_add_u32 s10, s10, %d' % (L_RV - L_RK))
    a('s_mov_b32 s50, 0x200000'); a('s_mov_b32 s51, 0x00020000'); a('s_mov_b32 s54, 0x200000'); a('s_mov_b32 s55, 0x00020000')
    a('v_lshrrev_b32 v6, 4, v1'); a('s_lshl_b32 s11, s4, 9'); a('s_lshl_b32 s64, s7, 6'); a('s_add_u32 s11, s11, s64'); a('v_lshl_add_u32 v7, v6, 4, s11')
    a.wait(lg=0)
    a('s_mov_b64 s[48:49], %s' % sp(KP)); a('s_mov_b64 s[52:53], %s' % sp(VP_))
    a('buffer_load_dwordx4 v4, s[48:51], s9 offen lds')
    a('s_memrealtime s[%d:%d]' % (FLO, FHI))
    a('s_mov_b32 m0, s10'); a('s_cmp_ge_u32 s7, 2')
    a('buffer_load_dwordx4 v4, s[52:55], s9 offen lds')
    WR = 36
    a('global_load_dwordx4 %s, v7, %s' % (vq(WR), sp(SHK)))
    a('s_cbranch_scc1 k_nohalo')
    a('v_xor_b32 v4, v3, v1'); a('v_and_b32 v4, 7, v4'); a('v_lshl_add_u32 v4, v4, 4, v5')
    a('s_sub_u32 s8, s8, 8192'); a('s_cmp_eq_u32 s5, 0'); a('s_cselect_b32 s8, 0x80000000, s8')
    a('s_cmp_eq_u32 s7, 0'); a('s_cbranch_scc0 k_halov')
    a('s_mov_b32 m0, %d' % L_RK); a.nop(1)
    a('buffer_load_dwordx4 v4, s[48:51], s8 offen lds')
    a('s_branch k_nohalo')
    a.label('k_halov')
    a('s_mov_b32 m0, %d' % L_RV); a.nop(1)
    a('buffer_load_dwordx4 v4, s[52:55], s8 offen lds')
    a.label('k_nohalo')
    stamp(1)
    a('s_load_dwordx16 s[32:47], s[0:1], 64')
    common2()
    a('s_lshl_b32 s64, s6, 2'); a('s_load_dword s69, %s, s64' % sp(SSMD))
    barrier()
    a('v_and_b32 v8, 15, v1'); a('v_sub_u32 v9, 15, v8')
    a('v_lshlrev_b32 v10, 9, v9'); a('v_lshl_add_u32 v10, v6, 2, v10')
    a('v_add_u32 v11, 1, v9'); a('v_xor_b32 v11, s7, v11'); a('v_and_b32 v11, 7, v11'); a('v_lshl_add_u32 v11, v11, 4, v10'); a('v_add_u32 v11, %d, v11' % (L_RK + 512))
    a('v_add_u32 v12, 2, v9'); a('v_xor_b32 v12, s7, v12'); a('v_and_b32 v12, 7, v12'); a('v_lshl_add_u32 v12, v12, 4, v10'); a('v_add_u32 v12, %d, v12' % (L_RK + 1024))
    a('v_lshlrev_b32 v13, 14, v6'); a('v_lshl_add_u32 v13, v8, 4, v13')
    a('s_lshl_b32 s60, s4, 19'); a('s_lshl_b32 s9, s7, 16'); a('s_add_u32 s60, s60, s9'); a('s_lshl_b32 s9, s5, 8'); a('s_sub_u32 s60, s60, s9'); a('s_add_u32 s60, s60, 7936'); a('s_add_u32 s61, s60, 8192')
    for i in range(4, 7): a('v_mov_b32 v%d, 0' % i)
    a('v_mov_b32 v7, 0'); a('v_mov_b32 v8, 1')
    srd(56, WS, WS_SIZE, WSOFF)
    a('s_and_b32 s8, s7, 1'); a('s_lshr_b32 s9, s7, 1'); a('s_and_b32 s9, s9, 1')
    a('s_mul_i32 s10, s8, %d' % L_CB); a('s_add_u32 s10, s10, %d' % L_IMG)
    a('s_lshl_b32 s11, s6, 1'); a('s_add_u32 s11, s11, s8'); a('s_lshl_b32 s11, s11, 12')
    a('s_lshl_b32 s66, s9, 2'); a('s_add_u32 s66, s66, s11')
    a('s_mul_i32 s67, s9, %d' % (L_KB - L_KA)); a('s_add_u32 s67, s67, s10'); a('s_add_u32 s67, s67, %d' % L_KA)
    a('s_add_u32 s64, s67, 64'); a('s_mov_b32 m0, s64')
    srd(52, SSMK, 2 * MiB)
    a('s_sub_u32 s%d, s%d, %d' % (FLO, FLO, UDELTA)); a('s_lshl_b32 s%d, s%d, 16' % (FHI, FHI)); a('s_or_b32 s%d, s%d, 0x80000000' % (FHI, FHI))
    a.wait(vm=0); stamp(2)
    lds_inc(4, 8, L_KVA)
    a('s_memrealtime s[%d:%d]' % (T0S, T1S))
    W = 44
    kv_weights(W, WR)
    lds_wait(4, 14, L_KVA, 8, sleep=0)
    KR = 16; VR = 24
    for i in range(8): a('ds_read_b32 v%d, v%d offset:%d' % (KR + i, 11 if i < 4 else 12, 128 * (i & 3)))
    a('ds_read_b32 v%d, v11 offset:%d' % (VR, 384 + L_RV - L_RK))
    for i in range(4): a('ds_read_b32 v%d, v12 offset:%d' % (VR + 1 + i, 128 * i + L_RV - L_RK))
    a('s_cmp_lt_u32 s7, 4'); a('s_cbranch_scc1 k_nokdma')
    for i in range(4): a('buffer_load_dwordx4 v2, s[52:55], s66 offen offset:%d lds' % (1024 * i))
    a('buffer_load_dword v9, v4, s[52:55], s11 offen')
    a.label('k_nokdma')
    a.vm = []
    O = 60
    a('s_lshl_b32 s%d, s%d, 16' % (T1S, T1S)); a('s_or_b32 s%d, s%d, 0x80000000' % (T1S, T1S))
    kv_compute(KR, VR, W, 60, 80, 92, 104)
    O = 104
    for c in range(2):
        a('v_mov_b32 v%d, s%d' % (O + 4 * c + 3, T0S)); a('v_or_b32 v%d, s%d, v%d' % (O + 4 * c + 2, T1S, O + 4 * c + 2))
    for c in range(2): a('buffer_store_dwordx4 %s, v13, s[56:59], s%d offen sc1' % (vq(O + 4 * c), 60 + c))
    lds_inc(4, 8, L_UST)
    stamp(3)
    a('s_cmp_ge_u32 s7, 4'); a('s_cbranch_scc1 k_helper')
    st1h = a.save()
    a('s_mul_i32 s11, s9, %d' % L_U0); a('s_add_u32 s11, s11, s10')
    a('v_add_u32 v3, s11, v2')
    a('s_mov_b32 exec_lo, 0x0fffffff'); a('s_mov_b32 exec_hi, 0')
    a('ds_write_b128 v3, v[4:7] offset:4096')
    a('s_mov_b64 exec, -1')
    a('v_and_b32 v10, 15, v1'); a('v_lshrrev_b32 v11, 4, v1'); a('v_lshrrev_b32 v12, 1, v10'); a('v_and_b32 v13, 1, v10')
    a('v_lshlrev_b32 v3, 6, v12'); a('v_lshl_add_u32 v3, v11, 4, v3')
    a('v_mul_u32_u24 v4, %d, v13' % (L_U0 - L_U1)); a('v_add_u32 v3, v3, v4')
    a('s_lshl_b32 s64, s9, 8'); a('s_sub_u32 s65, s10, s64'); a('s_add_u32 s65, s65, %d' % (L_U0 + 283 * 16 - 64 * 59))
    a('v_sub_u32 v3, s65, v3')
    a('v_lshlrev_b32 v4, 3, v12'); a('v_lshlrev_b32 v5, 4, v11'); a('v_sub_u32 v4, v4, v5')
    a('v_mul_u32_u24 v5, %d, v13' % (L_KB + 62 * 8 - L_KA - 63 * 8)); a('v_sub_u32 v4, v4, v5')
    a('s_sub_u32 s65, s10, s64'); a('s_add_u32 s65, s65, %d' % (L_KB + 62 * 8 - 192))
    a('v_add_u32 v4, s65, v4')
    a('v_lshlrev_b32 v5, 8, v11'); a('v_lshl_add_u32 v5, v10, 3, v5')
    a('s_lshl_b32 s64, s8, 1'); a('s_add_u32 s64, s64, s9'); a('s_lshl_b32 s64, s64, 13'); a('s_add_u32 s64, s64, %d' % L_Y)
    a('v_add_u32 v5, s64, v5')
    a('v_mov_b32 v7, 1')
    a.wait(vm=0); stamp(4)
    lds_inc(6, 7, L_UGO)
    if envi('UPRE', 12): a('s_sleep %d' % envi('UPRE', 12))
    u_poll_build(40)
    stamp(5)
    a.wait(lg=0)
    lds_inc(6, 7, L_IMGC)
    lds_wait(6, 8, L_IMGC, 8, sleep=0)
    stamp(6)
    if STAMP: a.wait(lg=0)
    if PRIO: a('s_setprio 2')
    ACC = 8; F0 = 40
    def Areg(buf, al): return F0 + buf * 64 + al * 4
    def Breg(buf, be): return F0 + buf * 64 + 32 + be * 4
    def loadA(buf, rp, al): a('ds_read_b128 %s, v3 offset:%d' % (vq(Areg(buf, al)), 64 * (59 - (rp + 8 * al))))
    def loadB(buf, rp, be):
        o = 64 * (8 * be + 3 - rp)
        if envi('READ2', 0):
            base = 4 if o < 2000 else 2
            oo = (o if o < 2000 else o - 2048) // 8
            a('ds_read2_b64 %s, v%d offset0:%d offset1:%d' % (vq(Breg(buf, be)), base, oo, oo + 1))
        else:
            a('ds_read_b64 %s, v4 offset:%d' % (vp(Breg(buf, be)), o)); a('ds_read_b64 %s, v4 offset:%d' % (vp(Breg(buf, be) + 2), o + 8))
    pairs = []
    for m in range(8):
        for o in range(m + 1):
            for (al, be) in ((m, o), (o, m)) if o != m else ((m, m),):
                if al + be <= 7: pairs.append((al, be))
    loads = []
    for m in range(8): loads.append(('A', m)); loads.append(('B', m))
    def do_load(buf, rp, it): (loadA if it[0] == 'A' else loadB)(buf, rp, it[1])
    def ywrite(tt):
        a('ds_write_b64 v5, %s offset:%d' % (vp(ACC + 4 * tt), 1024 * tt)); a('ds_write_b64 v5, %s offset:%d' % (vp(ACC + 4 * tt + 2), 1024 * tt + 128))
    for it in loads: do_load(0, 0, it)
    first = set()
    for rp in range(4):
        buf = rp & 1
        nxt = list(loads) if rp < 3 else []
        order = pairs if rp < 3 else sorted(pairs, key=lambda x: (x[0] + x[1]))
        lastof = {tt: max(i for i, (x, y) in enumerate(order) if x + y == tt) for tt in range(8)}
        for n, (al, be) in enumerate(order):
            t = al + be
            c = '0' if t not in first else vq(ACC + 4 * t)
            first.add(t)
            a('v_mfma_f32_16x16x32_bf16 %s, %s, %s, %s' % (vq(ACC + 4 * t), vq(Areg(buf, al)), vq(Breg(buf, be)), c))
            if nxt and (n % 2 == 1 if not envi('LDEARLY', 0) else True): do_load(buf ^ 1, rp + 1, nxt.pop(0))
            if rp == 3:
                for tt in range(8):
                    if n == lastof[tt] + 8: ywrite(tt)
        if rp == 3:
            for tt in range(8):
                if lastof[tt] + 8 > 35: ywrite(tt)
    stamp(7)
    if PRIO: a('s_setprio 0')
    if envi('READ2', 0): a('v_lshlrev_b32 v2, 4, v1')
    a.wait(lg=0)
    lds_inc(6, 7, L_YC)
    lds_epoch(6, 12)
    a('v_lshrrev_b32 v11, 2, v1'); a('v_lshlrev_b32 v11, 7, v11'); a('v_and_b32 v12, 3, v1'); a('v_lshl_add_u32 v11, v12, 4, v11')
    a('s_lshl_b32 s60, s7, 13'); a('s_add_u32 s60, s60, %d' % (WS_SM + SM_MOD)); a('s_add_u32 s61, s60, 4096')
    for l in ['buffer_load_dwordx4 %s, v11, s[56:59], s%d offen offset:%d sc1' % (vq(80 + 4 * g), 60 if g < 2 else 61, 2048 * (g & 1)) for g in range(4)]: a(l)
    a('s_mul_i32 s9, s7, 1536'); a('v_lshlrev_b32 v12, 3, v1'); a('v_add_u32 v12, s9, v12')
    a('s_branch k_epi')
    a.label('k_helper'); a.load(st1h)
    a('v_add_u32 v3, s67, v2'); a('v_mov_b32 v11, 0')
    a('v_cmp_eq_u32 vcc, 3, v1'); a('s_cmp_eq_u32 s9, 1'); a('s_cselect_b64 s[62:63], vcc, 0')
    a('s_sub_u32 s68, s7, 4')
    a.wait(vm=0); stamp(4)
    a('v_cndmask_b32 v7, v7, v9, s[62:63]')
    a('s_mov_b64 exec, 15')
    a('ds_write_b128 v3, v[4:7]')
    a('s_mov_b64 exec, -1')
    if envi('UPRE', 12): a('s_sleep %d' % envi('UPRE', 12))
    u_poll_build(40)
    stamp(5)
    a.wait(lg=0)
    lds_inc(4, 8, L_IMGC)
    srd(48, Q, 2 * MiB); srd(16, WG_, 512 * 3584); srd(20, WU_, 512 * 3584); srd(24, WD_, 1792 * 1024)
    a('s_lshl_b32 s64, s7, 10'); a('s_add_u32 s64, s64, %d' % L_XB); a('s_mov_b32 m0, s64'); a('s_sub_u32 s64, s64, 4096'); a('s_sub_u32 s67, s13, 4096')
    a('buffer_load_dwordx4 v2, s[48:51], s13 offen lds')
    a('s_mov_b32 m0, s64'); a.nop(1)
    a('buffer_load_dwordx4 v2, s[48:51], s67 offen lds')
    a('s_cmp_ge_u32 s5, 28'); a('s_cbranch_scc1 k_h_wd')
    a('s_mul_i32 s10, s4, 28'); a('s_add_u32 s10, s10, s5'); a('s_lshl_b32 s10, s10, 4'); a('s_mul_i32 s64, s68, %d' % (128 * 3584)); a('s_add_u32 s10, s10, s64')
    a('v_mul_u32_u24 v15, 3584, v1')
    a('s_lshl_b32 s9, s68, 11'); a('s_add_u32 s9, s9, %d' % L_W)
    for i in range(2 if WSCHED != 'N' else 0):
        a('s_mov_b32 m0, s9'); a('s_add_u32 s11, s9, %d' % L_GU); a('buffer_load_dwordx4 v15, s[16:19], s10 offen lds')
        a('s_mov_b32 m0, s11'); a('s_add_u32 s9, s9, 1024'); a('buffer_load_dwordx4 v15, s[20:23], s10 offen lds')
        a('s_add_u32 s10, s10, %d' % (64 * 3584))
    a('s_branch k_h_done')
    a.label('k_h_wd')
    a('s_lshl_b32 s8, s4, 2'); a('s_add_u32 s8, s8, s5'); a('s_sub_u32 s8, s8, 28'); a('s_lshl_b32 s8, s8, 5')
    wd_addr(15)
    a('s_mul_i32 s64, s68, %d' % (448 * 1024)); a('s_add_u32 s8, s8, s64')
    a('s_mul_i32 s9, s68, 14336'); a('s_add_u32 s9, s9, %d' % L_W)
    for hw in range(2 if WSCHED != 'N' else 0):
        for i in range(WDE):
            a('s_mov_b32 m0, s9'); a('s_add_u32 s9, s9, %d' % (1024 if i < WDE - 1 else 1024 * (8 - WDE))); a('buffer_load_dwordx4 v15, s[24:27], s8 offen lds')
            a('s_add_u32 s8, s8, %d' % (32768 if i < WDE - 1 else 32768 * (8 - WDE)))
    a.label('k_h_done')
    stamp(7)
    a.wait(vm=0)
    lds_inc(4, 8, L_QD)
    a('s_branch k_epi')
    a.label('k_aux'); a.load(st0)
    a('s_load_dwordx16 s[32:47], s[0:1], 64')
    common2()
    a('s_cmp_eq_u32 s7, 8'); a('s_cbranch_scc1 k_loader')
    st0b = a.save()
    a('s_memrealtime s[8:9]')
    a('v_mov_b32 v4, 0')
    srd(EPR, DBG, 256)
    a('s_mov_b64 exec, 1')
    a('s_cmp_lg_u32 s2, 0'); a('s_cbranch_scc1 k_ep_nopub')
    a('s_lshl_b32 s9, s9, 16'); a('s_or_b32 s9, s9, 0x80000000')
    a('v_mov_b32 v8, s8'); a('v_mov_b32 v9, s9')
    a('buffer_store_dwordx2 v[8:9], v4, %s, 0 offen sc1' % sq(EPR))
    a.label('k_ep_nopub')
    a('s_mov_b64 exec, -1')
    srd(56, WS, WS_SIZE, WSOFF)
    for i in range(4): a('v_mov_b32 v%d, -1' % (8 + i))
    barrier()
    if envi('FGATE', 0): lds_wait(4, 24, L_KVA, envi('FGATE', 0))
    a('s_lshl_b32 s8, s6, 13'); a('s_add_u32 s9, s8, %d' % WS_Z); a('s_add_u32 s10, s9, 4096')
    for sr in (9, 10):
        for i in range(4): a('buffer_store_dwordx4 v[8:11], v2, s[56:59], s%d offen offset:%d sc1' % (sr, 1024 * i))
    a('s_lshl_b32 s8, s6, 7'); a('s_add_u32 s8, s8, %d' % (WS_SM + SM_KEY))
    a('s_lshl_b32 s9, s2, 7'); a('s_add_u32 s9, s9, %d' % (WS_SM + SM_ACT))
    a('s_mov_b64 exec, 0xff')
    a('buffer_store_dwordx4 v[8:11], v2, s[56:59], s8 offen sc1'); a('buffer_store_dwordx4 v[8:11], v2, s[56:59], s9 offen sc1')
    a('s_mov_b64 exec, -1')
    if SPEC:
        a('s_lshl_b32 s8, s6, 11'); a('s_add_u32 s8, s8, %d' % (WS_SM + SM_SPEC))
        a('buffer_store_dwordx4 v[8:11], v2, s[56:59], s8 offen sc1'); a('buffer_store_dwordx4 v[8:11], v2, s[56:59], s8 offen offset:1024 sc1')
    a('s_cmp_ge_u32 s2, 16'); a('s_cbranch_scc1 k_ld_nox1')
    a('s_lshl_b32 s8, s2, 10'); a('s_add_u32 s8, s8, %d' % (WS_SM + SM_X1))
    a('buffer_store_dwordx4 v[8:11], v2, s[56:59], s8 offen sc1')
    a.label('k_ld_nox1')
    a('s_mov_b64 exec, 1')
    a('s_mov_b32 s64, 0')
    if envi('EPSLEEP', 0): a('s_sleep %d' % envi('EPSLEEP', 0))
    ED = envi('EPDEPTH', 1); EG = envi('EPGAP', 1)
    for j in range(ED - 1): epoch_issue(4, 72 + 2 * j); a('s_sleep %d' % EG)
    a.label('k_ep')
    for j in range(ED):
        epoch_issue(4, 72 + 2 * ((j + ED - 1) % ED))
        a.wait(vm=ED - 1); a.vm = []
        a('v_readfirstlane_b32 s%d, v%d' % (T1S, 73 + 2 * j)); a('v_readfirstlane_b32 s%d, v%d' % (T0S, 72 + 2 * j))
        a('s_cmp_lg_u32 s%d, 0' % T1S); a('s_cbranch_scc1 k_ep_done')
        if ED > 1: a('s_sleep %d' % EG)
    a('s_add_u32 s64, s64, 1'); a('s_cmp_lt_u32 s64, %d' % SPIN_LIMIT); a('s_cbranch_scc1 k_ep')
    a.label('k_ep_done')
    a('v_mov_b32 v70, s%d' % T0S); a('v_mov_b32 v71, s%d' % T1S)
    a('ds_write_b64 v4, v[70:71] offset:%d' % L_EP)
    stamp(1)
    a.wait(lg=0)
    a('s_branch k_end')
    a.label('k_loader'); a.load(st0b)
    for i in range(4): a('v_mov_b32 v%d, 0' % (4 + i))
    a('v_mov_b32 v3, 0')
    a('ds_write_b128 v3, v[4:7] offset:640'); a('ds_write_b128 v3, v[4:7] offset:656'); a('ds_write_b128 v3, v[4:7] offset:672')
    a('v_and_b32 v14, 1, v1'); a('v_lshrrev_b32 v15, 1, v1')
    a('v_and_b32 v16, 0x13, v15'); a('v_bfe_u32 v17, v15, 2, 1'); a('v_lshl_or_b32 v16, v17, 3, v16'); a('v_bfe_u32 v17, v15, 3, 1'); a('v_lshl_or_b32 v16, v17, 2, v16')
    a('v_mul_u32_u24 v12, 6144, v16'); a('v_lshl_add_u32 v12, v14, 4, v12')
    a('s_mul_i32 s68, s4, 24'); a('s_add_u32 s68, s68, s5')
    srd(56, WS, WS_SIZE, WSOFF)
    barrier()
    srd(52, WMOD, 3 * MiB); srd(48, CP, 1024)
    if envi('LDGATE', 0) == 1: lds_wait(3, 24, L_KVA, 8)
    CR = 16
    a('buffer_load_dwordx4 %s, v2, s[48:51], 0 offen' % vq(CR))
    srd(48, WRP, 1024)
    a('s_mov_b32 m0, %d' % L_WR)
    a('buffer_load_dwordx4 v2, s[48:51], 0 offen lds')
    a('v_lshrrev_b32 v10, 2, v1'); a('s_lshl_b32 s8, s5, 4'); a('v_add_u32 v10, s8, v10'); a('v_mul_u32_u24 v10, 6144, v10')
    a('v_and_b32 v11, 3, v1'); a('v_lshl_add_u32 v11, v11, 7, v10')
    a('v_lshl_add_u32 v13, v14, 7, v10')
    a('s_mul_i32 s8, s4, 768')
    a('buffer_load_dword v128, v11, s[52:55], s8 offen')
    a('s_mov_b32 exec_lo, 0x33333333'); a('s_mov_b32 exec_hi, 0x33333333')
    a('buffer_load_dword v129, v13, s[52:55], s8 offen offset:512')
    a('s_mov_b64 exec, -1')
    a.wait(vm=2)
    a('v_mov_b32 v8, 1'); lds_inc(3, 8, L_QD)
    a('s_cmp_ge_u32 s5, 3'); a('s_cbranch_scc1 k_ld_nocode')
    a('s_getpc_b64 s[8:9]')
    a.label('k_pc')
    a('s_sub_u32 s8, s8, k_pc-%s' % KN); a('s_subb_u32 s9, s9, 0')
    a('v_lshlrev_b32 v10, 7, v1'); a('s_lshl_b32 s10, s5, 13'); a('v_add_u32 v10, s10, v10')
    a('s_mov_b32 s10, k_code_end-%s' % KN); a('v_cmp_gt_u32 vcc, s10, v10'); a('s_and_b64 exec, exec, vcc')
    a('s_cbranch_execz k_ld_nocode2')
    a('global_load_dword v130, v10, s[8:9]')
    a.label('k_ld_nocode2'); a('s_mov_b64 exec, -1')
    a.label('k_ld_nocode')
    stamp(1)
    srd(48, WG_, 512 * 3584); srd(28, WU_, 512 * 3584); srd(60, WD_, 1792 * 1024)
    a('v_lshrrev_b32 v10, 2, v1'); a('s_lshl_b32 s8, s5, 4'); a('v_add_u32 v10, s8, v10'); a('v_mul_u32_u24 v10, 3584, v10')
    a('v_and_b32 v11, 3, v1'); a('v_lshl_add_u32 v10, v11, 7, v10')
    a('s_mul_i32 s8, s4, 448'); a('s_and_b32 s8, s8, 0xffffff80')
    a('s_mul_i32 s9, s5, 56'); a('v_add_u32 v11, s9, v1'); a('v_lshlrev_b32 v11, 10, v11'); a('s_lshl_b32 s9, s4, 7')
    def touches():
        a('buffer_load_dword v164, v10, s[48:51], s8 offen' + NTW); a('buffer_load_dword v165, v10, s[28:31], s8 offen' + NTW)
        a('s_mov_b32 exec_hi, 0x00ffffff')
        a('buffer_load_dword v166, v11, s[60:63], s9 offen' + NTW)
        a('s_mov_b64 exec, -1')
    a.vm = []
    C = 24; E = 32
    a('v_lshrrev_b32 v6, 4, v1')
    a('v_lshl_add_u32 v8, v14, 2, v6'); a('v_lshlrev_b32 v8, 4, v8')
    a('s_cmp_ge_u32 s5, 24'); a('s_cbranch_scc1 k_ld_nowm')
    unpack(C, CR, 4)
    a('s_mov_b32 s64, 0x%x' % (LOG2E | 0x80000000))
    silu_like(E, C, 8, 64)
    for i in range(4): a('v_perm_b32 v%d, v%d, v%d, s65' % (CR + i, E + 2 * i + 1, E + 2 * i)) if False else a('v_cvt_pk_bf16_f32 v%d, v%d, v%d' % (CR + i, E + 2 * i, E + 2 * i + 1))
    a('v_add_u32 v13, %d, v2' % L_SC)
    a('ds_write_b128 v13, %s' % vq(CR))
    a('v_lshlrev_b32 v13, 4, v6'); a('v_add_u32 v13, %d, v13' % L_SC)
    a('v_and_b32 v20, 3, v1'); a('v_bfe_u32 v21, v1, 2, 2')
    a('v_lshrrev_b32 v22, 1, v6'); a('v_lshlrev_b32 v22, 9, v22'); a('v_and_b32 v23, 1, v6'); a('v_lshl_add_u32 v22, v23, 7, v22')
    a('v_lshl_add_u32 v22, v21, 5, v22'); a('v_lshl_add_u32 v22, v20, 3, v22'); a('v_add_u32 v22, %d, v22' % L_WMT)
    a.wait(lg=0)
    SCB = 32; WF = 96
    for i in range(16): a('ds_read_b128 %s, v13 offset:%d' % (vq(SCB + 4 * i), 64 * i))
    lds_wait(3, 24, L_UST, 8)
    a('s_lshl_b32 s10, s68, 5'); a('s_mov_b32 s11, %d' % L_WMT)
    for i in range(16):
        a('s_mov_b32 m0, s11'); a('s_add_u32 s11, s11, 1024'); a('buffer_load_dwordx4 v12, s[52:55], s10 offen lds'); a('s_add_u32 s10, s10, %d' % (32 * 6144))
    a.vm = []
    assert WSCHED in 'FN'
    a.wait(vm=0); a.vm = []
    stamp(2)
    for i in range(16):
        for hh in range(2): a('ds_read_b64_tr_b16 %s, v22 offset:%d' % (vp(WF + 4 * i + 2 * hh), 1024 * i + 256 * hh))
    a('s_setprio 3')
    for i in range(16):
        a('v_mfma_f32_16x16x32_bf16 %s, %s, %s, %s' % (vq(24 + 4 * (i & 1)), vq(WF + 4 * i), vq(SCB + 4 * i), '0' if i < 2 else vq(24 + 4 * (i & 1))))
    a('s_lshr_b32 s64, s68, 5'); a('s_cmp_eq_u32 s64, 1'); a('s_cselect_b32 s66, 1.0, 0'); a('s_cmp_eq_u32 s64, 4'); a('s_cselect_b32 s66, 1.0, s66')
    for i in range(4): a('v_add_f32 v%d, v%d, v%d' % (24 + i, 24 + i, 28 + i))
    for i in range(4): rb(24 + i, 24 + i)
    for i in range(4): a('v_add_f32 v%d, s66, v%d' % (24 + i, 24 + i))
    a('v_cvt_pk_bf16_f32 v40, v24, v25'); a('v_cvt_pk_bf16_f32 v41, v26, v27')
    a.label('k_ld_nowm')
    a('s_lshl_b32 s66, s6, 7'); a('s_add_u32 s66, s66, %d' % (WS_SM + SM_MOD))
    lds_epoch(3, 44)
    a('v_mov_b32 v42, s%d' % T0S); a('v_mov_b32 v43, s%d' % T1S)
    a('s_mov_b32 exec_lo, 0x00030003'); a('s_mov_b32 exec_hi, 0x00030003')
    a('buffer_store_dwordx4 v[40:43], v8, s[56:59], s66 offen sc1')
    a('s_mov_b64 exec, -1')
    stamp(3)
    TG = envi('TGATE', 2)
    if TG == 1: lds_wait(3, 24, L_UST, 8)
    if TG == 2: lds_wait(3, 24, L_UGO, 4)
    if WSCHED == 'F': touches(); a.vm = []
    a('s_branch k_end')
    a.label('k_epi')
    a('s_lshl_b32 s64, s7, 10'); a('v_add_u32 v17, s64, v2')
    a('v_lshrrev_b32 v18, 1, v17'); a('v_sub_u32 v18, %d, v18' % (L_IMG + L_U1 + 4088))
    a('s_lshl_b32 s10, s6, 13'); a('s_add_u32 s10, s10, %d' % WS_Z)
    a.wait(lg=0)
    a('s_lshl_b32 s8, s69, 16'); a('s_and_b32 s9, s69, s3')
    a('v_mov_b32 v16, 0')
    lds_wait(16, 19, L_YC, 4, sleep=0); stamp(8)
    a('ds_read_b64 v[20:21], v18'); a('ds_read_b64 v[22:23], v18 offset:%d' % L_CB)
    for i in range(4): a('ds_read_b128 %s, v17 offset:%d' % (vq(32 + 4 * i), L_Y + 8192 * i))
    U = 48
    for ch in range(2):
        hi(U + 4 * ch + 0, 21 + 2 * ch); lo(U + 4 * ch + 1, 21 + 2 * ch); hi(U + 4 * ch + 2, 20 + 2 * ch); lo(U + 4 * ch + 3, 20 + 2 * ch)
    for ch in range(2):
        for i in range(4): a('v_mul_f32 v%d, s%d, v%d' % (U + 4 * ch + i, 8 + ch, U + 4 * ch + i))
    for i in range(8): rb(U + i, U + i)
    for ch in range(2):
        for i in (0, 2): pk('add', 32 + 8 * ch + i, 32 + 8 * ch + i, vp(36 + 8 * ch + i))
    for ch in range(2):
        for i in range(4): rb(32 + 8 * ch + i, 32 + 8 * ch + i)
    for ch in range(2):
        for i in (0, 2): pk('add', 32 + 8 * ch + i, 32 + 8 * ch + i, vp(U + 4 * ch + i))
    for i in range(4): a('v_cvt_pk_bf16_f32 v%d, v%d, v%d' % (56 + i, 32 + i, 40 + i))
    for i in range(4): a('v_min_u32 v%d, -2, v%d' % (56 + i, 56 + i))
    a('buffer_store_dwordx4 v[56:59], v17, s[56:59], s10 offen sc1')
    stamp(9)
    a('s_cmp_ge_u32 s7, 4'); a('s_cbranch_scc1 k_nomod')
    def badm():
        for g in range(4):
            a('v_xor_b32 v%d, s%d, v%d' % (48 + 2 * g, T0S, 80 + 4 * g + 2)); a('v_xor_b32 v%d, s%d, v%d' % (49 + 2 * g, T1S, 80 + 4 * g + 3))
        a('v_or3_b32 v48, v48, v49, v50'); a('v_or3_b32 v51, v51, v52, v53'); a('v_or3_b32 v48, v48, v54, v55'); a('v_or_b32 v48, v48, v51')
        a('v_cmp_ne_u32 vcc, 0, v48')
    a.wait(vm=1)
    badm()
    a('s_and_b64 exec, exec, vcc'); a('s_cbranch_execz k_modok')
    a('s_mov_b32 s64, 0')
    a.label('k_modp')
    for l in ['buffer_load_dwordx4 %s, v11, s[56:59], s%d offen offset:%d sc1' % (vq(80 + 4 * g), 60 if g < 2 else 61, 2048 * (g & 1)) for g in range(4)]: a(l)
    a.wait(vm=0)
    badm()
    a('s_add_u32 s64, s64, 1'); a('s_and_b64 exec, exec, vcc'); a('s_cbranch_execz k_modok')
    a('s_cmp_lt_u32 s64, %d' % SPIN_LIMIT); a('s_cbranch_scc1 k_modp')
    a.label('k_modok')
    a('s_mov_b64 exec, -1')
    for g in (0, 2): a('ds_write_b64 v12, %s offset:%d' % (vp(80 + 4 * g), L_MOD + 768 * (g >> 1)))
    a('s_mov_b32 exec_hi, 0')
    for g in (1, 3): a('ds_write_b64 v12, %s offset:%d' % (vp(80 + 4 * g), L_MOD + 768 * (g >> 1) + 512))
    a('s_mov_b64 exec, -1')
    a('v_mov_b32 v12, 1')
    a.wait(lg=0)
    lds_inc(16, 12, L_MR)
    a.label('k_nomod')
    X = 24; T = 32; H = 40; Z = 48; S = 60; M = 64; WRr = 112; H2P = 128
    lds_wait(16, 18, L_QD, 5)
    a('ds_read_b128 v[12:15], v17 offset:%d' % L_XB)
    a('ds_read_b128 v[20:23], v2 offset:%d' % L_WR)
    a('v_lshrrev_b32 v3, 1, v0'); a('v_and_b32 v4, 1, v0')
    a('v_lshlrev_b32 v5, 13, v3'); a('v_lshl_add_u32 v5, v4, 4, v5')
    a('v_mul_u32_u24 v6, %d, v4' % (4 * ZP)); a('v_lshl_add_u32 v6, v3, 2, v6'); a('v_add_u32 v6, %d, v6' % L_ZT)
    a('s_mul_i32 s64, s7, %d' % ZP); a('s_add_u32 s64, s64, %d' % L_ZT); a('v_add_u32 v7, s64, v2')
    a('v_lshlrev_b32 v19, 7, v3'); a('v_lshl_add_u32 v19, v4, 4, v19')
    a('s_lshl_b32 s11, s6, 5'); a('s_add_u32 s11, s11, %d' % WS_Z)
    MR = 120
    unpack(X, 12, 4)
    fin = ln_stats(X, T, 48, 50, 52, S)
    ln_norm(H, X, 50, 52, fin)
    for i in range(8): rb(H + i, H + i)
    unpack(WRr, 20, 4)
    lds_wait(16, 17, L_MR, 4)
    for i in range(6): a('ds_read_b128 %s, v2 offset:%d' % (vq(MR + 4 * i), L_MOD + 1024 * i))
    for i in (1, 0): unpack(M + 8 * i, MR + 4 * i, 4)
    affine(H, M + 8, M + 0)
    for i in range(2, 6): unpack(M + 8 * i, MR + 4 * i, 4)
    a.wait(vm=0); stamp(10)
    ppoll('Z', lambda B: ['buffer_load_dwordx4 %s, v5, s[56:59], s11 offen sc1' % vq(B)], lambda B: bad_sent([B, B + 1, B + 2, B + 3], 16)(), 4, 12, [144, 148, 152])
    stamp(11)
    for i in range(4): a('ds_write_b32 v6, v%d offset:%d' % (12 + i, ZP * i))
    a.wait(lg=0); barrier()
    a('ds_read_b128 v[12:15], v7')
    unpack(Z, 12, 4)
    for i in range(0, 8, 2): pk('mul', H + i, H + i, vp(Z + i))
    for i in range(8): rb(H + i, H + i)
    for i in range(0, 8, 2): pk('mul', H + i, H + i, vp(M + 16 + i))
    for i in range(8): rb(H + i, H + i)
    for i in range(0, 8, 2): pk('add', X + i, X + i, vp(H + i))
    for i in range(8): rb(X + i, X + i)
    fin = ln_stats(X, T, 48, 50, 52, S)
    ln_norm(H, X, 50, 52, fin)
    for i in range(8): rb(H + i, H + i)
    affine(H, M + 32, M + 24)
    pk('mul', S, H, vp(WRr)); pk('mul', S + 2, H + 2, vp(WRr + 2))
    a('v_pk_fma_f32 %s, %s, %s, %s' % (vp(S), vp(H + 4), vp(WRr + 4), vp(S))); a('v_pk_fma_f32 %s, %s, %s, %s' % (vp(S + 2), vp(H + 6), vp(WRr + 6), vp(S + 2)))
    pk('add', S, S, vp(S + 2)); a('v_add_f32 v%d, v%d, v%d' % (S, S, S + 1))
    for n, ctl in enumerate(DPPS):
        a('v_add_f32_dpp v%d, v%d, v%d %s' % (S, S, S, ctl))
        if n < 4:
            a('v_cvt_pk_bf16_f32 v%d, v%d, v%d' % (H2P + n, H + 2 * n, H + 2 * n + 1)); a('v_min_u32 v%d, -2, v%d' % (H2P + n, H2P + n))
    rb(S, S)
    a('v_ashrrev_i32 v%d, 31, v%d' % (S + 1, S)); a('v_or_b32 v%d, 0x80000000, v%d' % (S + 1, S + 1)); a('v_xor_b32 v%d, v%d, v%d' % (S, S, S + 1))
    a('s_sub_u32 s64, 2047, s12'); a('v_and_b32 v%d, s3, v%d' % (S, S)); a('v_or_b32 v%d, s64, v%d' % (S, S))
    a('s_lshl_b32 s64, s7, 2'); a('v_mov_b32 v%d, s64' % (S + 1))
    if DBGSPAN: a('s_mov_b32 s68, s14')
    a('v_readlane_b32 s14, v%d, 63' % S)
    a('s_mov_b32 exec_lo, 0'); a('s_mov_b32 exec_hi, 0x80000000')
    a('ds_write_b32 v%d, v%d offset:%d' % (S + 1, S, L_KEYL))
    a('s_mov_b64 exec, -1')
    a('s_add_u32 s65, s13, %d' % WS_H2)
    OUTR = 120; X1P = 124
    for i in range(4): a('v_cvt_pk_bf16_f32 v%d, v%d, v%d' % (X1P + i, X + 2 * i, X + 2 * i + 1))
    for i in range(4): a('v_min_u32 v%d, -2, v%d' % (X1P + i, X1P + i))
    a('v_and_b32 v%d, 1, v1' % (S + 1)); a('v_lshlrev_b32 v%d, 4, v%d' % (S + 1, S + 1))
    a('s_lshl_b32 s64, s6, 7'); a('s_add_u32 s64, s64, %d' % (WS_SM + SM_KEY))
    a('s_lshl_b32 s65, s6, 11'); a('s_add_u32 s65, s65, %d' % (WS_SM + SM_SPEC))
    a.wait(lg=0); barrier()
    a('ds_read_b128 v[8:11], v%d offset:%d' % (S + 1, L_KEYL))
    a('s_cmp_lg_u32 s7, 0'); a('s_cbranch_scc1 k_nokey')
    a('s_mov_b64 exec, 0xff')
    a('buffer_store_dwordx4 v[8:11], v2, s[56:59], s64 offen sc1')
    a('s_mov_b64 exec, -1')
    a.label('k_nokey')
    stamp(12)
    if SPEC:
        a.wait(lg=0)
        a('v_max3_u32 v16, v8, v9, v10'); a('v_max_u32 v16, v16, v11')
        a('v_cmp_lt_u32 vcc, s14, v16')
        a('s_cbranch_vccnz k_nospec')
        a('buffer_store_dwordx4 %s, v2, s[56:59], s65 offen sc1' % vq(H2P)); a('buffer_store_dwordx4 %s, v2, s[56:59], s65 offen offset:1024 sc1' % vq(X1P))
        a.label('k_nospec')
    for i in range(0, 8, 2): pk('mul', T + i, H + i, vp(M + 40 + i))
    for i in range(8): rb(T + i, T + i)
    for i in range(0, 8, 2): pk('add', T + i, T + i, vp(X + i))
    for i in range(4): a('v_cvt_pk_bf16_f32 v%d, v%d, v%d' % (OUTR + i, T + 2 * i, T + 2 * i + 1))
    a('v_mov_b32 v20, 0'); a('v_lshlrev_b32 v21, 2, v1')
    a('ds_write_b32 v21, v20 offset:%d' % L_RANK); a('ds_write_b32 v21, v20 offset:%d' % L_SEG)
    a('ds_write_b32 v20, v20 offset:%d' % L_CNT); a('ds_write_b32 v20, v20 offset:%d' % L_FLAG)
    a('s_mov_b32 s11, %d' % (WS_SM + SM_KEY))
    a.wait(vm=0, lg=0)
    KEY = 12
    ppoll('K', lambda B: ['buffer_load_dwordx4 %s, v19, s[56:59], s11 offen sc1' % vq(B)], lambda B: bad_sent([B, B + 1, B + 2, B + 3], 16)(), 4, 12, [156, 160, 164])
    stamp(13)
    T0 = 30
    a('v_max3_u32 v%d, v%d, v%d, v%d' % (T0, KEY, KEY + 1, KEY + 2)); a('v_max_u32 v%d, v%d, v%d' % (T0, T0, KEY + 3))
    wave_reduce('v_max_u32', [T0])
    a('s_lshl_b32 s64, s7, 2'); a('v_mov_b32 v%d, s64' % (T0 + 1))
    a('s_mov_b32 exec_lo, 0'); a('s_mov_b32 exec_hi, 0x80000000')
    a('ds_write_b32 v%d, v%d offset:%d' % (T0 + 1, T0, L_WM))
    a('s_mov_b64 exec, -1')
    a.wait(lg=0); barrier()
    a('ds_read_b128 %s, v20 offset:%d' % (vq(T0 + 4), L_WM)); a('ds_read_b128 %s, v20 offset:%d' % (vq(T0 + 8), L_WM + 16))
    a('v_min3_u32 v%d, v%d, v%d, v%d' % (T0, T0 + 4, T0 + 5, T0 + 6)); a('v_min3_u32 v%d, v%d, v%d, v%d' % (T0 + 1, T0 + 8, T0 + 9, T0 + 10))
    a('v_min3_u32 v%d, v%d, v%d, v%d' % (T0, T0, T0 + 7, T0 + 11)); a('v_min_u32 v%d, v%d, v%d' % (T0, T0, T0 + 1))
    MS = 48
    for j in range(4): a('v_cmp_ge_u32 %s, v%d, v%d' % (sp(MS + 2 * j), KEY + j, T0))
    for j in range(4): a('s_bcnt1_i32_b64 s%d, %s' % (60 + j, sp(MS + 2 * j)))
    a('s_add_u32 s61, s61, s60'); a('s_add_u32 s62, s62, s61'); a('s_add_u32 s63, s63, s62')
    a('s_lshl_b32 s64, s7, 3')
    a('s_cmp_gt_u32 s63, 8'); a('s_cbranch_scc1 k_tk_over')
    for j in range(4):
        a('v_mbcnt_lo_u32_b32 v%d, s%d, 0' % (T0 + 4 + j, MS + 2 * j)); a('v_mbcnt_hi_u32_b32 v%d, s%d, v%d' % (T0 + 4 + j, MS + 1 + 2 * j, T0 + 4 + j))
        if j > 0: a('s_add_u32 s65, s64, s%d' % (60 + j - 1))
        a('v_add_lshl_u32 v%d, v%d, s%d, 2' % (T0 + 4 + j, T0 + 4 + j, 64 if j == 0 else 65))
    for j in range(4):
        a('s_mov_b64 exec, %s' % sp(MS + 2 * j))
        a('ds_write_b32 v%d, v%d offset:%d' % (T0 + 4 + j, KEY + j, L_SEG))
    a('s_mov_b64 exec, -1')
    a('s_branch k_tk_b')
    a.label('k_tk_over')
    a('v_mov_b32 v%d, 1' % (T0 + 4)); a('ds_write_b32 v20, v%d offset:%d' % (T0 + 4, L_FLAG))
    a.label('k_tk_b')
    a('s_lshl_b32 s64, s7, 5'); a('v_mov_b32 v%d, s64' % (T0 + 1))
    a.wait(lg=0); barrier()
    a('ds_read_b32 v%d, v20 offset:%d' % (T0 + 2, L_FLAG))
    a('ds_read_b32 v%d, v21 offset:%d' % (T0 + 3, L_SEG))
    a('ds_read_b128 %s, v%d offset:%d' % (vq(T0 + 4), T0 + 1, L_SEG)); a('ds_read_b128 %s, v%d offset:%d' % (vq(T0 + 8), T0 + 1, L_SEG + 16))
    a('v_mov_b32 v%d, 0' % (T0 + 12)); a('v_mov_b32 v%d, 0' % (T0 + 13))
    a('v_readfirstlane_b32 s64, v%d' % (T0 + 2))
    a('s_cmp_lg_u32 s64, 0'); a('s_cbranch_scc1 k_tk_slow')
    for hh in range(2):
        for e in range(4): a('v_cmp_gt_u32 %s, v%d, v%d' % (sp(MS + 2 * e), T0 + 4 + 4 * hh + e, T0 + 3))
        for e in range(4): a('v_addc_co_u32 v%d, vcc, 0, v%d, %s' % (T0 + 12 + (e & 1), T0 + 12 + (e & 1), sp(MS + 2 * e)))
    a('v_add_u32 v%d, v%d, v%d' % (T0 + 12, T0 + 12, T0 + 13))
    a('ds_add_u32 v21, v%d offset:%d' % (T0 + 12, L_RANK))
    a('v_cmp_ne_u32 s[64:65], 0, v%d' % (T0 + 3))
    a.wait(lg=0); barrier()
    a('ds_read_b32 v%d, v21 offset:%d' % (T0 + 12, L_RANK))
    a('v_cmp_gt_u32 vcc, 8, v%d' % (T0 + 12)); a('v_lshlrev_b32 v%d, 2, v%d' % (T0 + 12, T0 + 12))
    a('s_and_b64 exec, vcc, s[64:65]')
    a('ds_write_b32 v%d, v%d offset:%d' % (T0 + 12, T0 + 3, L_SEL))
    a('s_mov_b64 exec, -1')
    a.wait(lg=0)
    a('s_branch k_tk_done')
    a.label('k_tk_slow')
    a.wait(lg=0)
    for j in range(4): a('v_cmp_ge_u32 %s, v%d, v%d' % (sp(MS + 2 * j), KEY + j, T0))
    a('v_mov_b32 v%d, s63' % (T0 + 1))
    a('s_mov_b64 exec, 1')
    a('ds_add_rtn_u32 v%d, v20, v%d offset:%d' % (T0 + 3, T0 + 1, L_CNT))
    a('s_mov_b64 exec, -1')
    a('v_readfirstlane_b32 s64, v%d' % (T0 + 3))
    for j in range(4):
        a('v_mbcnt_lo_u32_b32 v%d, s%d, 0' % (T0 + 4 + j, MS + 2 * j)); a('v_mbcnt_hi_u32_b32 v%d, s%d, v%d' % (T0 + 4 + j, MS + 1 + 2 * j, T0 + 4 + j))
        if j > 0: a('s_add_u32 s65, s64, s%d' % (60 + j - 1))
        a('v_add_lshl_u32 v%d, v%d, s%d, 2' % (T0 + 4 + j, T0 + 4 + j, 64 if j == 0 else 65))
        a('s_mov_b64 exec, %s' % sp(MS + 2 * j))
        a('ds_write_b32 v%d, v%d offset:%d' % (T0 + 4 + j, KEY + j, L_LIST))
        a('s_mov_b64 exec, -1')
    a.wait(lg=0); barrier()
    a('ds_read_b32 v%d, v20 offset:%d' % (T0, L_CNT))
    a('v_readfirstlane_b32 s60, v%d' % T0)
    a('s_mov_b32 s61, 0')
    a.label('k_tk_chunk')
    a('v_add_u32 v%d, s61, v0' % (T0 + 1)); a('v_lshlrev_b32 v%d, 2, v%d' % (T0 + 3, T0 + 1))
    a('ds_read_b32 v%d, v%d offset:%d' % (T0, T0 + 3, L_LIST))
    a('v_mov_b32 v%d, 0' % (T0 + 3)); a('s_mov_b32 s62, 0'); a('v_mov_b32 v%d, 0' % (T0 + 2))
    a.label('k_tk_scan')
    a('ds_read_b128 %s, v%d offset:%d' % (vq(T0 + 4), T0 + 2, L_LIST))
    a('s_sub_u32 s63, s60, s62')
    for e in range(4):
        a('v_cmp_gt_u32 vcc, v%d, v%d' % (T0 + 4 + e, T0))
        a('s_cmp_gt_u32 s63, %d' % e); a('s_cselect_b64 vcc, vcc, 0')
        a('v_addc_co_u32 v%d, vcc, 0, v%d, vcc' % (T0 + 3, T0 + 3))
    a('v_add_u32 v%d, 16, v%d' % (T0 + 2, T0 + 2))
    a('s_add_u32 s62, s62, 4'); a('s_cmp_lt_u32 s62, s60'); a('s_cbranch_scc1 k_tk_scan')
    a('v_cmp_gt_u32 vcc, s60, v%d' % (T0 + 1)); a('v_cmp_gt_u32 s[64:65], 8, v%d' % (T0 + 3)); a('s_and_b64 vcc, vcc, s[64:65]')
    a('v_lshlrev_b32 v%d, 2, v%d' % (T0 + 3, T0 + 3))
    a('s_mov_b64 exec, vcc')
    a('ds_write_b32 v%d, v%d offset:%d' % (T0 + 3, T0, L_SEL))
    a('s_mov_b64 exec, -1')
    a('s_add_u32 s61, s61, 512'); a('s_cmp_lt_u32 s61, s60'); a('s_cbranch_scc1 k_tk_chunk')
    a.wait(lg=0); barrier()
    a.label('k_tk_done')
    stamp(14)
    a('v_and_b32 v4, 7, v1'); a('v_lshlrev_b32 v5, 2, v4')
    a('ds_read_b32 v7, v5 offset:%d' % L_SEL)
    a('v_lshrrev_b32 v6, 3, v1'); a('v_add_lshl_u32 v6, v6, v4, 2'); a('v_and_b32 v6, 28, v6')
    a('ds_read_b32 v9, v6 offset:%d' % L_SEL)
    a('v_lshrrev_b32 v6, 4, v1')
    srd(48, OUT, 2 * MiB)
    a('v_and_b32 v8, 0x7ff, v7'); a('v_sub_u32 v8, 2047, v8')
    a('v_lshrrev_b32 v10, 3, v8'); a('v_lshlrev_b32 v10, 11, v10'); a('v_add_u32 v10, %d, v10' % (SM_SPEC - SM_X1))
    a('v_lshlrev_b32 v8, 10, v8')
    a('v_cmp_eq_u32 vcc, s14, v7'); a('s_and_b32 s60, vcc_lo, 0xff')
    a('v_xor_b32 v9, v9, v7'); a('v_and_b32 v9, 0x7f8, v9'); a('v_cmp_eq_u32 vcc, 0, v9')
    a('v_lshlrev_b32 v9, 11, v4')
    a('s_andn2_b32 s62, vcc_lo, 0xff'); a('s_or_b32 s62, s62, vcc_hi')
    if SPEC:
        a('s_cmp_eq_u32 s62, 0'); a('s_cselect_b64 vcc, -1, 0'); a('s_cselect_b32 s63, 0, s60')
        a('v_cndmask_b32 v10, v9, v10, vcc')
    else:
        a('v_mov_b32 v10, v9'); a('s_mov_b32 s63, s60')
    def own_row_store(tag):
        a('s_cmp_lg_u32 s60, 0'); a('s_cbranch_scc1 k_own_%s' % tag)
        a('buffer_store_dwordx4 %s, v2, s[48:51], s13 offen%s' % (vq(OUTR), os.environ.get('OUTF', ' sc1')))
        a.label('k_own_%s' % tag)
    a('s_lshl_b32 s61, s2, 4'); a('s_add_u32 s61, s61, s7'); a('s_cmp_lg_u32 s61, 1'); a('s_cbranch_scc1 k_norst')
    srd(52, DBG, 256)
    a('v_mov_b32 v20, 0'); a('v_mov_b32 v21, 0'); a('s_mov_b64 exec, 1')
    a('buffer_store_dwordx2 v[20:21], v20, s[52:55], 0 offen sc1')
    a('s_mov_b64 exec, -1')
    a.label('k_norst')
    a('s_cmp_eq_u32 s63, 0'); a('s_cbranch_scc1 k_nosel')
    a('s_ff1_i32_b32 s61, s60'); a('s_lshl_b32 s61, s61, 11'); a('s_add_u32 s61, s61, %d' % (WS_SM + SM_X1))
    if OWNER: a('buffer_store_dwordx4 %s, v2, s[56:59], s61 offen sc1' % vq(H2P))
    a('buffer_store_dwordx4 %s, v2, s[56:59], s61 offen offset:1024 sc1' % vq(X1P))
    a.label('k_nosel')
    a('s_cmp_ge_u32 s5, 28'); a('s_cbranch_scc1 k_ffn2')
    st1 = a.save()
    if OWNER:
        a('v_lshl_add_u32 v9, v6, 4, v10')
        a('s_lshl_b32 s64, s7, 7'); a('s_add_u32 s11, s64, %d' % (WS_SM + SM_X1))
    else:
        a('v_lshl_add_u32 v9, v6, 4, v8')
        a('s_lshl_b32 s64, s7, 7'); a('s_add_u32 s11, s64, %d' % WS_H2)
    a('v_and_b32 v20, 3, v1'); a('v_bfe_u32 v21, v1, 2, 2')
    a('v_lshlrev_b32 v22, 7, v6'); a('v_lshl_add_u32 v22, v21, 4, v22')
    a('v_and_b32 v23, 1, v20'); a('v_lshl_add_u32 v22, v23, 3, v22')
    a('v_lshrrev_b32 v23, 1, v20'); a('v_mul_u32_u24 v23, %d, v23' % L_GU); a('v_add_u32 v22, v22, v23')
    a('s_lshl_b32 s64, s7, 10'); a('s_add_u32 s64, s64, %d' % L_W); a('v_add_u32 v22, s64, v22')
    for i in range(2):
        for hh in range(2): a('ds_read_b64_tr_b16 %s, v22 offset:%d' % (vp(24 + 4 * i + 2 * hh), 512 * i + 64 * hh))
    ppoll('X', lambda B: ['buffer_load_dwordx4 %s, v9, s[56:59], s11 offen sc1' % vq(B), 'buffer_load_dwordx4 %s, v9, s[56:59], s11 offen offset:64 sc1' % vq(B + 4)],
          lambda B: bad_sent(list(range(B, B + 8)), 36)(), 8, 12, [80, 88, 96], exec_mask=0x00ff00ff)
    tstamp(1)
    a('v_mfma_f32_16x16x32_bf16 v[32:35], v[24:27], v[12:15], 0')
    a('v_mfma_f32_16x16x32_bf16 v[32:35], v[28:31], v[16:19], v[32:35]')
    a('v_lshlrev_b32 v36, 4, v0')
    own_row_store('a')
    a.nop(5)
    a('ds_write_b128 v36, v[32:35] offset:%d' % L_P)
    a.wait(lg=0); barrier()
    a('s_cmp_lg_u32 s7, 0'); a('s_cbranch_scc1 k_end')
    for w in range(8): a('ds_read_b128 %s, v36 offset:%d' % (vq(40 + 4 * w), L_P + 1024 * w))
    a('s_mov_b32 s64, 0x%x' % (LOG2E | 0x80000000))
    a('s_mul_i32 s65, s4, 28'); a('s_add_u32 s65, s65, s5'); a('s_lshl_b32 s65, s65, 7'); a('s_add_u32 s65, s65, %d' % (WS_SM + SM_ACT))
    a('v_and_b32 v73, 15, v1'); a('v_lshlrev_b32 v74, 4, v73'); a('v_lshl_add_u32 v72, v6, 3, v74')
    for st in (16, 8, 4):
        for i in range(0, st, 2): pk('add', 40 + i, 40 + i, vp(40 + i + st))
    for i in range(4): rb(40 + i, 40 + i)
    for i in range(4): a('v_mov_b32 v%d, v%d' % (44 + i, 40 + i))
    silu_like(52, 40, 4, 64)
    for i in range(4): a('v_permlane32_swap_b32 v%d, v%d' % (44 + i, 48 + i))
    for i in range(4): a('v_mul_f32 v%d, v%d, v%d' % (52 + i, 52 + i, 48 + i))
    a('v_cvt_pk_bf16_f32 v56, v52, v53'); a('v_cvt_pk_bf16_f32 v57, v54, v55')
    a('v_min_u32 v56, -2, v56'); a('v_min_u32 v57, -2, v57')
    a('s_mov_b32 exec_lo, 0x00ff00ff'); a('s_mov_b32 exec_hi, 0')
    a('buffer_store_dwordx2 v[56:57], v72, s[56:59], s65 offen sc1')
    tstamp(2)
    a('s_branch k_end')
    a.label('k_ffn2'); a.load(st1)
    own_row_store('b')
    a('s_lshl_b32 s8, s4, 2'); a('s_add_u32 s8, s8, s5'); a('s_sub_u32 s8, s8, 28')
    a('s_lshl_b32 s9, s8, 5')
    a('s_mul_i32 s64, s7, 7168'); a('s_add_u32 s64, s64, %d' % L_W)
    if WDE < 7 and WSCHED != 'N':
        srd(52, WD_, 1792 * 1024)
        wd_addr(15)
        a('s_mul_i32 s65, s7, %d' % (224 * 1024)); a('s_add_u32 s65, s65, s9'); a('s_add_u32 s65, s65, %d' % (32768 * WDE)); a('s_add_u32 s10, s64, %d' % (1024 * WDE))
        for i in range(WDE, 7):
            a('s_mov_b32 m0, s10'); a('s_add_u32 s10, s10, 1024'); a('buffer_load_dwordx4 v15, s[52:55], s65 offen lds'); a('s_add_u32 s65, s65, 32768')
    a('v_and_b32 v20, 3, v1'); a('v_bfe_u32 v21, v1, 2, 2')
    a('v_lshrrev_b32 v22, 1, v6'); a('v_lshlrev_b32 v22, 9, v22'); a('v_and_b32 v23, 1, v6'); a('v_lshl_add_u32 v22, v23, 7, v22')
    a('v_lshl_add_u32 v22, v21, 5, v22'); a('v_lshl_add_u32 v22, v20, 3, v22')
    a('v_add_u32 v22, s64, v22')
    for i in range(WDE):
        for hh in range(2): a('ds_read_b64_tr_b16 %s, v22 offset:%d' % (vp(64 + 4 * i + 2 * hh), 1024 * i + 256 * hh))
    a('v_lshlrev_b32 v9, 7, v6'); a('v_lshl_add_u32 v9, v4, 4, v9')
    a('s_mul_i32 s11, s7, 3584'); a('s_add_u32 s11, s11, %d' % (WS_SM + SM_ACT))
    a('v_lshl_add_u32 v8, v6, 3, v8')
    a('s_cmp_lg_u32 s7, 0'); a('s_cbranch_scc1 k_f2_act')
    a('v_lshl_add_u32 v10, v6, 3, v10')
    a('s_add_u32 s61, s9, %d' % WS_H2); a('s_add_u32 s62, s9, %d' % (WS_SM + SM_X1))
    a('v_lshlrev_b32 v11, 3, v6'); a('v_add_u32 v11, s9, v11')
    a('ds_read_b64 v[16:17], v11 offset:%d' % (L_MOD + 5 * 1024))
    a('v_and_b32 v30, s3, v7'); a('v_ashrrev_i32 v31, 31, v30'); a('v_not_b32 v31, v31'); a('v_or_b32 v31, 0x80000000, v31'); a('v_xor_b32 v30, v30, v31'); a('v_and_b32 v30, s3, v30')
    a('s_mov_b32 s64, 0x%x' % (LOG2E | 0x80000000))
    silu_like(31, 30, 1, 64, mulx=False)
    unpack(92, 16, 2)
    poll(['buffer_load_dwordx2 v[12:13], v10, s[56:59], s62 offen sc1' if OWNER else 'buffer_load_dwordx2 v[12:13], v8, s[56:59], s61 offen sc1',
          'buffer_load_dwordx2 v[14:15], v10, s[56:59], s62 offen offset:1024 sc1'], bad_sent([12, 13, 14, 15], 29))
    unpack(96, 12, 4)
    a.label('k_f2_act')
    a.wait(vm=0, lg=0)
    tstamp(3)
    for i in range(WDE, 7):
        for hh in range(2): a('ds_read_b64_tr_b16 %s, v22 offset:%d' % (vp(64 + 4 * i + 2 * hh), 1024 * i + 256 * hh))
    ppoll('A', lambda B: ['buffer_load_dwordx4 %s, v9, s[56:59], s11 offen offset:%d sc1' % (vq(B + 4 * i), 512 * i) for i in range(7)],
          lambda B: bad_sent(list(range(B, B + 28)), 29)(), 28, 32, [112, 140], exec_mask=0x00ff00ff)
    tstamp(4)
    if STAMP and TAILST: a('s_mov_b32 s%d, s64' % (SST + 12))
    for i in range(7):
        a('v_mfma_f32_16x16x32_bf16 v[24:27], %s, %s, %s' % (vq(64 + 4 * i), vq(32 + 4 * i), '0' if i == 0 else 'v[24:27]'))
    a('v_lshlrev_b32 v28, 4, v0')
    a('ds_write_b128 v28, v[24:27] offset:%d' % L_P)
    a.wait(lg=0); barrier()
    a('s_cmp_lg_u32 s7, 0'); a('s_cbranch_scc1 k_end')
    for w in range(8): a('ds_read_b128 %s, v28 offset:%d' % (vq(40 + 4 * w), L_P + 1024 * w))
    for st in (16, 8, 4):
        for i in range(0, st, 2): pk('add', 40 + i, 40 + i, vp(40 + i + st))
    for i in range(4): rb(40 + i, 40 + i)
    for i in range(4): a('v_mul_f32 v%d, v%d, v31' % (40 + i, 40 + i))
    for i in range(4): rb(40 + i, 40 + i)
    for i in (0, 2): pk('add', 40 + i, 40 + i, vp(96 + i))
    for i in range(4): rb(40 + i, 40 + i)
    for i in (0, 2): pk('mul', 40 + i, 40 + i, vp(92 + i))
    for i in range(4): rb(40 + i, 40 + i)
    for i in (0, 2): pk('add', 40 + i, 40 + i, vp(100 + i))
    a('v_cvt_pk_bf16_f32 v44, v40, v41'); a('v_cvt_pk_bf16_f32 v45, v42, v43')
    a('s_mov_b32 exec_lo, 0x00ff00ff'); a('s_mov_b32 exec_hi, 0x00ff00ff')
    a('buffer_store_dwordx2 v[44:45], v8, s[48:51], s9 offen' + os.environ.get('OUTF2', ' sc1'))
    if DBGSPAN:
        a('s_memrealtime s[64:65]'); a.wait(lg=0)
        a('s_sub_u32 s64, s64, s68'); a('v_mov_b32 v1, s64'); a('s_and_b32 s8, s8, 7'); a('s_lshl_b32 s8, s8, 2'); a('s_add_u32 s8, s8, 8')
        srd(52, DBG, 256)
        a('v_mov_b32 v2, 0'); a('s_mov_b64 exec, 1')
        a('buffer_store_dword v1, v2, s[52:55], s8 offen')
    a.label('k_end')
    if STAMP:
        a('s_memrealtime s[%d:%d]' % (SST + 30, SST + 31))
        a('s_mov_b64 exec, -1')
        a.wait(vm=0, lg=0)
        for i in range(16): a('v_writelane_b32 v2, s%d, %d' % (SST + 2 * i, i))
        a('s_mul_i32 s5, s2, 10'); a('s_add_u32 s5, s5, s7'); a('s_lshl_b32 s5, s5, 6')
        srd(8, WS, MiB, WS_STAMP)
        a('v_and_b32 v1, 63, v0'); a('v_lshlrev_b32 v1, 2, v1')
        a('s_mov_b64 exec, 0xffff')
        a('buffer_store_dword v2, v1, s[8:11], s5 offen')
    a.label('k_exit')
    a('s_endpgm')
    a.label('k_code_end')

def main(outpath):
    hdr = open('cdna_kernels/%s.s.ref' % NAME).read().split('\n')
    out = [l for l in hdr if l.startswith(';') and '@launch' not in l]
    out.append('; @launch grid=(256,1,1) block=(640,1,1) lds=%d' % LDS_SIZE)
    out.append('.amdgcn_target "amdgcn-amd-amdhsa--gfx950"'); out.append('.text')
    gen()
    body = a.text()
    m = max([int(x) for x in re.findall(r'\bv(\d+)\b', body)] + [int(x) for x in re.findall(r'\bv\[\d+:(\d+)\]', body)])
    vg = (m + 1 + 7) // 8 * 8
    assert vg <= 168
    out.append(body)
    out.append('.section .rodata,"a"')
    out.append('.p2align 6')
    out.append('.amdhsa_kernel %s' % KN)
    out.append('  .amdhsa_next_free_vgpr %d' % vg); out.append('  .amdhsa_next_free_sgpr 102'); out.append('  .amdhsa_accum_offset %d' % vg)
    out.append('  .amdhsa_group_segment_fixed_size 0'); out.append('  .amdhsa_kernarg_size 128')
    out.append('  .amdhsa_user_sgpr_count 2'); out.append('  .amdhsa_user_sgpr_kernarg_segment_ptr 1'); out.append('  .amdhsa_system_sgpr_workgroup_id_x 1')
    out.append('  .amdhsa_float_denorm_mode_32 3')
    out.append('.end_amdhsa_kernel')
    open(outpath, 'w').write('\n'.join(out) + '\n')
    print('wrote', outpath, 'vgprs', m + 1, 'nops', a.nops_inserted, 'LDS', LDS_SIZE)

if __name__ == '__main__':
    main(sys.argv[1] if len(sys.argv) > 1 else 'cdna_kernels/%s.s' % NAME)
```

```python
import sys, os, re
from asmlib import Asm

NAME = 'adaLN_cond__ssm_conv_h3__moe_arch_mod__prompt'
KN = NAME + '_kernel'
MiB = 1 << 20
WS_U = 0
WS_Z = 4 * MiB
WS_H2 = 6 * MiB
WS_SM = 8 * MiB
SM_MOD = 0
SM_KEY = 32768
SM_ACT = 65536
SM_X1 = 98304
SM_SPEC = 131072
WS_SIZE = 9 * MiB
WS_STAMP = 14 * MiB
STAMP = int(os.environ.get('STAMP', '0'))
SPIN_LIMIT = 1 << 14
DBGSPAN = int(os.environ.get('DBGSPAN', '0'))
PACE = int(os.environ.get('PACE', '1'))
PRIO = int(os.environ.get('PRIO', '1'))
WSCHED = os.environ.get('WSCHED', 'F')
NT = ' nt' if int(os.environ.get('NT', '0')) else ''
NTW = ' nt' if int(os.environ.get('NTW', '0')) else ''
WSOFF = int(os.environ.get('WSOFF', '240')) * MiB
OWNER = int(os.environ.get('OWNER', '1'))
LOG2E = 0x3fb8aa3b
a = Asm()
SST = 70
SPEC = int(os.environ.get('SPEC', '1'))
UWIN = 2048; UDELTA = 250; UTRIES = int(os.environ.get('UTRIES', '40'))
FLO, FHI = 28, 29
TAILST = int(os.environ.get('TAILST', '0'))
def tstamp(i):
    if STAMP and TAILST: a('s_memrealtime s[%d:%d]' % (SST + 2 * i, SST + 1 + 2 * i))
def stamp(i):
    if TAILST and 1 <= i <= 6: return
    if STAMP: a('s_memrealtime s[%d:%d]' % (SST + 2 * i, SST + 1 + 2 * i))
def srd(s, ptr, size, add=0):
    if add:
        a('s_add_u32 s%d, s%d, 0x%x' % (s, ptr, add)); a('s_addc_u32 s%d, s%d, 0' % (s + 1, ptr + 1))
    else:
        a('s_mov_b32 s%d, s%d' % (s, ptr)); a('s_mov_b32 s%d, s%d' % (s + 1, ptr + 1))
    a('s_mov_b32 s%d, 0x%x' % (s + 2, size)); a('s_mov_b32 s%d, 0x00020000' % (s + 3))
MASK = 3
def lo(d, s): a('v_lshlrev_b32 v%d, 16, v%d' % (d, s))
def hi(d, s): a('v_and_b32 v%d, s%d, v%d' % (d, MASK, s))
def rb(d, s): a('v_cvt_pk_bf16_f32 v%d, 0, v%d' % (d, s))
def pk(op, d, x, y, extra=''): a('v_pk_%s_f32 v[%d:%d], v[%d:%d], %s %s' % (op, d, d + 1, x, x + 1, y, extra))
def vp(r): return 'v[%d:%d]' % (r, r + 1)
def vq(r): return 'v[%d:%d]' % (r, r + 3)
def sp(r): return 's[%d:%d]' % (r, r + 1)
def sq(r): return 's[%d:%d]' % (r, r + 3)
def unpack(d, s, n):
    for i in range(n): lo(d + 2 * i, s + i); hi(d + 2 * i + 1, s + i)
DPPS = ('row_shr:1 row_mask:0xf bank_mask:0xf', 'row_shr:2 row_mask:0xf bank_mask:0xf', 'row_shr:4 row_mask:0xf bank_mask:0xf',
        'row_shr:8 row_mask:0xf bank_mask:0xf', 'row_bcast:15 row_mask:0xa bank_mask:0xf', 'row_bcast:31 row_mask:0xc bank_mask:0xf')
def wave_reduce(op, regs):
    for ctl in DPPS:
        for r in regs: a('%s_dpp v%d, v%d, v%d %s' % (op, r, r, r, ctl))
def silu_like(D, X, n, sneg, mulx=True):
    for i in range(n): a('v_mul_f32 v%d, s%d, v%d' % (D + i, sneg, X + i))
    for i in range(n): a('v_exp_f32 v%d, v%d' % (D + i, D + i))
    for i in range(n): a('v_add_f32 v%d, 1.0, v%d' % (D + i, D + i))
    for i in range(n): a('v_rcp_f32 v%d, v%d' % (D + i, D + i))
    if mulx:
        for i in range(n): a('v_mul_f32 v%d, v%d, v%d' % (D + i, D + i, X + i))
    for i in range(n): rb(D + i, D + i)
def barrier(): a('s_barrier')

L_WM = 0; L_KEYL = 32; L_SEL = 64; L_RANK = 2560; L_SEG = 2048; L_CNT = 640; L_FLAG = 644; L_KVA = 648; L_IMGC = 652; L_UGO = 656; L_UST = 660; L_EP = 664; L_YC = 672; L_MR = 676; L_QD = 680; L_MP = 704
L_WR = 1024; L_NB = 2048; L_XB = L_NB + 8192; L_MOD = L_XB + 8192; L_Y = L_MOD + 6144 + 2048
L_LIST = L_Y; L_P = L_Y + 8192; L_RK = L_Y; L_RV = L_Y + 9216
L_IMG = L_Y + 32768
L_U1 = 0; L_U0 = 4576; L_KA = 9216; L_KB = 13440; L_CB = 17664
assert L_IMG % 256 == 0
L_ZT = L_IMG + L_KA; ZP = 1040
L_W = L_IMG + 2 * L_CB; L_GU = 8256; L_WMT = L_W + 16896; L_SC = L_WMT + 16384
LDS_SIZE = L_W + 57344
Q, KP, VP_, SHK, SSMK, SSMD, WRP = 16, 18, 20, 22, 24, 26, 30
WG_, WU_, WD_, CP, WMOD, OUT, DBG, WS = 32, 34, 36, 38, 40, 42, 44, 46
T0S, T1S = 14, 15

def ln_stats(X, T, sC, sMB, sRI, vS):
    a('v_readfirstlane_b32 s%d, v%d' % (sC, X)); a('v_readfirstlane_b32 s%d, v%d' % (sC + 1, X))
    for i in range(0, 8, 2): pk('add', T + i, X + i, sp(sC), 'neg_lo:[0,1] neg_hi:[0,1]')
    pk('add', vS, T, vp(T + 2)); pk('mul', vS + 2, T, vp(T))
    pk('add', T, T + 4, vp(T + 6))
    a('v_pk_fma_f32 %s, %s, %s, %s' % (vp(vS + 2), vp(T + 2), vp(T + 2), vp(vS + 2)))
    pk('mul', T + 2, T + 4, vp(T + 4))
    pk('add', vS, vS, vp(T))
    a('v_pk_fma_f32 %s, %s, %s, %s' % (vp(T + 2), vp(T + 6), vp(T + 6), vp(T + 2)))
    a('v_add_f32 v%d, v%d, v%d' % (vS, vS, vS + 1))
    pk('add', vS + 2, vS + 2, vp(T + 2))
    a('v_add_f32 v%d, v%d, v%d' % (vS + 1, vS + 2, vS + 3))
    wave_reduce('v_add_f32', [vS, vS + 1])
    a('v_mul_f32 v%d, 0x3b000000, v%d' % (vS, vS)); a('v_mul_f32 v%d, 0x3b000000, v%d' % (vS + 1, vS + 1))
    a('v_fma_f32 v%d, -v%d, v%d, v%d' % (vS + 1, vS, vS, vS + 1))
    a('v_add_f32 v%d, s%d, v%d' % (vS, sC, vS))
    a('v_max_f32 v%d, 0, v%d' % (vS + 1, vS + 1))
    rb(vS, vS); rb(vS + 1, vS + 1)
    a('v_readlane_b32 s%d, v%d, 63' % (sMB, vS)); a('v_readlane_b32 s%d, v%d, 63' % (sMB + 1, vS))
    a('v_add_f32 v%d, 0x3727c5ac, v%d' % (vS + 1, vS + 1)); rb(vS + 1, vS + 1)
    a('v_sqrt_f32 v%d, v%d' % (vS + 1, vS + 1)); rb(vS + 1, vS + 1)
    a('v_rcp_f32 v%d, v%d' % (vS + 1, vS + 1))
    return lambda: (a('v_readlane_b32 s%d, v%d, 63' % (sRI, vS + 1)), a('v_readlane_b32 s%d, v%d, 63' % (sRI + 1, vS + 1)))
def ln_norm(D, X, sMB, sRI, fin):
    for i in range(0, 8, 2): pk('add', D + i, X + i, sp(sMB), 'neg_lo:[0,1] neg_hi:[0,1]')
    for i in range(8): rb(D + i, D + i)
    fin()
    for i in range(0, 8, 2): pk('mul', D + i, D + i, sp(sRI))
def affine(D, C1, SH):
    for i in range(0, 8, 2): pk('mul', D + i, D + i, vp(C1 + i))
    for i in range(8): rb(D + i, D + i)
    for i in range(0, 8, 2): pk('add', D + i, D + i, vp(SH + i))
    for i in range(8): rb(D + i, D + i)

_pl = [0]
def poll(loads, bad, exec_mask=None):
    n = _pl[0]; _pl[0] += 1
    a('s_mov_b32 s64, 0')
    if exec_mask is not None:
        a('s_mov_b32 exec_lo, 0x%x' % exec_mask); a('s_mov_b32 exec_hi, 0x%x' % exec_mask)
    a.label('poll%d' % n)
    for l in loads: a(l)
    a.wait(vm=0)
    bad()
    a('s_add_u32 s64, s64, 1')
    a('s_and_b64 exec, exec, vcc')
    a('s_cbranch_execz poll%d_done' % n)
    a('s_cmp_lt_u32 s64, %d' % SPIN_LIMIT); a('s_cbranch_scc1 poll%d' % n)
    a.label('poll%d_done' % n)
    a('s_mov_b64 exec, -1')
def envi(n, d): return int(os.environ.get(n, str(d)))
def ppoll(name, loadfn, badfn, n, F, sets, exec_mask=None):
    ns = min(envi('P_%s_NS' % name, envi('P_NS', 1)), len(sets)); gap = envi('P_%s_GAP' % name, envi('P_GAP', 2)); pre = envi('P_%s_PRE' % name, envi('P_PRE', 0))
    if pre: a('s_sleep %d' % pre)
    if ns <= 1:
        poll(loadfn(F), lambda: badfn(F), exec_mask); return
    k = _pl[0]; _pl[0] += 1
    nl = len(loadfn(F))
    a('s_mov_b32 s64, 0')
    if exec_mask is not None:
        a('s_mov_b32 exec_lo, 0x%x' % exec_mask); a('s_mov_b32 exec_hi, 0x%x' % exec_mask)
    for j in range(ns - 1):
        for l in loadfn(sets[j]): a(l)
        if gap: a('s_sleep %d' % gap)
    a.label('pp%d' % k)
    for j in range(ns):
        for l in loadfn(sets[(j + ns - 1) % ns]): a(l)
        a.wait(vm=nl * (ns - 1))
        a.vm = [[] for _ in a.vm]
        badfn(sets[j])
        a('s_mov_b64 s[66:67], exec')
        a('s_andn2_b64 exec, exec, vcc')
        for i in range(n): a('v_mov_b32 v%d, v%d' % (F + i, sets[j] + i))
        a('s_and_b64 exec, s[66:67], vcc')
        a('s_cbranch_execz pp%d_done' % k)
        if gap: a('s_sleep %d' % gap)
    a('s_add_u32 s64, s64, 1')
    a('s_cmp_lt_u32 s64, %d' % SPIN_LIMIT); a('s_cbranch_scc1 pp%d' % k)
    a.label('pp%d_done' % k)
    a('s_mov_b64 exec, -1')
    a.vm = [[('v', b + i) for b in sets[:ns] for i in range(n)]]
def bad_sent(regs, tmp):
    def f():
        rs = list(regs); first = True
        while rs:
            if first:
                x = rs[:3]; rs = rs[3:]; first = False
                a('v_max3_u32 v%d, v%d, v%d, v%d' % (tmp, x[0], x[1], x[2]))
            elif len(rs) >= 2:
                a('v_max3_u32 v%d, v%d, v%d, v%d' % (tmp, tmp, rs[0], rs[1])); rs = rs[2:]
            else:
                a('v_max_u32 v%d, v%d, v%d' % (tmp, tmp, rs[0])); rs = rs[1:]
        a('v_cmp_eq_u32 vcc, -1, v%d' % tmp)
    return f

EPR = 28
def epoch_issue(vaddr0, vdst):
    a('buffer_load_dwordx2 %s, v%d, %s, 0 offen sc1' % (vp(vdst), vaddr0, sq(EPR)))
_ep = [0]
def epoch_finish(vaddr0, vdst):
    n = _ep[0]; _ep[0] += 1
    a('s_mov_b32 s64, 0')
    a.label('ep%d' % n)
    a.wait(vm=0)
    a('v_readfirstlane_b32 s%d, v%d' % (T1S, vdst + 1)); a('v_readfirstlane_b32 s%d, v%d' % (T0S, vdst))
    a('s_add_u32 s64, s64, 1')
    a('s_cmp_lg_u32 s%d, 0' % T1S); a('s_cbranch_scc1 ep%d_done' % n)
    a('s_cmp_ge_u32 s64, %d' % SPIN_LIMIT); a('s_cbranch_scc1 ep%d_done' % n)
    epoch_issue(vaddr0, vdst)
    a('s_branch ep%d' % n)
    a.label('ep%d_done' % n)

def ln1_own_row(qreg, X, T, S, vrow):
    unpack(X, qreg, 4)
    a('ds_write_b128 v%d, %s offset:%d' % (vrow, vq(qreg), L_XB))
    fin = ln_stats(X, T, 60 + 6, 62 + 6, 64 + 0, S) if False else ln_stats(X, T, 48, 50, 52, S)
    ln_norm(T, X, 50, 52, fin)
    for i in range(4): a('v_cvt_pk_bf16_f32 v%d, v%d, v%d' % (X + i, T + 2 * i, T + 2 * i + 1))
    a('ds_write_b128 v%d, %s offset:%d' % (vrow, vq(X), L_NB))

def kv_weights(W, WR):
    for c in range(2):
        lo(W + 0 + c, WR + 2 * c); hi(W + 2 + c, WR + 2 * c); lo(W + 4 + c, WR + 2 * c + 1); hi(W + 6 + c, WR + 2 * c + 1)
def kv_compute(KR, VR, W, KF, S, P, O):
    unpack(KF, KR, 8)
    for i in range(5): pk('mul', S + 2 * i, KF + 2 * i, vp(W + 6))
    for r in range(10): rb(S + r, S + r)
    for t in (1, 2, 3):
        for i in range(5): pk('mul', P + 2 * i, KF + 2 * (i + t), vp(W + 2 * (3 - t)))
        for r in range(10): rb(P + r, P + r)
        for r in range(0, 10, 2): pk('add', S + r, S + r, vp(P + r))
        for r in range(10): rb(S + r, S + r)
    unpack(P, VR, 5)
    for r in range(0, 10, 2): pk('mul', S + r, S + r, vp(P + r))
    for c in range(2):
        a('v_cvt_pk_bf16_f32 v%d, v%d, v%d' % (O + 4 * c, S + 8 + c, S + 6 + c))
        a('v_cvt_pk_bf16_f32 v%d, v%d, v%d' % (O + 4 * c + 1, S + 4 + c, S + 2 + c))
        a('v_cvt_pk_bf16_f32 v%d, v%d, 0' % (O + 4 * c + 2, S + c))
def u_poll_build(G, R=56):
    a('v_lshlrev_b32 v%d, 4, v0' % (G + 8))
    a('s_lshl_b32 s8, s6, 14'); a('s_add_u32 s9, s8, 8192')
    a('v_lshlrev_b32 v%d, 3, v0' % (G + 9)); a('v_add_u32 v%d, %d, v%d' % (G + 9, L_IMG, G + 9))
    n = _pl[0]; _pl[0] += 1
    a('s_mov_b32 s64, 0')
    a.label('uf%d' % n)
    a('buffer_load_dwordx4 %s, v%d, %s, s8 offen sc1' % (vq(G), G + 8, sq(R))); a('buffer_load_dwordx4 %s, v%d, %s, s9 offen sc1' % (vq(G + 4), G + 8, sq(R)))
    a.wait(vm=0)
    a('v_subrev_u32 v%d, s%d, v%d' % (G + 10, FLO, G + 3)); a('v_subrev_u32 v%d, s%d, v%d' % (G + 11, FLO, G + 7))
    a('v_xor_b32 v%d, s%d, v%d' % (G + 12, FHI, G + 2)); a('v_xor_b32 v%d, s%d, v%d' % (G + 13, FHI, G + 6))
    a('v_max_u32 v%d, v%d, v%d' % (G + 10, G + 10, G + 11)); a('v_or_b32 v%d, v%d, v%d' % (G + 12, G + 12, G + 13))
    a('v_and_or_b32 v%d, v%d, s3, v%d' % (G + 10, G + 12, G + 10))
    a('v_cmp_le_u32 vcc, %d, v%d' % (UWIN, G + 10))
    a('s_add_u32 s64, s64, 1')
    a('s_and_b64 exec, exec, vcc')
    a('s_cbranch_execz uf%d_done' % n)
    a('s_cmp_lt_u32 s64, %d' % UTRIES); a('s_cbranch_scc1 uf%d' % n)
    a('s_mov_b64 exec, -1')
    srd(48, KP, 2 * MiB); srd(52, VP_, 2 * MiB)
    a('v_lshlrev_b32 v56, 12, v0'); a('v_sub_u32 v56, %d, v56' % (2044 * 1024)); a('s_lshl_b32 s64, s6, 2'); a('v_add_u32 v56, s64, v56')
    a('v_subrev_u32 v57, 4096, v56'); a('v_mov_b32 v58, 0x80000000'); a('v_cmp_eq_u32 vcc, 511, v0'); a('v_cndmask_b32 v57, v57, v58, vcc')
    a('s_lshl_b32 s64, s6, 4'); a('v_mov_b32 v58, s64')
    for i in range(8): a('buffer_load_dword v%d, v%d, s[48:51], 0 offen offset:%d' % (104 + i, 57 if i < 4 else 56, 1024 * (i & 3)))
    a('buffer_load_dword v112, v57, s[52:55], 0 offen offset:3072')
    for i in range(4): a('buffer_load_dword v%d, v56, s[52:55], 0 offen offset:%d' % (113 + i, 1024 * i))
    a('global_load_dwordx4 v[120:123], v58, %s' % sp(SHK))
    kv_weights(124, 120)
    kv_compute(104, 112, 124, 60, 80, 92, G)
    a.label('uf%d_done' % n)
    a('s_mov_b64 exec, -1')
    for ch in range(2):
        g = G + 4 * ch
        a('ds_write_b64 v%d, %s offset:%d' % (G + 9, vp(g), L_U1 + L_CB * ch))
        a('v_alignbit_b32 v%d, v%d, v%d, 16' % (G + 10 + 2 * ch, g + 1, g)); a('v_alignbit_b32 v%d, v%d, v%d, 16' % (G + 11 + 2 * ch, g + 2, g + 1))
        a('ds_write_b64 v%d, %s offset:%d' % (G + 9, vp(G + 10 + 2 * ch), L_U0 + L_CB * ch))


_lw = [0]
def lds_wait(addr_v, tmp_v, off, thresh, sleep=1):
    n = _lw[0]; _lw[0] += 1
    a('s_mov_b32 s64, 0')
    a.label('lw%d' % n)
    a('ds_read_b32 v%d, v%d offset:%d' % (tmp_v, addr_v, off))
    a('s_add_u32 s64, s64, 1')
    a.wait(lg=0)
    a('v_readfirstlane_b32 s65, v%d' % tmp_v)
    a('s_cmp_ge_u32 s65, %d' % thresh); a('s_cbranch_scc1 lw%d_ok' % n)
    if sleep: a('s_sleep %d' % sleep)
    a('s_cmp_lt_u32 s64, %d' % (SPIN_LIMIT * 16)); a('s_cbranch_scc1 lw%d' % n)
    a.label('lw%d_ok' % n)
def lds_epoch(addr_v, tmp):
    n = _lw[0]; _lw[0] += 1
    a('s_mov_b32 s64, 0')
    a.label('lw%d' % n)
    a('ds_read_b64 %s, v%d offset:%d' % (vp(tmp), addr_v, L_EP))
    a('s_add_u32 s64, s64, 1')
    a.wait(lg=0)
    a('v_readfirstlane_b32 s%d, v%d' % (T1S, tmp + 1)); a('v_readfirstlane_b32 s%d, v%d' % (T0S, tmp))
    a('s_cmp_lg_u32 s%d, 0' % T1S); a('s_cbranch_scc1 lw%d_ok' % n)
    a('s_cmp_lt_u32 s64, %d' % (SPIN_LIMIT * 16)); a('s_cbranch_scc1 lw%d' % n)
    a.label('lw%d_ok' % n)
def lds_inc(zero_v, one_v, off):
    a('s_mov_b64 exec, 1'); a('ds_add_u32 v%d, v%d offset:%d' % (zero_v, one_v, off)); a('s_mov_b64 exec, -1')

WDE = int(os.environ.get('WDE', '5'))
def wd_addr(V):
    a('v_lshrrev_b32 v%d, 1, v1' % V)
    a('v_and_b32 v%d, 0x13, v%d' % (V + 1, V)); a('v_bfe_u32 v%d, v%d, 2, 1' % (V + 2, V)); a('v_lshl_or_b32 v%d, v%d, 3, v%d' % (V + 1, V + 2, V + 1))
    a('v_bfe_u32 v%d, v%d, 3, 1' % (V + 2, V)); a('v_lshl_or_b32 v%d, v%d, 2, v%d' % (V + 1, V + 2, V + 1))
    a('v_lshlrev_b32 v%d, 10, v%d' % (V, V + 1)); a('v_and_b32 v%d, 1, v1' % (V + 1)); a('v_lshl_add_u32 v%d, v%d, 4, v%d' % (V, V + 1, V))

def gen():
    a.raw('.p2align 8'); a.raw('.globl %s' % KN); a.raw('.type %s,@function' % KN); a.label(KN); a.reset()
    a('s_load_dwordx16 s[16:31], s[0:1], 0')
    a('s_cmp_ge_u32 s2, 256'); a('s_cbranch_scc1 k_exit')
    if STAMP:
        for i in range(16): a('s_mov_b32 s%d, 0' % (SST + 2 * i))
    stamp(0)
    a('v_lshrrev_b32 v1, 6, v0'); a('s_and_b32 s4, s2, 7'); a('v_readfirstlane_b32 s7, v1')
    a('s_lshr_b32 s5, s2, 3')
    a('v_and_b32 v1, 63, v0')
    a('s_cmp_ge_u32 s7, 8'); a('s_cbranch_scc1 k_aux')
    st0 = a.save()
    def common2():
        a('s_mov_b32 s3, 0xffff0000')
        a('s_lshl_b32 s6, s4, 5'); a('s_add_u32 s6, s6, s5')
        a('v_lshlrev_b32 v2, 4, v1')
        a('s_lshl_b32 s12, s6, 3'); a('s_add_u32 s12, s12, s7')
        a('s_lshl_b32 s13, s12, 10')
    a('v_lshrrev_b32 v3, 5, v1'); a('s_lshl_b32 s8, s7, 1'); a('s_add_u32 s8, s8, 2'); a('v_add_u32 v4, s8, v3')
    a('v_xor_b32 v4, v4, v1'); a('v_and_b32 v4, 7, v4'); a('v_lshrrev_b32 v5, 3, v1'); a('v_lshlrev_b32 v5, 10, v5'); a('v_lshl_add_u32 v4, v4, 4, v5')
    a('s_lshl_b32 s8, s5, 16'); a('s_lshl_b32 s9, s4, 7'); a('s_add_u32 s8, s8, s9'); a('s_lshl_b32 s9, s7, 13'); a('s_add_u32 s9, s9, s8')
    a('s_lshl_b32 s10, s7, 10'); a('s_add_u32 s10, s10, %d' % (L_RK + 1024)); a('s_mov_b32 m0, s10'); a('s_add_u32 s10, s10, %d' % (L_RV - L_RK))
    a('s_mov_b32 s50, 0x200000'); a('s_mov_b32 s51, 0x00020000'); a('s_mov_b32 s54, 0x200000'); a('s_mov_b32 s55, 0x00020000')
    a('v_lshrrev_b32 v6, 4, v1'); a('s_lshl_b32 s11, s4, 9'); a('s_lshl_b32 s64, s7, 6'); a('s_add_u32 s11, s11, s64'); a('v_lshl_add_u32 v7, v6, 4, s11')
    a.wait(lg=0)
    a('s_mov_b64 s[48:49], %s' % sp(KP)); a('s_mov_b64 s[52:53], %s' % sp(VP_))
    a('buffer_load_dwordx4 v4, s[48:51], s9 offen lds')
    a('s_memrealtime s[%d:%d]' % (FLO, FHI))
    a('s_mov_b32 m0, s10'); a('s_cmp_ge_u32 s7, 2')
    a('buffer_load_dwordx4 v4, s[52:55], s9 offen lds')
    WR = 36
    a('global_load_dwordx4 %s, v7, %s' % (vq(WR), sp(SHK)))
    a('s_cbranch_scc1 k_nohalo')
    a('v_xor_b32 v4, v3, v1'); a('v_and_b32 v4, 7, v4'); a('v_lshl_add_u32 v4, v4, 4, v5')
    a('s_sub_u32 s8, s8, 8192'); a('s_cmp_eq_u32 s5, 0'); a('s_cselect_b32 s8, 0x80000000, s8')
    a('s_cmp_eq_u32 s7, 0'); a('s_cbranch_scc0 k_halov')
    a('s_mov_b32 m0, %d' % L_RK); a.nop(1)
    a('buffer_load_dwordx4 v4, s[48:51], s8 offen lds')
    a('s_branch k_nohalo')
    a.label('k_halov')
    a('s_mov_b32 m0, %d' % L_RV); a.nop(1)
    a('buffer_load_dwordx4 v4, s[52:55], s8 offen lds')
    a.label('k_nohalo')
    stamp(1)
    a('s_load_dwordx16 s[32:47], s[0:1], 64')
    common2()
    a('s_lshl_b32 s64, s6, 2'); a('s_load_dword s69, %s, s64' % sp(SSMD))
    barrier()
    a('v_and_b32 v8, 15, v1'); a('v_sub_u32 v9, 15, v8')
    a('v_lshlrev_b32 v10, 9, v9'); a('v_lshl_add_u32 v10, v6, 2, v10')
    a('v_add_u32 v11, 1, v9'); a('v_xor_b32 v11, s7, v11'); a('v_and_b32 v11, 7, v11'); a('v_lshl_add_u32 v11, v11, 4, v10'); a('v_add_u32 v11, %d, v11' % (L_RK + 512))
    a('v_add_u32 v12, 2, v9'); a('v_xor_b32 v12, s7, v12'); a('v_and_b32 v12, 7, v12'); a('v_lshl_add_u32 v12, v12, 4, v10'); a('v_add_u32 v12, %d, v12' % (L_RK + 1024))
    a('v_lshlrev_b32 v13, 14, v6'); a('v_lshl_add_u32 v13, v8, 4, v13')
    a('s_lshl_b32 s60, s4, 19'); a('s_lshl_b32 s9, s7, 16'); a('s_add_u32 s60, s60, s9'); a('s_lshl_b32 s9, s5, 8'); a('s_sub_u32 s60, s60, s9'); a('s_add_u32 s60, s60, 7936'); a('s_add_u32 s61, s60, 8192')
    for i in range(4, 7): a('v_mov_b32 v%d, 0' % i)
    a('v_mov_b32 v7, 0'); a('v_mov_b32 v8, 1')
    srd(56, WS, WS_SIZE, WSOFF)
    a('s_and_b32 s8, s7, 1'); a('s_lshr_b32 s9, s7, 1'); a('s_and_b32 s9, s9, 1')
    a('s_mul_i32 s10, s8, %d' % L_CB); a('s_add_u32 s10, s10, %d' % L_IMG)
    a('s_lshl_b32 s11, s6, 1'); a('s_add_u32 s11, s11, s8'); a('s_lshl_b32 s11, s11, 12')
    a('s_lshl_b32 s66, s9, 2'); a('s_add_u32 s66, s66, s11')
    a('s_mul_i32 s67, s9, %d' % (L_KB - L_KA)); a('s_add_u32 s67, s67, s10'); a('s_add_u32 s67, s67, %d' % L_KA)
    a('s_add_u32 s64, s67, 64'); a('s_mov_b32 m0, s64')
    srd(52, SSMK, 2 * MiB)
    a('s_sub_u32 s%d, s%d, %d' % (FLO, FLO, UDELTA)); a('s_lshl_b32 s%d, s%d, 16' % (FHI, FHI)); a('s_or_b32 s%d, s%d, 0x80000000' % (FHI, FHI))
    a.wait(vm=0); stamp(2)
    lds_inc(4, 8, L_KVA)
    a('s_memrealtime s[%d:%d]' % (T0S, T1S))
    W = 44
    kv_weights(W, WR)
    lds_wait(4, 14, L_KVA, 8, sleep=0)
    KR = 16; VR = 24
    for i in range(8): a('ds_read_b32 v%d, v%d offset:%d' % (KR + i, 11 if i < 4 else 12, 128 * (i & 3)))
    a('ds_read_b32 v%d, v11 offset:%d' % (VR, 384 + L_RV - L_RK))
    for i in range(4): a('ds_read_b32 v%d, v12 offset:%d' % (VR + 1 + i, 128 * i + L_RV - L_RK))
    a('s_cmp_lt_u32 s7, 4'); a('s_cbranch_scc1 k_nokdma')
    for i in range(4): a('buffer_load_dwordx4 v2, s[52:55], s66 offen offset:%d lds' % (1024 * i))
    a('buffer_load_dword v9, v4, s[52:55], s11 offen')
    a.label('k_nokdma')
    a.vm = []
    O = 60
    a('s_lshl_b32 s%d, s%d, 16' % (T1S, T1S)); a('s_or_b32 s%d, s%d, 0x80000000' % (T1S, T1S))
    kv_compute(KR, VR, W, 60, 80, 92, 104)
    O = 104
    for c in range(2):
        a('v_mov_b32 v%d, s%d' % (O + 4 * c + 3, T0S)); a('v_or_b32 v%d, s%d, v%d' % (O + 4 * c + 2, T1S, O + 4 * c + 2))
    for c in range(2): a('buffer_store_dwordx4 %s, v13, s[56:59], s%d offen sc1' % (vq(O + 4 * c), 60 + c))
    lds_inc(4, 8, L_UST)
    stamp(3)
    a('s_cmp_ge_u32 s7, 4'); a('s_cbranch_scc1 k_helper')
    st1h = a.save()
    a('s_mul_i32 s11, s9, %d' % L_U0); a('s_add_u32 s11, s11, s10')
    a('v_add_u32 v3, s11, v2')
    a('s_mov_b32 exec_lo, 0x0fffffff'); a('s_mov_b32 exec_hi, 0')
    a('ds_write_b128 v3, v[4:7] offset:4096')
    a('s_mov_b64 exec, -1')
    a('v_and_b32 v10, 15, v1'); a('v_lshrrev_b32 v11, 4, v1'); a('v_lshrrev_b32 v12, 1, v10'); a('v_and_b32 v13, 1, v10')
    a('v_lshlrev_b32 v3, 6, v12'); a('v_lshl_add_u32 v3, v11, 4, v3')
    a('v_mul_u32_u24 v4, %d, v13' % (L_U0 - L_U1)); a('v_add_u32 v3, v3, v4')
    a('s_lshl_b32 s64, s9, 8'); a('s_sub_u32 s65, s10, s64'); a('s_add_u32 s65, s65, %d' % (L_U0 + 283 * 16 - 64 * 59))
    a('v_sub_u32 v3, s65, v3')
    a('v_lshlrev_b32 v4, 3, v12'); a('v_lshlrev_b32 v5, 4, v11'); a('v_sub_u32 v4, v4, v5')
    a('v_mul_u32_u24 v5, %d, v13' % (L_KB + 62 * 8 - L_KA - 63 * 8)); a('v_sub_u32 v4, v4, v5')
    a('s_sub_u32 s65, s10, s64'); a('s_add_u32 s65, s65, %d' % (L_KB + 62 * 8 - 192))
    a('v_add_u32 v4, s65, v4')
    a('v_lshlrev_b32 v5, 8, v11'); a('v_lshl_add_u32 v5, v10, 3, v5')
    a('s_lshl_b32 s64, s8, 1'); a('s_add_u32 s64, s64, s9'); a('s_lshl_b32 s64, s64, 13'); a('s_add_u32 s64, s64, %d' % L_Y)
    a('v_add_u32 v5, s64, v5')
    a('v_mov_b32 v7, 1')
    a.wait(vm=0); stamp(4)
    lds_inc(6, 7, L_UGO)
    if envi('UPRE', 12): a('s_sleep %d' % envi('UPRE', 12))
    u_poll_build(40)
    stamp(5)
    a.wait(lg=0)
    lds_inc(6, 7, L_IMGC)
    lds_wait(6, 8, L_IMGC, 8, sleep=0)
    stamp(6)
    if STAMP and envi('CYC', 0): a('s_memtime s[%d:%d]' % (SST + 2, SST + 3))
    if STAMP: a.wait(lg=0)
    if PRIO: a('s_setprio 2')
    ACC = 8; F0 = 40
    def Areg(buf, al): return F0 + buf * 64 + al * 4
    def Breg(buf, be): return F0 + buf * 64 + 32 + be * 4
    def loadA(buf, rp, al): a('ds_read_b128 %s, v3 offset:%d' % (vq(Areg(buf, al)), 64 * (59 - (rp + 8 * al))))
    def loadB(buf, rp, be):
        o = 64 * (8 * be + 3 - rp)
        if envi('READ2', 0):
            base = 4 if o < 2000 else 2
            oo = (o if o < 2000 else o - 2048) // 8
            a('ds_read2_b64 %s, v%d offset0:%d offset1:%d' % (vq(Breg(buf, be)), base, oo, oo + 1))
        else:
            a('ds_read_b64 %s, v4 offset:%d' % (vp(Breg(buf, be)), o)); a('ds_read_b64 %s, v4 offset:%d' % (vp(Breg(buf, be) + 2), o + 8))
    pairs = []
    for m in range(8):
        for o in range(m + 1):
            for (al, be) in ((m, o), (o, m)) if o != m else ((m, m),):
                if al + be <= 7: pairs.append((al, be))
    loads = []
    for m in range(8): loads.append(('A', m)); loads.append(('B', m))
    def do_load(buf, rp, it): (loadA if it[0] == 'A' else loadB)(buf, rp, it[1])
    def ywrite(tt):
        a('ds_write_b64 v5, %s offset:%d' % (vp(ACC + 4 * tt), 1024 * tt)); a('ds_write_b64 v5, %s offset:%d' % (vp(ACC + 4 * tt + 2), 1024 * tt + 128))
    for it in loads: do_load(0, 0, it)
    first = set()
    for rp in range(4):
        buf = rp & 1
        nxt = list(loads) if rp < 3 else []
        order = pairs if rp < 3 else sorted(pairs, key=lambda x: (x[0] + x[1]))
        lastof = {tt: max(i for i, (x, y) in enumerate(order) if x + y == tt) for tt in range(8)}
        if rp and envi('ONEWAIT', 1): a.wait(lg=0)
        for n, (al, be) in enumerate(order):
            t = al + be
            c = '0' if t not in first else vq(ACC + 4 * t)
            first.add(t)
            a('v_mfma_f32_16x16x32_bf16 %s, %s, %s, %s' % (vq(ACC + 4 * t), vq(Areg(buf, al)), vq(Breg(buf, be)), c))
            if nxt and (n % 2 == 1 if not envi('LDEARLY', 1) else (n >= envi('LDSTART', 0) if rp or 1 else True)) and not (rp == 0 and n < envi('LD0', 12)): do_load(buf ^ 1, rp + 1, nxt.pop(0))
            if rp == 3:
                for tt in range(8):
                    if n == lastof[tt] + 8: ywrite(tt)
        if rp == 3:
            for tt in range(8):
                if lastof[tt] + 8 > 35: ywrite(tt)
    stamp(7)
    if STAMP and envi('CYC', 0):
        a('s_memtime s[%d:%d]' % (SST + 4, SST + 5)); a.wait(lg=0)
        a('s_sub_u32 s%d, s%d, s%d' % (SST + 2, SST + 4, SST + 2)); a('s_add_u32 s%d, s%d, s%d' % (SST + 2, SST + 2, SST)); a('s_mov_b32 s%d, 0' % (SST + 4))
    if PRIO: a('s_setprio 0')
    if envi('READ2', 0): a('v_lshlrev_b32 v2, 4, v1')
    a.wait(lg=0)
    lds_inc(6, 7, L_YC)
    lds_epoch(6, 12)
    a('v_lshrrev_b32 v11, 2, v1'); a('v_lshlrev_b32 v11, 7, v11'); a('v_and_b32 v12, 3, v1'); a('v_lshl_add_u32 v11, v12, 4, v11')
    a('s_lshl_b32 s60, s7, 13'); a('s_add_u32 s60, s60, %d' % (WS_SM + SM_MOD)); a('s_add_u32 s61, s60, 4096')
    for l in ['buffer_load_dwordx4 %s, v11, s[56:59], s%d offen offset:%d sc1' % (vq(80 + 4 * g), 60 if g < 2 else 61, 2048 * (g & 1)) for g in range(4)]: a(l)
    a('s_mul_i32 s9, s7, 1536'); a('v_lshlrev_b32 v12, 3, v1'); a('v_add_u32 v12, s9, v12')
    a('s_branch k_epi')
    a.label('k_helper'); a.load(st1h)
    a('v_add_u32 v3, s67, v2'); a('v_mov_b32 v11, 0')
    a('v_cmp_eq_u32 vcc, 3, v1'); a('s_cmp_eq_u32 s9, 1'); a('s_cselect_b64 s[62:63], vcc, 0')
    a('s_sub_u32 s68, s7, 4')
    a.wait(vm=0); stamp(4)
    a('v_cndmask_b32 v7, v7, v9, s[62:63]')
    a('s_mov_b64 exec, 15')
    a('ds_write_b128 v3, v[4:7]')
    a('s_mov_b64 exec, -1')
    if envi('UPRE', 12): a('s_sleep %d' % envi('UPRE', 12))
    u_poll_build(40)
    stamp(5)
    a.wait(lg=0)
    lds_inc(4, 8, L_IMGC)
    srd(48, Q, 2 * MiB); srd(16, WG_, 512 * 3584); srd(20, WU_, 512 * 3584); srd(24, WD_, 1792 * 1024)
    a('s_lshl_b32 s64, s7, 10'); a('s_add_u32 s64, s64, %d' % L_XB); a('s_mov_b32 m0, s64'); a('s_sub_u32 s64, s64, 4096'); a('s_sub_u32 s67, s13, 4096')
    a('buffer_load_dwordx4 v2, s[48:51], s13 offen lds')
    a('s_mov_b32 m0, s64'); a.nop(1)
    a('buffer_load_dwordx4 v2, s[48:51], s67 offen lds')
    a('s_cmp_ge_u32 s5, 28'); a('s_cbranch_scc1 k_h_wd')
    a('s_mul_i32 s10, s4, 28'); a('s_add_u32 s10, s10, s5'); a('s_lshl_b32 s10, s10, 4'); a('s_mul_i32 s64, s68, %d' % (128 * 3584)); a('s_add_u32 s10, s10, s64')
    a('v_mul_u32_u24 v15, 3584, v1')
    a('s_lshl_b32 s9, s68, 11'); a('s_add_u32 s9, s9, %d' % L_W)
    for i in range(2 if WSCHED != 'N' else 0):
        a('s_mov_b32 m0, s9'); a('s_add_u32 s11, s9, %d' % L_GU); a('buffer_load_dwordx4 v15, s[16:19], s10 offen lds')
        a('s_mov_b32 m0, s11'); a('s_add_u32 s9, s9, 1024'); a('buffer_load_dwordx4 v15, s[20:23], s10 offen lds')
        a('s_add_u32 s10, s10, %d' % (64 * 3584))
    a('s_branch k_h_done')
    a.label('k_h_wd')
    a('s_lshl_b32 s8, s4, 2'); a('s_add_u32 s8, s8, s5'); a('s_sub_u32 s8, s8, 28'); a('s_lshl_b32 s8, s8, 5')
    wd_addr(15)
    a('s_mul_i32 s64, s68, %d' % (448 * 1024)); a('s_add_u32 s8, s8, s64')
    a('s_mul_i32 s9, s68, 14336'); a('s_add_u32 s9, s9, %d' % L_W)
    for hw in range(2 if WSCHED != 'N' else 0):
        for i in range(WDE):
            a('s_mov_b32 m0, s9'); a('s_add_u32 s9, s9, %d' % (1024 if i < WDE - 1 else 1024 * (8 - WDE))); a('buffer_load_dwordx4 v15, s[24:27], s8 offen lds')
            a('s_add_u32 s8, s8, %d' % (32768 if i < WDE - 1 else 32768 * (8 - WDE)))
    a.label('k_h_done')
    stamp(7)
    a.wait(vm=0)
    lds_inc(4, 8, L_QD)
    lds_epoch(4, 12)
    a('s_branch k_epi')
    a.label('k_aux'); a.load(st0)
    a('s_load_dwordx16 s[32:47], s[0:1], 64')
    common2()
    a('s_cmp_eq_u32 s7, 8'); a('s_cbranch_scc1 k_loader')
    st0b = a.save()
    a('s_memrealtime s[8:9]')
    a('v_mov_b32 v4, 0')
    srd(EPR, DBG, 256)
    a('s_mov_b64 exec, 1')
    a('s_cmp_lg_u32 s2, 0'); a('s_cbranch_scc1 k_ep_nopub')
    a('s_lshl_b32 s9, s9, 16'); a('s_or_b32 s9, s9, 0x80000000')
    a('v_mov_b32 v8, s8'); a('v_mov_b32 v9, s9')
    a('buffer_store_dwordx2 v[8:9], v4, %s, 0 offen sc1' % sq(EPR))
    a.label('k_ep_nopub')
    a('s_mov_b64 exec, -1')
    srd(56, WS, WS_SIZE, WSOFF)
    for i in range(4): a('v_mov_b32 v%d, -1' % (8 + i))
    if not envi('FEARLY', 0): barrier()
    if envi('FGATE', 0): lds_wait(4, 24, L_KVA, envi('FGATE', 0))
    if envi('FUGO', 0): lds_wait(4, 24, L_UGO, envi('FUGO', 0))
    if envi('FIMG', 0): lds_wait(4, 24, L_IMGC, envi('FIMG', 0))
    a('s_lshl_b32 s8, s6, 13'); a('s_add_u32 s9, s8, %d' % WS_Z); a('s_add_u32 s10, s9, 4096')
    for sr in (9, 10):
        if sr == 10 and envi('FSPLIT', 0): lds_wait(4, 24, L_UGO, 4)
        for i in range(4): a('buffer_store_dwordx4 v[8:11], v2, s[56:59], s%d offen offset:%d sc1' % (sr, 1024 * i))
    a('s_lshl_b32 s8, s6, 7'); a('s_add_u32 s8, s8, %d' % (WS_SM + SM_KEY))
    a('s_lshl_b32 s9, s2, 7'); a('s_add_u32 s9, s9, %d' % (WS_SM + SM_ACT))
    a('s_mov_b64 exec, 0xff')
    a('buffer_store_dwordx4 v[8:11], v2, s[56:59], s8 offen sc1'); a('buffer_store_dwordx4 v[8:11], v2, s[56:59], s9 offen sc1')
    a('s_mov_b64 exec, -1')
    if SPEC:
        a('s_lshl_b32 s8, s6, 11'); a('s_add_u32 s8, s8, %d' % (WS_SM + SM_SPEC))
        a('buffer_store_dwordx4 v[8:11], v2, s[56:59], s8 offen sc1'); a('buffer_store_dwordx4 v[8:11], v2, s[56:59], s8 offen offset:1024 sc1')
    a('s_cmp_ge_u32 s2, 16'); a('s_cbranch_scc1 k_ld_nox1')
    a('s_lshl_b32 s8, s2, 10'); a('s_add_u32 s8, s8, %d' % (WS_SM + SM_X1))
    a('buffer_store_dwordx4 v[8:11], v2, s[56:59], s8 offen sc1')
    a.label('k_ld_nox1')
    if envi('FEARLY', 0): barrier()
    a('s_mov_b64 exec, 1')
    a('s_mov_b32 s64, 0')
    if envi('EPSLEEP', 0): a('s_sleep %d' % envi('EPSLEEP', 0))
    ED = envi('EPDEPTH', 1); EG = envi('EPGAP', 1)
    for j in range(ED - 1): epoch_issue(4, 72 + 2 * j); a('s_sleep %d' % EG)
    a.label('k_ep')
    for j in range(ED):
        epoch_issue(4, 72 + 2 * ((j + ED - 1) % ED))
        a.wait(vm=ED - 1); a.vm = []
        a('v_readfirstlane_b32 s%d, v%d' % (T1S, 73 + 2 * j)); a('v_readfirstlane_b32 s%d, v%d' % (T0S, 72 + 2 * j))
        a('s_cmp_lg_u32 s%d, 0' % T1S); a('s_cbranch_scc1 k_ep_done')
        if ED > 1: a('s_sleep %d' % EG)
    a('s_add_u32 s64, s64, 1'); a('s_cmp_lt_u32 s64, %d' % SPIN_LIMIT); a('s_cbranch_scc1 k_ep')
    a.label('k_ep_done')
    a('v_mov_b32 v70, s%d' % T0S); a('v_mov_b32 v71, s%d' % T1S)
    a('ds_write_b64 v4, v[70:71] offset:%d' % L_EP)
    stamp(1)
    a.wait(lg=0)
    a('s_branch k_end')
    a.label('k_loader'); a.load(st0b)
    for i in range(4): a('v_mov_b32 v%d, 0' % (4 + i))
    a('v_mov_b32 v3, 0')
    a('ds_write_b128 v3, v[4:7] offset:640'); a('ds_write_b128 v3, v[4:7] offset:656'); a('ds_write_b128 v3, v[4:7] offset:672')
    a('v_and_b32 v14, 1, v1'); a('v_lshrrev_b32 v15, 1, v1')
    a('v_and_b32 v16, 0x13, v15'); a('v_bfe_u32 v17, v15, 2, 1'); a('v_lshl_or_b32 v16, v17, 3, v16'); a('v_bfe_u32 v17, v15, 3, 1'); a('v_lshl_or_b32 v16, v17, 2, v16')
    a('v_mul_u32_u24 v12, 6144, v16'); a('v_lshl_add_u32 v12, v14, 4, v12')
    a('s_mul_i32 s68, s4, 24'); a('s_add_u32 s68, s68, s5')
    srd(56, WS, WS_SIZE, WSOFF)
    if not envi('LEARLY', 0): barrier()
    srd(52, WMOD, 3 * MiB); srd(48, CP, 1024)
    if envi('LDGATE', 0) == 1: lds_wait(3, 24, L_KVA, 8)
    CR = 16
    a('buffer_load_dwordx4 %s, v2, s[48:51], 0 offen' % vq(CR))
    srd(48, WRP, 1024)
    a('s_mov_b32 m0, %d' % L_WR)
    a('buffer_load_dwordx4 v2, s[48:51], 0 offen lds')
    a('v_lshrrev_b32 v10, 2, v1'); a('s_lshl_b32 s8, s5, 4'); a('v_add_u32 v10, s8, v10'); a('v_mul_u32_u24 v10, 6144, v10')
    a('v_and_b32 v11, 3, v1'); a('v_lshl_add_u32 v11, v11, 7, v10')
    a('v_lshl_add_u32 v13, v14, 7, v10')
    a('s_mul_i32 s8, s4, 768')
    a('buffer_load_dword v128, v11, s[52:55], s8 offen')
    a('s_mov_b32 exec_lo, 0x33333333'); a('s_mov_b32 exec_hi, 0x33333333')
    a('buffer_load_dword v129, v13, s[52:55], s8 offen offset:512')
    a('s_mov_b64 exec, -1')
    if envi('LEARLY', 0): barrier()
    a.wait(vm=2)
    a('v_mov_b32 v8, 1'); lds_inc(3, 8, L_QD)
    a('s_cmp_ge_u32 s5, 3'); a('s_cbranch_scc1 k_ld_nocode')
    a('s_getpc_b64 s[8:9]')
    a.label('k_pc')
    a('s_sub_u32 s8, s8, k_pc-%s' % KN); a('s_subb_u32 s9, s9, 0')
    a('v_lshlrev_b32 v10, 7, v1'); a('s_lshl_b32 s10, s5, 13'); a('v_add_u32 v10, s10, v10')
    a('s_mov_b32 s10, k_code_end-%s' % KN); a('v_cmp_gt_u32 vcc, s10, v10'); a('s_and_b64 exec, exec, vcc')
    a('s_cbranch_execz k_ld_nocode2')
    a('global_load_dword v130, v10, s[8:9]')
    a.label('k_ld_nocode2'); a('s_mov_b64 exec, -1')
    a.label('k_ld_nocode')
    stamp(1)
    srd(48, WG_, 512 * 3584); srd(28, WU_, 512 * 3584); srd(60, WD_, 1792 * 1024)
    a('v_lshrrev_b32 v10, 2, v1'); a('s_lshl_b32 s8, s5, 4'); a('v_add_u32 v10, s8, v10'); a('v_mul_u32_u24 v10, 3584, v10')
    a('v_and_b32 v11, 3, v1'); a('v_lshl_add_u32 v10, v11, 7, v10')
    a('s_mul_i32 s8, s4, 448'); a('s_and_b32 s8, s8, 0xffffff80')
    a('s_mul_i32 s9, s5, 56'); a('v_add_u32 v11, s9, v1'); a('v_lshlrev_b32 v11, 10, v11'); a('s_lshl_b32 s9, s4, 7')
    def touches():
        a('buffer_load_dword v164, v10, s[48:51], s8 offen' + NTW); a('buffer_load_dword v165, v10, s[28:31], s8 offen' + NTW)
        a('s_mov_b32 exec_hi, 0x00ffffff')
        a('buffer_load_dword v166, v11, s[60:63], s9 offen' + NTW)
        a('s_mov_b64 exec, -1')
    a.vm = []
    C = 24; E = 32
    a('v_lshrrev_b32 v6, 4, v1')
    a('v_lshl_add_u32 v8, v14, 2, v6'); a('v_lshlrev_b32 v8, 4, v8')
    a('s_cmp_ge_u32 s5, 24'); a('s_cbranch_scc1 k_ld_nowm')
    unpack(C, CR, 4)
    a('s_mov_b32 s64, 0x%x' % (LOG2E | 0x80000000))
    silu_like(E, C, 8, 64)
    for i in range(4): a('v_perm_b32 v%d, v%d, v%d, s65' % (CR + i, E + 2 * i + 1, E + 2 * i)) if False else a('v_cvt_pk_bf16_f32 v%d, v%d, v%d' % (CR + i, E + 2 * i, E + 2 * i + 1))
    a('v_add_u32 v13, %d, v2' % L_SC)
    a('ds_write_b128 v13, %s' % vq(CR))
    a('v_lshlrev_b32 v13, 4, v6'); a('v_add_u32 v13, %d, v13' % L_SC)
    a('v_and_b32 v20, 3, v1'); a('v_bfe_u32 v21, v1, 2, 2')
    a('v_lshrrev_b32 v22, 1, v6'); a('v_lshlrev_b32 v22, 9, v22'); a('v_and_b32 v23, 1, v6'); a('v_lshl_add_u32 v22, v23, 7, v22')
    a('v_lshl_add_u32 v22, v21, 5, v22'); a('v_lshl_add_u32 v22, v20, 3, v22'); a('v_add_u32 v22, %d, v22' % L_WMT)
    a.wait(lg=0)
    SCB = 32; WF = 96
    for i in range(16): a('ds_read_b128 %s, v13 offset:%d' % (vq(SCB + 4 * i), 64 * i))
    lds_wait(3, 24, L_UST, 8)
    a('s_lshl_b32 s10, s68, 5'); a('s_mov_b32 s11, %d' % L_WMT)
    for i in range(16):
        a('s_mov_b32 m0, s11'); a('s_add_u32 s11, s11, 1024'); a('buffer_load_dwordx4 v12, s[52:55], s10 offen lds'); a('s_add_u32 s10, s10, %d' % (32 * 6144))
    a.vm = []
    assert WSCHED in 'FN'
    a.wait(vm=0); a.vm = []
    stamp(2)
    for i in range(16):
        for hh in range(2): a('ds_read_b64_tr_b16 %s, v22 offset:%d' % (vp(WF + 4 * i + 2 * hh), 1024 * i + 256 * hh))
    a('s_setprio 3')
    for i in range(16):
        a('v_mfma_f32_16x16x32_bf16 %s, %s, %s, %s' % (vq(24 + 4 * (i & 1)), vq(WF + 4 * i), vq(SCB + 4 * i), '0' if i < 2 else vq(24 + 4 * (i & 1))))
    a('s_lshr_b32 s64, s68, 5'); a('s_cmp_eq_u32 s64, 1'); a('s_cselect_b32 s66, 1.0, 0'); a('s_cmp_eq_u32 s64, 4'); a('s_cselect_b32 s66, 1.0, s66')
    for i in range(4): a('v_add_f32 v%d, v%d, v%d' % (24 + i, 24 + i, 28 + i))
    for i in range(4): rb(24 + i, 24 + i)
    for i in range(4): a('v_add_f32 v%d, s66, v%d' % (24 + i, 24 + i))
    a('v_cvt_pk_bf16_f32 v40, v24, v25'); a('v_cvt_pk_bf16_f32 v41, v26, v27')
    a.label('k_ld_nowm')
    a('s_lshl_b32 s66, s6, 7'); a('s_add_u32 s66, s66, %d' % (WS_SM + SM_MOD))
    lds_epoch(3, 44)
    a('v_mov_b32 v42, s%d' % T0S); a('v_mov_b32 v43, s%d' % T1S)
    a('s_mov_b32 exec_lo, 0x00030003'); a('s_mov_b32 exec_hi, 0x00030003')
    a('buffer_store_dwordx4 v[40:43], v8, s[56:59], s66 offen sc1')
    a('s_mov_b64 exec, -1')
    stamp(3)
    TG = envi('TGATE', 2)
    if TG == 1: lds_wait(3, 24, L_UST, 8)
    if TG == 2: lds_wait(3, 24, L_UGO, 4)
    if WSCHED == 'F': touches(); a.vm = []
    a('s_branch k_end')
    a.label('k_epi')
    a('s_lshl_b32 s64, s7, 10'); a('v_add_u32 v17, s64, v2')
    a('v_lshrrev_b32 v18, 1, v17'); a('v_sub_u32 v18, %d, v18' % (L_IMG + L_U1 + 4088))
    a('s_lshl_b32 s10, s6, 13'); a('s_add_u32 s10, s10, %d' % WS_Z)
    a.wait(lg=0)
    a('s_lshl_b32 s8, s69, 16'); a('s_and_b32 s9, s69, s3')
    a('v_mov_b32 v16, 0')
    lds_wait(16, 19, L_YC, 4, sleep=0); stamp(8)
    a('ds_read_b64 v[20:21], v18'); a('ds_read_b64 v[22:23], v18 offset:%d' % L_CB)
    for i in range(4): a('ds_read_b128 %s, v17 offset:%d' % (vq(32 + 4 * i), L_Y + 8192 * i))
    U = 48
    for ch in range(2):
        hi(U + 4 * ch + 0, 21 + 2 * ch); lo(U + 4 * ch + 1, 21 + 2 * ch); hi(U + 4 * ch + 2, 20 + 2 * ch); lo(U + 4 * ch + 3, 20 + 2 * ch)
    for ch in range(2):
        for i in range(4): a('v_mul_f32 v%d, s%d, v%d' % (U + 4 * ch + i, 8 + ch, U + 4 * ch + i))
    for i in range(8): rb(U + i, U + i)
    for ch in range(2):
        for i in (0, 2): pk('add', 32 + 8 * ch + i, 32 + 8 * ch + i, vp(36 + 8 * ch + i))
    for ch in range(2):
        for i in range(4): rb(32 + 8 * ch + i, 32 + 8 * ch + i)
    for ch in range(2):
        for i in (0, 2): pk('add', 32 + 8 * ch + i, 32 + 8 * ch + i, vp(U + 4 * ch + i))
    for i in range(4): a('v_cvt_pk_bf16_f32 v%d, v%d, v%d' % (56 + i, 32 + i, 40 + i))
    for i in range(4): a('v_min_u32 v%d, -2, v%d' % (56 + i, 56 + i))
    a('buffer_store_dwordx4 v[56:59], v17, s[56:59], s10 offen sc1')
    stamp(9)
    a('s_cmp_ge_u32 s7, 4'); a('s_cbranch_scc1 k_nomod')
    def badm():
        for g in range(4):
            a('v_xor_b32 v%d, s%d, v%d' % (48 + 2 * g, T0S, 80 + 4 * g + 2)); a('v_xor_b32 v%d, s%d, v%d' % (49 + 2 * g, T1S, 80 + 4 * g + 3))
        a('v_or3_b32 v48, v48, v49, v50'); a('v_or3_b32 v51, v51, v52, v53'); a('v_or3_b32 v48, v48, v54, v55'); a('v_or_b32 v48, v48, v51')
        a('v_cmp_ne_u32 vcc, 0, v48')
    a.wait(vm=1)
    badm()
    a('s_and_b64 exec, exec, vcc'); a('s_cbranch_execz k_modok')
    a('s_mov_b32 s64, 0')
    a.label('k_modp')
    for l in ['buffer_load_dwordx4 %s, v11, s[56:59], s%d offen offset:%d sc1' % (vq(80 + 4 * g), 60 if g < 2 else 61, 2048 * (g & 1)) for g in range(4)]: a(l)
    a.wait(vm=0)
    badm()
    a('s_add_u32 s64, s64, 1'); a('s_and_b64 exec, exec, vcc'); a('s_cbranch_execz k_modok')
    a('s_cmp_lt_u32 s64, %d' % SPIN_LIMIT); a('s_cbranch_scc1 k_modp')
    a.label('k_modok')
    a('s_mov_b64 exec, -1')
    for g in (0, 2): a('ds_write_b64 v12, %s offset:%d' % (vp(80 + 4 * g), L_MOD + 768 * (g >> 1)))
    a('s_mov_b32 exec_hi, 0')
    for g in (1, 3): a('ds_write_b64 v12, %s offset:%d' % (vp(80 + 4 * g), L_MOD + 768 * (g >> 1) + 512))
    a('s_mov_b64 exec, -1')
    a('v_mov_b32 v12, 1')
    a.wait(lg=0)
    lds_inc(16, 12, L_MR)
    a.label('k_nomod')
    X = 24; T = 32; H = 40; Z = 48; S = 60; M = 64; WRr = 112; H2P = 128
    lds_wait(16, 18, L_QD, 5)
    a('ds_read_b128 v[12:15], v17 offset:%d' % L_XB)
    a('ds_read_b128 v[20:23], v2 offset:%d' % L_WR)
    a('v_lshrrev_b32 v3, 1, v0'); a('v_and_b32 v4, 1, v0')
    a('v_lshlrev_b32 v5, 13, v3'); a('v_lshl_add_u32 v5, v4, 4, v5')
    a('v_mul_u32_u24 v6, %d, v4' % (4 * ZP)); a('v_lshl_add_u32 v6, v3, 2, v6'); a('v_add_u32 v6, %d, v6' % L_ZT)
    a('s_mul_i32 s64, s7, %d' % ZP); a('s_add_u32 s64, s64, %d' % L_ZT); a('v_add_u32 v7, s64, v2')
    a('v_lshlrev_b32 v19, 7, v3'); a('v_lshl_add_u32 v19, v4, 4, v19')
    a('s_lshl_b32 s11, s6, 5'); a('s_add_u32 s11, s11, %d' % WS_Z)
    MR = 120
    unpack(X, 12, 4)
    fin = ln_stats(X, T, 48, 50, 52, S)
    ln_norm(H, X, 50, 52, fin)
    for i in range(8): rb(H + i, H + i)
    unpack(WRr, 20, 4)
    lds_wait(16, 17, L_MR, 4)
    for i in range(6): a('ds_read_b128 %s, v2 offset:%d' % (vq(MR + 4 * i), L_MOD + 1024 * i))
    for i in (1, 0): unpack(M + 8 * i, MR + 4 * i, 4)
    affine(H, M + 8, M + 0)
    for i in range(2, 6): unpack(M + 8 * i, MR + 4 * i, 4)
    a.wait(vm=0); stamp(10)
    ppoll('Z', lambda B: ['buffer_load_dwordx4 %s, v5, s[56:59], s11 offen sc1' % vq(B)], lambda B: bad_sent([B, B + 1, B + 2, B + 3], 16)(), 4, 12, [144, 148, 152])
    stamp(11)
    for i in range(4): a('ds_write_b32 v6, v%d offset:%d' % (12 + i, ZP * i))
    a.wait(lg=0); barrier()
    a('ds_read_b128 v[12:15], v7')
    unpack(Z, 12, 4)
    for i in range(0, 8, 2): pk('mul', H + i, H + i, vp(Z + i))
    for i in range(8): rb(H + i, H + i)
    for i in range(0, 8, 2): pk('mul', H + i, H + i, vp(M + 16 + i))
    for i in range(8): rb(H + i, H + i)
    for i in range(0, 8, 2): pk('add', X + i, X + i, vp(H + i))
    for i in range(8): rb(X + i, X + i)
    fin = ln_stats(X, T, 48, 50, 52, S)
    ln_norm(H, X, 50, 52, fin)
    for i in range(8): rb(H + i, H + i)
    affine(H, M + 32, M + 24)
    pk('mul', S, H, vp(WRr)); pk('mul', S + 2, H + 2, vp(WRr + 2))
    a('v_pk_fma_f32 %s, %s, %s, %s' % (vp(S), vp(H + 4), vp(WRr + 4), vp(S))); a('v_pk_fma_f32 %s, %s, %s, %s' % (vp(S + 2), vp(H + 6), vp(WRr + 6), vp(S + 2)))
    pk('add', S, S, vp(S + 2)); a('v_add_f32 v%d, v%d, v%d' % (S, S, S + 1))
    for n, ctl in enumerate(DPPS):
        a('v_add_f32_dpp v%d, v%d, v%d %s' % (S, S, S, ctl))
        if n < 4:
            a('v_cvt_pk_bf16_f32 v%d, v%d, v%d' % (H2P + n, H + 2 * n, H + 2 * n + 1)); a('v_min_u32 v%d, -2, v%d' % (H2P + n, H2P + n))
    rb(S, S)
    a('v_ashrrev_i32 v%d, 31, v%d' % (S + 1, S)); a('v_or_b32 v%d, 0x80000000, v%d' % (S + 1, S + 1)); a('v_xor_b32 v%d, v%d, v%d' % (S, S, S + 1))
    a('s_sub_u32 s64, 2047, s12'); a('v_and_b32 v%d, s3, v%d' % (S, S)); a('v_or_b32 v%d, s64, v%d' % (S, S))
    a('s_lshl_b32 s64, s7, 2'); a('v_mov_b32 v%d, s64' % (S + 1))
    if DBGSPAN: a('s_mov_b32 s68, s14')
    a('v_readlane_b32 s14, v%d, 63' % S)
    a('s_mov_b32 exec_lo, 0'); a('s_mov_b32 exec_hi, 0x80000000')
    a('ds_write_b32 v%d, v%d offset:%d' % (S + 1, S, L_KEYL))
    if envi('KEYDIRECT', 0):
        a('s_lshl_b32 s64, s6, 7'); a('s_add_u32 s64, s64, %d' % (WS_SM + SM_KEY))
        a('buffer_store_dword v%d, v%d, s[56:59], s64 offen sc1' % (S, S + 1))
    a('s_mov_b64 exec, -1')
    a('s_add_u32 s65, s13, %d' % WS_H2)
    OUTR = 120; X1P = 124
    for i in range(4): a('v_cvt_pk_bf16_f32 v%d, v%d, v%d' % (X1P + i, X + 2 * i, X + 2 * i + 1))
    for i in range(4): a('v_min_u32 v%d, -2, v%d' % (X1P + i, X1P + i))
    a('v_and_b32 v%d, 1, v1' % (S + 1)); a('v_lshlrev_b32 v%d, 4, v%d' % (S + 1, S + 1))
    a('s_lshl_b32 s64, s6, 7'); a('s_add_u32 s64, s64, %d' % (WS_SM + SM_KEY))
    a('s_lshl_b32 s65, s6, 11'); a('s_add_u32 s65, s65, %d' % (WS_SM + SM_SPEC))
    a.wait(lg=0); barrier()
    a('ds_read_b128 v[8:11], v%d offset:%d' % (S + 1, L_KEYL))
    a('s_cmp_lg_u32 s7, %d' % (99 if envi('KEYDIRECT', 0) else 0)); a('s_cbranch_scc1 k_nokey')
    a('s_mov_b64 exec, 0xff')
    a('buffer_store_dwordx4 v[8:11], v2, s[56:59], s64 offen sc1')
    a('s_mov_b64 exec, -1')
    a.label('k_nokey')
    stamp(12)
    if SPEC:
        a.wait(lg=0)
        a('v_max3_u32 v16, v8, v9, v10'); a('v_max_u32 v16, v16, v11')
        a('v_cmp_lt_u32 vcc, s14, v16')
        a('s_cbranch_vccnz k_nospec')
        a('buffer_store_dwordx4 %s, v2, s[56:59], s65 offen sc1' % vq(H2P)); a('buffer_store_dwordx4 %s, v2, s[56:59], s65 offen offset:1024 sc1' % vq(X1P))
        a.label('k_nospec')
    for i in range(0, 8, 2): pk('mul', T + i, H + i, vp(M + 40 + i))
    for i in range(8): rb(T + i, T + i)
    for i in range(0, 8, 2): pk('add', T + i, T + i, vp(X + i))
    for i in range(4): a('v_cvt_pk_bf16_f32 v%d, v%d, v%d' % (OUTR + i, T + 2 * i, T + 2 * i + 1))
    a('v_mov_b32 v20, 0'); a('v_lshlrev_b32 v21, 2, v1')
    a('v_mov_b32 v16, 0'); a('v_mov_b32 v17, 0'); a('v_lshlrev_b32 v18, 3, v1')
    a('ds_write_b64 v18, v[16:17] offset:%d' % L_RANK); a('ds_write_b64 v18, v[16:17] offset:%d' % L_SEG)
    a('v_lshrrev_b32 v24, 3, v1'); a('v_lshlrev_b32 v24, 6, v24'); a('v_and_b32 v25, 7, v1'); a('v_lshl_add_u32 v24, v25, 2, v24')
    a('ds_write_b32 v20, v20 offset:%d' % L_CNT); a('ds_write_b32 v20, v20 offset:%d' % L_FLAG)
    a('s_mov_b32 s11, %d' % (WS_SM + SM_KEY))
    a('v_and_b32 v4, 7, v1'); a('v_lshlrev_b32 v5, 2, v4')
    a('v_lshrrev_b32 v3, 3, v1'); a('v_add_lshl_u32 v3, v3, v4, 2'); a('v_and_b32 v3, 28, v3')
    a('v_lshrrev_b32 v6, 4, v1')
    a('v_and_b32 v17, 3, v1'); a('v_bfe_u32 v18, v1, 2, 2')
    a('v_lshlrev_b32 v22, 7, v6'); a('v_lshl_add_u32 v22, v18, 4, v22')
    a('v_and_b32 v23, 1, v17'); a('v_lshl_add_u32 v22, v23, 3, v22')
    a('v_lshrrev_b32 v23, 1, v17'); a('v_mul_u32_u24 v23, %d, v23' % L_GU); a('v_add_u32 v22, v22, v23')
    a('s_lshl_b32 s64, s7, 10'); a('s_add_u32 s64, s64, %d' % L_W); a('v_add_u32 v22, s64, v22')
    for i in range(2):
        for hh in range(2): a('ds_read_b64_tr_b16 %s, v22 offset:%d' % (vp(72 + 4 * i + 2 * hh), 512 * i + 64 * hh))
    a('s_lshl_b32 s64, s7, 7'); a('s_add_u32 s10, s64, %d' % (WS_SM + SM_X1))
    a('v_lshlrev_b32 v23, 11, v4')
    a.wait(vm=0, lg=0)
    KEY = 12
    ppoll('K', lambda B: ['buffer_load_dwordx4 %s, v19, s[56:59], s11 offen sc1' % vq(B)], lambda B: bad_sent([B, B + 1, B + 2, B + 3], 16)(), 4, 12, [156, 160, 164])
    stamp(13)
    T0 = 30
    a('v_max3_u32 v%d, v%d, v%d, v%d' % (T0, KEY, KEY + 1, KEY + 2)); a('v_max_u32 v%d, v%d, v%d' % (T0, T0, KEY + 3))
    wave_reduce('v_max_u32', [T0])
    a('s_lshl_b32 s64, s7, 2'); a('v_mov_b32 v%d, s64' % (T0 + 1))
    a('s_mov_b32 exec_lo, 0'); a('s_mov_b32 exec_hi, 0x80000000')
    a('ds_write_b32 v%d, v%d offset:%d' % (T0 + 1, T0, L_WM))
    a('s_mov_b64 exec, -1')
    a('s_mov_b32 s15, 0')
    if envi('EARLYOUT', 1):
        for j in range(4): a('v_cmp_lt_u32 %s, s14, v%d' % (sp(48 + 2 * j), KEY + j))
        for j in range(4): a('s_bcnt1_i32_b64 s%d, %s' % (60 + j, sp(48 + 2 * j)))
        a('s_add_u32 s60, s60, s61'); a('s_add_u32 s62, s62, s63'); a('s_add_u32 s60, s60, s62')
        a('s_cmp_lt_u32 s60, 8'); a('s_cbranch_scc1 k_noearly')
        srd(48, OUT, 2 * MiB)
        a('buffer_store_dwordx4 %s, v2, s[48:51], s13 offen%s' % (vq(OUTR), os.environ.get('OUTF', ' sc1')))
        a('s_mov_b32 s15, 1')
        a.label('k_noearly')
    a.wait(lg=0); barrier()
    a('ds_read_b128 %s, v20 offset:%d' % (vq(T0 + 4), L_WM)); a('ds_read_b128 %s, v20 offset:%d' % (vq(T0 + 8), L_WM + 16))
    a('v_min3_u32 v%d, v%d, v%d, v%d' % (T0, T0 + 4, T0 + 5, T0 + 6)); a('v_min3_u32 v%d, v%d, v%d, v%d' % (T0 + 1, T0 + 8, T0 + 9, T0 + 10))
    a('v_min3_u32 v%d, v%d, v%d, v%d' % (T0, T0, T0 + 7, T0 + 11)); a('v_min_u32 v%d, v%d, v%d' % (T0, T0, T0 + 1))
    MS = 48
    for j in range(4): a('v_cmp_ge_u32 %s, v%d, v%d' % (sp(MS + 2 * j), KEY + j, T0))
    for j in range(4): a('s_bcnt1_i32_b64 s%d, %s' % (60 + j, sp(MS + 2 * j)))
    a('s_add_u32 s61, s61, s60'); a('s_add_u32 s62, s62, s61'); a('s_add_u32 s63, s63, s62')
    a('s_lshl_b32 s64, s7, 4')
    a('s_cmp_gt_u32 s63, %d' % (1 if envi('FORCE_SLOW', 0) == 1 else 16)); a('s_cbranch_scc1 k_tk_over')
    for j in range(4):
        a('v_mbcnt_lo_u32_b32 v%d, s%d, 0' % (T0 + 4 + j, MS + 2 * j)); a('v_mbcnt_hi_u32_b32 v%d, s%d, v%d' % (T0 + 4 + j, MS + 1 + 2 * j, T0 + 4 + j))
        if j > 0: a('s_add_u32 s65, s64, s%d' % (60 + j - 1))
        a('v_add_lshl_u32 v%d, v%d, s%d, 2' % (T0 + 4 + j, T0 + 4 + j, 64 if j == 0 else 65))
    for j in range(4):
        a('s_mov_b64 exec, %s' % sp(MS + 2 * j))
        a('ds_write_b32 v%d, v%d offset:%d' % (T0 + 4 + j, KEY + j, L_SEG))
    a('s_mov_b64 exec, -1')
    a('s_cmp_gt_u32 s63, %d' % (1 if envi('FORCE_SLOW', 0) == 2 else 8)); a('s_cbranch_scc0 k_tk_b')
    a('v_mov_b32 v%d, 1' % (T0 + 4)); a('ds_or_b32 v20, v%d offset:%d' % (T0 + 4, L_FLAG))
    a('s_branch k_tk_b')
    a.label('k_tk_over')
    a('v_mov_b32 v%d, 2' % (T0 + 4)); a('ds_or_b32 v20, v%d offset:%d' % (T0 + 4, L_FLAG))
    a.label('k_tk_b')
    a('s_lshl_b32 s64, s7, 6'); a('v_mov_b32 v%d, s64' % (T0 + 1))
    a.wait(lg=0); barrier()
    a('ds_read_b32 v%d, v20 offset:%d' % (T0 + 2, L_FLAG))
    a('ds_read_b32 v%d, v24 offset:%d' % (T0 + 3, L_SEG))
    a('ds_read_b128 %s, v%d offset:%d' % (vq(T0 + 4), T0 + 1, L_SEG)); a('ds_read_b128 %s, v%d offset:%d' % (vq(T0 + 8), T0 + 1, L_SEG + 16))
    a('v_mov_b32 v%d, 0' % (T0 + 12)); a('v_mov_b32 v%d, 0' % (T0 + 13))
    a('v_readfirstlane_b32 s64, v%d' % (T0 + 2))
    a('s_cmp_lg_u32 s64, 0'); a('s_cbranch_scc1 k_tk_med')
    for hh in range(2):
        for e in range(4): a('v_cmp_gt_u32 %s, v%d, v%d' % (sp(MS + 2 * e), T0 + 4 + 4 * hh + e, T0 + 3))
        for e in range(4): a('v_addc_co_u32 v%d, vcc, 0, v%d, %s' % (T0 + 12 + (e & 1), T0 + 12 + (e & 1), sp(MS + 2 * e)))
    a('v_add_u32 v%d, v%d, v%d' % (T0 + 12, T0 + 12, T0 + 13))
    a('ds_add_u32 v21, v%d offset:%d' % (T0 + 12, L_RANK))
    a('v_cmp_ne_u32 s[64:65], 0, v%d' % (T0 + 3))
    a.wait(lg=0); barrier()
    a('ds_read_b32 v%d, v21 offset:%d' % (T0 + 12, L_RANK))
    a('v_cmp_gt_u32 vcc, 8, v%d' % (T0 + 12)); a('v_lshlrev_b32 v%d, 2, v%d' % (T0 + 12, T0 + 12))
    a('s_and_b64 exec, vcc, s[64:65]')
    a('ds_write_b32 v%d, v%d offset:%d' % (T0 + 12, T0 + 3, L_SEL))
    a('s_mov_b64 exec, -1')
    a.wait(lg=0)
    a('s_branch k_tk_done')
    a.label('k_tk_med')
    a('s_cmp_gt_u32 s64, 1'); a('s_cbranch_scc1 k_tk_slow')
    a.wait(lg=0)
    CA = 44; RK = 46; SG = 48
    a('ds_read_b32 v%d, v21 offset:%d' % (CA, L_SEG)); a('ds_read_b32 v%d, v21 offset:%d' % (CA + 1, L_SEG + 256))
    a('ds_read_b128 %s, v%d offset:%d' % (vq(SG), T0 + 1, L_SEG + 32)); a('ds_read_b128 %s, v%d offset:%d' % (vq(SG + 4), T0 + 1, L_SEG + 48))
    a('v_mov_b32 v%d, 0' % RK); a('v_mov_b32 v%d, 0' % (RK + 1))
    for r in list(range(T0 + 4, T0 + 12)) + list(range(SG, SG + 8)):
        for c in range(2): a('v_cmp_gt_u32 %s, v%d, v%d' % (sp(MS + 2 * c), r, CA + c))
        for c in range(2): a('v_addc_co_u32 v%d, vcc, 0, v%d, %s' % (RK + c, RK + c, sp(MS + 2 * c)))
    a('ds_add_u32 v21, v%d offset:%d' % (RK, L_RANK)); a('ds_add_u32 v21, v%d offset:%d' % (RK + 1, L_RANK + 256))
    a.wait(lg=0); barrier()
    a('ds_read_b32 v%d, v21 offset:%d' % (RK, L_RANK)); a('ds_read_b32 v%d, v21 offset:%d' % (RK + 1, L_RANK + 256))
    for c in range(2):
        a('v_cmp_gt_u32 vcc, 8, v%d' % (RK + c)); a('v_cmp_ne_u32 s[64:65], 0, v%d' % (CA + c)); a('v_lshlrev_b32 v%d, 2, v%d' % (RK + c, RK + c))
        a('s_and_b64 exec, vcc, s[64:65]')
        a('ds_write_b32 v%d, v%d offset:%d' % (RK + c, CA + c, L_SEL))
        a('s_mov_b64 exec, -1')
    a.wait(lg=0)
    a('s_branch k_tk_done')
    a.label('k_tk_slow')
    a.wait(lg=0)
    for j in range(4): a('v_cmp_ge_u32 %s, v%d, v%d' % (sp(MS + 2 * j), KEY + j, T0))
    a('v_mov_b32 v%d, s63' % (T0 + 1))
    a('s_mov_b64 exec, 1')
    a('ds_add_rtn_u32 v%d, v20, v%d offset:%d' % (T0 + 3, T0 + 1, L_CNT))
    a('s_mov_b64 exec, -1')
    a('v_readfirstlane_b32 s64, v%d' % (T0 + 3))
    for j in range(4):
        a('v_mbcnt_lo_u32_b32 v%d, s%d, 0' % (T0 + 4 + j, MS + 2 * j)); a('v_mbcnt_hi_u32_b32 v%d, s%d, v%d' % (T0 + 4 + j, MS + 1 + 2 * j, T0 + 4 + j))
        if j > 0: a('s_add_u32 s65, s64, s%d' % (60 + j - 1))
        a('v_add_lshl_u32 v%d, v%d, s%d, 2' % (T0 + 4 + j, T0 + 4 + j, 64 if j == 0 else 65))
        a('s_mov_b64 exec, %s' % sp(MS + 2 * j))
        a('ds_write_b32 v%d, v%d offset:%d' % (T0 + 4 + j, KEY + j, L_LIST))
        a('s_mov_b64 exec, -1')
    a.wait(lg=0); barrier()
    a('ds_read_b32 v%d, v20 offset:%d' % (T0, L_CNT))
    a('v_readfirstlane_b32 s60, v%d' % T0)
    a('s_mov_b32 s61, 0')
    a.label('k_tk_chunk')
    a('v_add_u32 v%d, s61, v0' % (T0 + 1)); a('v_lshlrev_b32 v%d, 2, v%d' % (T0 + 3, T0 + 1))
    a('ds_read_b32 v%d, v%d offset:%d' % (T0, T0 + 3, L_LIST))
    a('v_mov_b32 v%d, 0' % (T0 + 3)); a('s_mov_b32 s62, 0'); a('v_mov_b32 v%d, 0' % (T0 + 2))
    a.label('k_tk_scan')
    a('ds_read_b128 %s, v%d offset:%d' % (vq(T0 + 4), T0 + 2, L_LIST))
    a('s_sub_u32 s63, s60, s62')
    for e in range(4):
        a('v_cmp_gt_u32 vcc, v%d, v%d' % (T0 + 4 + e, T0))
        a('s_cmp_gt_u32 s63, %d' % e); a('s_cselect_b64 vcc, vcc, 0')
        a('v_addc_co_u32 v%d, vcc, 0, v%d, vcc' % (T0 + 3, T0 + 3))
    a('v_add_u32 v%d, 16, v%d' % (T0 + 2, T0 + 2))
    a('s_add_u32 s62, s62, 4'); a('s_cmp_lt_u32 s62, s60'); a('s_cbranch_scc1 k_tk_scan')
    a('v_cmp_gt_u32 vcc, s60, v%d' % (T0 + 1)); a('v_cmp_gt_u32 s[64:65], 8, v%d' % (T0 + 3)); a('s_and_b64 vcc, vcc, s[64:65]')
    a('v_lshlrev_b32 v%d, 2, v%d' % (T0 + 3, T0 + 3))
    a('s_mov_b64 exec, vcc')
    a('ds_write_b32 v%d, v%d offset:%d' % (T0 + 3, T0, L_SEL))
    a('s_mov_b64 exec, -1')
    a('s_add_u32 s61, s61, 512'); a('s_cmp_lt_u32 s61, s60'); a('s_cbranch_scc1 k_tk_chunk')
    a.wait(lg=0); barrier()
    a.label('k_tk_done')
    stamp(14)
    a('ds_read_b32 v7, v5 offset:%d' % L_SEL)
    a('ds_read_b32 v9, v3 offset:%d' % L_SEL)
    a('v_not_b32 v8, v7'); a('v_and_b32 v8, 0x7ff, v8')
    a('v_and_b32 v10, 0x7f8, v8'); a('v_lshlrev_b32 v10, 8, v10'); a('v_add_u32 v10, %d, v10' % (SM_SPEC - SM_X1))
    a('v_xor_b32 v9, v9, v7'); a('v_and_b32 v9, 0x7f8, v9'); a('v_cmp_eq_u32 vcc, 0, v9')
    a('v_lshlrev_b32 v8, 10, v8')
    a('s_andn2_b32 s62, vcc_lo, 0xff'); a('s_or_b32 s62, s62, vcc_hi')
    a('s_cmp_eq_u32 s62, %d' % (12345 if envi('FORCE_XSEL', 0) else 0)); a('s_cselect_b64 s[62:63], -1, 0')
    a('v_cndmask_b32 v10, v23, v10, s[62:63]')
    def own_row_store(tag):
        a('s_or_b32 s61, s60, s15'); a('s_cbranch_scc1 k_own_%s' % tag)
        a('buffer_store_dwordx4 %s, v2, s[48:51], s13 offen%s' % (vq(OUTR), os.environ.get('OUTF', ' sc1')))
        a.label('k_own_%s' % tag)
    def after_sel(tag):
        a('v_cmp_eq_u32 vcc, s14, v7'); a('s_and_b32 s60, vcc_lo, 0xff')
        srd(48, OUT, 2 * MiB)
        a('s_andn2_b32 s63, s60, s62')
        a('s_cmp_eq_u32 s63, 0'); a('s_cbranch_scc1 k_nosel%s' % tag)
        a('s_ff1_i32_b32 s61, s60'); a('s_lshl_b32 s61, s61, 11'); a('s_add_u32 s61, s61, %d' % (WS_SM + SM_X1))
        a('buffer_store_dwordx4 %s, v2, s[56:59], s61 offen sc1' % vq(H2P))
        a('buffer_store_dwordx4 %s, v2, s[56:59], s61 offen offset:1024 sc1' % vq(X1P))
        a.label('k_nosel%s' % tag)
    a('s_cmp_ge_u32 s5, 28'); a('s_cbranch_scc1 k_ffn2')
    st1 = a.save()
    a('v_lshl_add_u32 v9, v6, 4, v10')
    xl = ['buffer_load_dwordx4 v[12:15], v9, s[56:59], s10 offen sc1', 'buffer_load_dwordx4 v[16:19], v9, s[56:59], s10 offen offset:64 sc1']
    a('s_mov_b32 exec_lo, 0x00ff00ff'); a('s_mov_b32 exec_hi, 0x00ff00ff')
    for l in xl: a(l)
    a('s_mov_b64 exec, -1')
    after_sel('a')
    a('s_lshl_b32 s61, s2, 4'); a('s_add_u32 s61, s61, s7'); a('s_cmp_lg_u32 s61, 1'); a('s_cbranch_scc1 k_norst')
    srd(52, DBG, 256)
    a('v_mov_b32 v20, 0'); a('v_mov_b32 v21, 0'); a('s_mov_b64 exec, 1')
    a('buffer_store_dwordx2 v[20:21], v20, s[52:55], 0 offen sc1')
    a.label('k_norst')
    a('s_mov_b32 exec_lo, 0x00ff00ff'); a('s_mov_b32 exec_hi, 0x00ff00ff'); a('s_mov_b32 s64, 0')
    a.label('k_xp')
    a.wait(vm=0)
    bad_sent(list(range(12, 20)), 36)()
    a('s_add_u32 s64, s64, 1'); a('s_and_b64 exec, exec, vcc'); a('s_cbranch_execz k_xp_done')
    for l in xl: a(l)
    a('s_cmp_lt_u32 s64, %d' % SPIN_LIMIT); a('s_cbranch_scc1 k_xp')
    a.wait(vm=0)
    a.label('k_xp_done')
    a('s_mov_b64 exec, -1')
    tstamp(1)
    a('v_mfma_f32_16x16x32_bf16 v[32:35], v[72:75], v[12:15], 0')
    a('v_mfma_f32_16x16x32_bf16 v[32:35], v[76:79], v[16:19], v[32:35]')
    a('v_lshlrev_b32 v36, 4, v0')
    own_row_store('a')
    a.nop(5)
    a('ds_write_b128 v36, v[32:35] offset:%d' % L_P)
    a.wait(lg=0); barrier()
    a('s_cmp_lg_u32 s7, 0'); a('s_cbranch_scc1 k_end')
    for w in range(8): a('ds_read_b128 %s, v36 offset:%d' % (vq(40 + 4 * w), L_P + 1024 * w))
    a('s_mov_b32 s64, 0x%x' % (LOG2E | 0x80000000))
    a('s_mul_i32 s65, s4, 28'); a('s_add_u32 s65, s65, s5'); a('s_lshl_b32 s65, s65, 7'); a('s_add_u32 s65, s65, %d' % (WS_SM + SM_ACT))
    a('v_and_b32 v81, 15, v1'); a('v_lshlrev_b32 v82, 4, v81'); a('v_lshl_add_u32 v80, v6, 3, v82')
    for st in (16, 8, 4):
        for i in range(0, st, 2): pk('add', 40 + i, 40 + i, vp(40 + i + st))
    for i in range(4): rb(40 + i, 40 + i)
    for i in range(4): a('v_mov_b32 v%d, v%d' % (44 + i, 40 + i))
    silu_like(52, 40, 4, 64)
    for i in range(4): a('v_permlane32_swap_b32 v%d, v%d' % (44 + i, 48 + i))
    for i in range(4): a('v_mul_f32 v%d, v%d, v%d' % (52 + i, 52 + i, 48 + i))
    a('v_cvt_pk_bf16_f32 v56, v52, v53'); a('v_cvt_pk_bf16_f32 v57, v54, v55')
    a('v_min_u32 v56, -2, v56'); a('v_min_u32 v57, -2, v57')
    a('s_mov_b32 exec_lo, 0x00ff00ff'); a('s_mov_b32 exec_hi, 0')
    a('buffer_store_dwordx2 v[56:57], v80, s[56:59], s65 offen sc1')
    tstamp(2)
    a('s_branch k_end')
    a.label('k_ffn2'); a.load(st1)
    after_sel('b')
    own_row_store('b')
    a('s_lshl_b32 s8, s4, 2'); a('s_add_u32 s8, s8, s5'); a('s_sub_u32 s8, s8, 28')
    a('s_lshl_b32 s9, s8, 5')
    a('s_mul_i32 s64, s7, 7168'); a('s_add_u32 s64, s64, %d' % L_W)
    if WDE < 7 and WSCHED != 'N':
        srd(52, WD_, 1792 * 1024)
        wd_addr(15)
        a('s_mul_i32 s65, s7, %d' % (224 * 1024)); a('s_add_u32 s65, s65, s9'); a('s_add_u32 s65, s65, %d' % (32768 * WDE)); a('s_add_u32 s10, s64, %d' % (1024 * WDE))
        for i in range(WDE, 7):
            a('s_mov_b32 m0, s10'); a('s_add_u32 s10, s10, 1024'); a('buffer_load_dwordx4 v15, s[52:55], s65 offen lds'); a('s_add_u32 s65, s65, 32768')
    a('v_and_b32 v20, 3, v1'); a('v_bfe_u32 v21, v1, 2, 2')
    a('v_lshrrev_b32 v22, 1, v6'); a('v_lshlrev_b32 v22, 9, v22'); a('v_and_b32 v23, 1, v6'); a('v_lshl_add_u32 v22, v23, 7, v22')
    a('v_lshl_add_u32 v22, v21, 5, v22'); a('v_lshl_add_u32 v22, v20, 3, v22')
    a('v_add_u32 v22, s64, v22')
    for i in range(WDE):
        for hh in range(2): a('ds_read_b64_tr_b16 %s, v22 offset:%d' % (vp(64 + 4 * i + 2 * hh), 1024 * i + 256 * hh))
    a('v_lshlrev_b32 v9, 7, v6'); a('v_lshl_add_u32 v9, v4, 4, v9')
    a('s_mul_i32 s11, s7, 3584'); a('s_add_u32 s11, s11, %d' % (WS_SM + SM_ACT))
    a('v_lshl_add_u32 v8, v6, 3, v8')
    a('s_cmp_lg_u32 s7, 0'); a('s_cbranch_scc1 k_f2_act')
    a('v_lshl_add_u32 v10, v6, 3, v10')
    a('s_add_u32 s61, s9, %d' % WS_H2); a('s_add_u32 s62, s9, %d' % (WS_SM + SM_X1))
    a('v_lshlrev_b32 v11, 3, v6'); a('v_add_u32 v11, s9, v11')
    a('ds_read_b64 v[16:17], v11 offset:%d' % (L_MOD + 5 * 1024))
    a('v_and_b32 v30, s3, v7'); a('v_ashrrev_i32 v31, 31, v30'); a('v_not_b32 v31, v31'); a('v_or_b32 v31, 0x80000000, v31'); a('v_xor_b32 v30, v30, v31'); a('v_and_b32 v30, s3, v30')
    a('s_mov_b32 s64, 0x%x' % (LOG2E | 0x80000000))
    silu_like(31, 30, 1, 64, mulx=False)
    unpack(92, 16, 2)
    poll(['buffer_load_dwordx2 v[12:13], v10, s[56:59], s62 offen sc1' if OWNER else 'buffer_load_dwordx2 v[12:13], v8, s[56:59], s61 offen sc1',
          'buffer_load_dwordx2 v[14:15], v10, s[56:59], s62 offen offset:1024 sc1'], bad_sent([12, 13, 14, 15], 29))
    unpack(96, 12, 4)
    a.label('k_f2_act')
    a.wait(vm=0, lg=0)
    tstamp(3)
    for i in range(WDE, 7):
        for hh in range(2): a('ds_read_b64_tr_b16 %s, v22 offset:%d' % (vp(64 + 4 * i + 2 * hh), 1024 * i + 256 * hh))
    ppoll('A', lambda B: ['buffer_load_dwordx4 %s, v9, s[56:59], s11 offen offset:%d sc1' % (vq(B + 4 * i), 512 * i) for i in range(7)],
          lambda B: bad_sent(list(range(B, B + 28)), 29)(), 28, 32, [112, 140], exec_mask=0x00ff00ff)
    tstamp(4)
    if STAMP and TAILST: a('s_mov_b32 s%d, s64' % (SST + 12))
    for i in range(7):
        a('v_mfma_f32_16x16x32_bf16 v[24:27], %s, %s, %s' % (vq(64 + 4 * i), vq(32 + 4 * i), '0' if i == 0 else 'v[24:27]'))
    a('v_lshlrev_b32 v28, 4, v0')
    a('ds_write_b128 v28, v[24:27] offset:%d' % L_P)
    a.wait(lg=0); barrier()
    a('s_cmp_lg_u32 s7, 0'); a('s_cbranch_scc1 k_end')
    for w in range(8): a('ds_read_b128 %s, v28 offset:%d' % (vq(40 + 4 * w), L_P + 1024 * w))
    for st in (16, 8, 4):
        for i in range(0, st, 2): pk('add', 40 + i, 40 + i, vp(40 + i + st))
    for i in range(4): rb(40 + i, 40 + i)
    for i in range(4): a('v_mul_f32 v%d, v%d, v31' % (40 + i, 40 + i))
    for i in range(4): rb(40 + i, 40 + i)
    for i in (0, 2): pk('add', 40 + i, 40 + i, vp(96 + i))
    for i in range(4): rb(40 + i, 40 + i)
    for i in (0, 2): pk('mul', 40 + i, 40 + i, vp(92 + i))
    for i in range(4): rb(40 + i, 40 + i)
    for i in (0, 2): pk('add', 40 + i, 40 + i, vp(100 + i))
    a('v_cvt_pk_bf16_f32 v44, v40, v41'); a('v_cvt_pk_bf16_f32 v45, v42, v43')
    a('s_mov_b32 exec_lo, 0x00ff00ff'); a('s_mov_b32 exec_hi, 0x00ff00ff')
    a('buffer_store_dwordx2 v[44:45], v8, s[48:51], s9 offen' + os.environ.get('OUTF2', ' sc1'))
    if DBGSPAN:
        a('s_memrealtime s[64:65]'); a.wait(lg=0)
        a('s_sub_u32 s64, s64, s68'); a('v_mov_b32 v1, s64'); a('s_and_b32 s8, s8, 7'); a('s_lshl_b32 s8, s8, 2'); a('s_add_u32 s8, s8, 8')
        srd(52, DBG, 256)
        a('v_mov_b32 v2, 0'); a('s_mov_b64 exec, 1')
        a('buffer_store_dword v1, v2, s[52:55], s8 offen')
    a.label('k_end')
    if STAMP:
        a('s_memrealtime s[%d:%d]' % (SST + 30, SST + 31))
        a('s_mov_b64 exec, -1')
        a.wait(vm=0, lg=0)
        for i in range(16): a('v_writelane_b32 v2, s%d, %d' % (SST + 2 * i, i))
        a('s_mul_i32 s5, s2, 10'); a('s_add_u32 s5, s5, s7'); a('s_lshl_b32 s5, s5, 6')
        srd(8, WS, MiB, WS_STAMP)
        a('v_and_b32 v1, 63, v0'); a('v_lshlrev_b32 v1, 2, v1')
        a('s_mov_b64 exec, 0xffff')
        a('buffer_store_dword v2, v1, s[8:11], s5 offen')
    a.label('k_exit')
    a('s_endpgm')
    a.label('k_code_end')

def main(outpath):
    hdr = open('cdna_kernels/%s.s.ref' % NAME).read().split('\n')
    out = [l for l in hdr if l.startswith(';') and '@launch' not in l]
    out.append('; @launch grid=(256,1,1) block=(640,1,1) lds=%d' % LDS_SIZE)
    out.append('.amdgcn_target "amdgcn-amd-amdhsa--gfx950"'); out.append('.text')
    gen()
    body = a.text()
    m = max([int(x) for x in re.findall(r'\bv(\d+)\b', body)] + [int(x) for x in re.findall(r'\bv\[\d+:(\d+)\]', body)])
    vg = (m + 1 + 7) // 8 * 8
    assert vg <= 168
    out.append(body)
    out.append('.section .rodata,"a"')
    out.append('.p2align 6')
    out.append('.amdhsa_kernel %s' % KN)
    out.append('  .amdhsa_next_free_vgpr %d' % vg); out.append('  .amdhsa_next_free_sgpr 102'); out.append('  .amdhsa_accum_offset %d' % vg)
    out.append('  .amdhsa_group_segment_fixed_size 0'); out.append('  .amdhsa_kernarg_size 128')
    out.append('  .amdhsa_user_sgpr_count 2'); out.append('  .amdhsa_user_sgpr_kernarg_segment_ptr 1'); out.append('  .amdhsa_system_sgpr_workgroup_id_x 1')
    out.append('  .amdhsa_float_denorm_mode_32 3')
    out.append('.end_amdhsa_kernel')
    open(outpath, 'w').write('\n'.join(out) + '\n')
    print('wrote', outpath, 'vgprs', m + 1, 'nops', a.nops_inserted, 'LDS', LDS_SIZE)

if __name__ == '__main__':
    main(sys.argv[1] if len(sys.argv) > 1 else 'cdna_kernels/%s.s' % NAME)
```

```python
import re

def split_ops(s):
    out, depth, cur = [], 0, ''
    for ch in s:
        if ch in '[(':
            depth += 1
        elif ch in '])':
            depth -= 1
        if ch == ',' and depth == 0:
            out.append(cur.strip()); cur = ''
        else:
            cur += ch
    if cur.strip():
        out.append(cur.strip())
    return out

_reg_re = re.compile(r'^(-|\|)?(abs\()?([vsa])(\d+|\[(\d+):(\d+)\])')
def regs_of(tok):
    t = tok.split()[0] if tok.split() else ''
    t = t.lstrip('-').strip('|')
    if t.startswith('abs('):
        t = t[4:].rstrip(')')
    if t in ('vcc',): return [('s', 'vcc_lo'), ('s', 'vcc_hi')]
    if t in ('vcc_lo', 'vcc_hi', 'exec_lo', 'exec_hi', 'm0'): return [('s', t)]
    if t == 'exec': return [('s', 'exec_lo'), ('s', 'exec_hi')]
    m = re.match(r'^([vsa])(\d+)$', t)
    if m: return [(m.group(1), int(m.group(2)))]
    m = re.match(r'^([vsa])\[(\d+):(\d+)\]$', t)
    if m: return [(m.group(1), i) for i in range(int(m.group(2)), int(m.group(3)) + 1)]
    return []

TRANS = ('v_exp_f32', 'v_log_f32', 'v_rcp_f32', 'v_rsq_f32', 'v_sqrt_f32', 'v_sin_f32', 'v_cos_f32', 'v_rcp_iflag_f32')
NODST_S = ('s_cmp', 's_waitcnt', 's_barrier', 's_branch', 's_cbranch', 's_nop', 's_setprio', 's_sleep', 's_endpgm', 's_bitcmp', 's_setreg', 's_sendmsg')
EXEC = [('s', 'exec_lo'), ('s', 'exec_hi')]
VCC = [('s', 'vcc_lo'), ('s', 'vcc_hi')]

class Ins:
    __slots__ = ('mn', 'text', 'wr', 'rd', 'kind', 'slot', 'srcC', 'srcAB', 'passes', 'dpp_src', 'lanesel', 'data', 'wide', 'sconst', 'opsel')

def parse(text):
    text = text.strip()
    sp = text.split(None, 1)
    mn = sp[0]; rest = sp[1] if len(sp) > 1 else ''
    ops = split_ops(rest)
    I = Ins(); I.mn = mn; I.text = text; I.wr = []; I.rd = []; I.srcC = []; I.srcAB = []; I.passes = 0
    I.dpp_src = []; I.lanesel = []; I.data = []; I.wide = False; I.sconst = []; I.opsel = False
    R = [regs_of(o) for o in ops]
    last = ops[-1] if ops else ''
    if mn.startswith('v_mfma'):
        I.kind = 'mfma'; I.wr = R[0]; I.srcAB = R[1] + R[2]; I.srcC = R[3]; I.rd = I.srcAB + I.srcC
        I.passes = 4 if '16x16x32' in mn else 8 if '32x32x16' in mn else 16
    elif mn.startswith('v_'):
        I.kind = 'trans' if re.sub(r'_(e32|e64|dpp|sdwa)$', '', mn) in TRANS else 'valu'
        base = mn
        if mn.startswith('v_cmp'):
            I.wr = list(R[0]); I.rd = sum(R[1:], [])
            if mn.startswith('v_cmpx'): I.wr += EXEC
        elif mn.startswith('v_readlane') or mn.startswith('v_readfirstlane'):
            I.kind = 'readlane'; I.wr = R[0]; I.rd = sum(R[1:], [])
            if len(R) > 2: I.lanesel = R[2]
        elif mn.startswith('v_writelane'):
            I.kind = 'writelane'; I.wr = R[0]; I.rd = R[0] + sum(R[1:], []); I.lanesel = R[2]
        elif re.match(r'v_(add|sub|subrev|addc|subb|subbrev)_co_', mn) or mn.startswith('v_div_scale') or mn.startswith('v_mad_u64'):
            I.wr = R[0] + R[1]; I.rd = sum(R[2:], [])
        elif mn.startswith('v_permlane') and 'swap' in mn:
            I.kind = 'permlane'; I.wr = R[0] + R[1]; I.rd = R[0] + R[1]
        elif mn == 'v_nop':
            pass
        else:
            I.wr = R[0]; I.rd = sum(R[1:], [])
            if re.match(r'v_(fmac|mac|dot2c|pk_fmac)', mn): I.rd = I.rd + R[0]
        if '_dpp' in mn or re.search(r'\b(row_shr|row_shl|row_ror|quad_perm|row_bcast|row_mirror|row_half_mirror|wave_sh|wave_ro|row_newbcast)', rest):
            I.dpp_src = R[1]; I.rd = I.rd + R[0]
        if '_sdwa' in mn and 'dst_sel:DWORD' not in rest: I.opsel = True; I.rd = I.rd + R[0]
        if I.kind in ('valu', 'trans', 'permlane', 'writelane'):
            I.sconst = [r for r in I.rd if r[0] == 's' and r not in I.lanesel]
    elif mn.startswith('ds_'):
        I.kind = 'ds'
        if re.match(r'ds_(read|bpermute|permute|swizzle)', mn) or '_rtn' in mn:
            I.wr = R[0]; I.rd = sum(R[1:], [])
            if 'd16' in mn: I.rd = I.rd + R[0]
        else:
            I.rd = sum(R, [])
    elif mn.startswith('buffer_') or mn.startswith('global_') or mn.startswith('flat_'):
        I.kind = 'vmem'
        islds = bool(re.search(r'\blds\b', last)) or '_lds_' in mn
        if islds:
            I.rd = sum(R, []) + [('s', 'm0')]; I.kind = 'vmem_lds'
        elif '_load' in mn:
            I.wr = R[0]; I.rd = sum(R[1:], [])
            if 'd16' in mn: I.rd = I.rd + R[0]
        elif '_atomic' in mn:
            if mn.startswith('buffer_'):
                I.rd = sum(R, [])
                if re.search(r'\bsc0\b', last): I.wr = R[0]
            else:
                if re.search(r'\bsc0\b', last): I.wr = R[0]; I.rd = sum(R[1:], [])
                else: I.rd = sum(R, [])
        elif '_store' in mn:
            I.rd = sum(R, [])
            I.data = R[0] if mn.startswith('buffer_') else R[1]
            I.wide = ('x3' in mn or 'x4' in mn)
        else:
            I.rd = sum(R, [])
    elif mn.startswith('s_load') or mn.startswith('s_buffer_load') or mn.startswith('s_memtime') or mn.startswith('s_memrealtime'):
        I.kind = 'smem'; I.wr = R[0]; I.rd = sum(R[1:], [])
    elif mn.startswith('s_'):
        I.kind = 'salu'
        if any(mn.startswith(p) for p in NODST_S):
            I.rd = sum(R, [])
            if mn.startswith('s_cbranch_vcc'): I.rd = VCC
            if mn.startswith('s_cbranch_exec'): I.rd = EXEC
        else:
            I.wr = R[0]; I.rd = sum(R[1:], [])
            if 'saveexec' in mn: I.wr = I.wr + EXEC; I.rd = I.rd + EXEC
            if re.match(r's_(addk|mulk|bitset|cmov)', mn): I.rd = I.rd + R[0]
    else:
        raise ValueError('unknown instr ' + text)
    return I

def inter(a, b):
    if not a or not b: return False
    sb = set(b)
    return any(x in sb for x in a)

class Asm:
    def __init__(self):
        self.lines = []
        self.hist = []
        self.slot = 0
        self.vm = []
        self.lg = []
        self.nops_inserted = 0
        self.auto_wait = True
    def raw(self, s):
        self.lines.append(s)
    def comment(self, s):
        self.lines.append('    ; ' + s)
    def reset(self):
        self.hist = []; self.vm = []; self.lg = []
    def save(self):
        return (list(self.hist), self.slot, [list(x) for x in self.vm], list(self.lg))
    def load(self, st):
        self.hist = list(st[0]); self.slot = st[1]; self.vm = [list(x) for x in st[2]]; self.lg = list(st[3])
    def cold_begin(self):
        self._hot = self.lines; self._st = self.save(); self.lines = []
    def cold_end(self):
        self.cold = getattr(self, 'cold', []) + self.lines
        self.lines = self._hot; self.load(self._st)
    def cold_flush(self):
        self.lines += getattr(self, 'cold', []); self.cold = []
    def label(self, name):
        self.lines.append(name + ':')
    def _need(self, I):
        need = 0
        isvalu = lambda k: k in ('valu', 'trans', 'readlane', 'writelane', 'permlane')
        for P in self.hist:
            d = self.slot - P.slot - 1
            w = 0
            pv = isvalu(P.kind)
            if pv:
                pw_v = [r for r in P.wr if r[0] in 'va']
                pw_s = [r for r in P.wr if r[0] == 's']
                if I.dpp_src and inter(pw_v, I.dpp_src): w = max(w, 2)
                if I.dpp_src and inter(pw_s, EXEC): w = max(w, 5)
                if I.kind == 'readlane' and inter(pw_v, I.rd): w = max(w, 1)
                if I.kind == 'permlane' and inter(pw_v, I.rd): w = max(w, 2)
                if I.kind == 'mfma' and inter(pw_v, I.rd): w = max(w, 2)
                if I.kind == 'mfma' and inter(pw_s, EXEC): w = max(w, 4)
                if I.kind in ('readlane', 'writelane', 'permlane') and inter(pw_s, EXEC): w = max(w, 4)
                if pw_s:
                    if I.sconst and inter(pw_s, I.sconst): w = max(w, 2)
                    if I.lanesel and inter(pw_s, I.lanesel): w = max(w, 4)
                    if I.kind in ('vmem', 'vmem_lds') and inter(pw_s, I.rd): w = max(w, 5)
                    if I.kind in ('salu', 'smem') and inter(pw_s, I.rd): w = max(w, 1 if not I.mn.startswith('s_cbranch') else 5)
                if P.kind == 'trans' and isvalu(I.kind) and I.kind != 'trans' and inter(pw_v, I.rd): w = max(w, 1)
                if P.kind == 'trans' and I.kind == 'trans' and inter(pw_v, I.rd): w = max(w, 1)
                if P.opsel and isvalu(I.kind) and (inter(pw_v, I.rd) or inter(pw_v, I.wr)): w = max(w, 1)
            if P.kind == 'mfma':
                tab_c = {4: 6, 8: 10, 16: 18}; tab_o = {4: 8, 8: 12, 16: 20}; tab_war = {4: 3, 8: 7, 16: 15}
                if I.kind == 'mfma':
                    if inter(P.wr, I.srcAB): w = max(w, tab_o[P.passes])
                    if inter(P.wr, I.srcC) and not (P.wr == I.srcC and P.passes == I.passes): w = max(w, tab_c[P.passes])
                    if inter(P.wr, I.wr) and not (P.wr == I.srcC): w = max(w, tab_c[P.passes])
                else:
                    if inter(P.wr, I.rd) or inter(P.wr, I.wr): w = max(w, tab_o[P.passes])
                    if (isvalu(I.kind) or I.kind in ('ds', 'vmem')) and inter(P.srcC, I.wr): w = max(w, tab_war[P.passes])
            if P.kind == 'salu' and inter(P.wr, [('s', 'm0')]) and I.kind == 'vmem_lds': w = max(w, 1)
            if P.kind == 'vmem' and P.wide and inter(P.data, I.wr): w = max(w, 2)
            need = max(need, w - d)
        return need
    def _push(self, I, slots=1):
        I.slot = self.slot + slots - 1
        self.slot += slots
        self.hist.append(I)
        while self.hist and self.slot - self.hist[0].slot > 24:
            self.hist.pop(0)
    def nop(self, n):
        while n > 0:
            k = min(n, 16)
            self.lines.append('    s_nop %d' % (k - 1))
            J = parse('s_nop %d' % (k - 1)); self._push(J, k)
            n -= k
    def wait(self, vm=None, lg=None):
        parts = []
        if vm is not None:
            vm = min(vm, 63)
            parts.append('vmcnt(%d)' % vm)
            while len(self.vm) > vm: self.vm.pop(0)
        if lg is not None:
            lg = min(lg, 15)
            parts.append('lgkmcnt(%d)' % lg)
            while len(self.lg) > lg: self.lg.pop(0)
        t = 's_waitcnt ' + ' '.join(parts)
        self.lines.append('    ' + t)
        self._push(parse(t))
    def __call__(self, text):
        for t in text.strip().split('\n'):
            t = t.split(';')[0].strip()
            if t: self.emit(t)
    def emit(self, text):
        I = parse(text)
        if self.auto_wait:
            touched = I.rd + I.wr
            vmn = None; lgn = None
            for i, regs in enumerate(self.vm):
                if inter(regs, touched): vmn = len(self.vm) - 1 - i
            anysm = any(sm for _, sm in self.lg)
            for i, (regs, sm) in enumerate(self.lg):
                if inter(regs, touched): lgn = 0 if anysm else len(self.lg) - 1 - i
            if vmn is not None or lgn is not None:
                self.wait(vmn, lgn)
        n = self._need(I)
        if n > 0:
            self.nops_inserted += n
            self.nop(n)
        self.lines.append('    ' + text)
        self._push(I)
        if I.kind in ('vmem', 'vmem_lds'): self.vm.append(list(I.wr))
        if I.kind == 'ds': self.lg.append((list(I.wr), False))
        if I.kind == 'smem': self.lg.append((list(I.wr), True))
        if I.mn == 's_waitcnt': raise ValueError('use wait()')
    def text(self):
        return '\n'.join(self.lines) + '\n'
```

```python
import sys, os, re
from asmlib import Asm

NAME = 'adaLN_cond__ssm_conv_h3__moe_arch_mod__prompt'
KN = NAME + '_kernel'
MiB = 1 << 20
WS_U = 0
WS_Z = 4 * MiB
WS_H2 = 6 * MiB
WS_SM = 8 * MiB
SM_MOD = 0
SM_KEY = 32768
SM_ACT = 65536
SM_X1 = 98304
SM_SPEC = 131072
WS_SIZE = 9 * MiB
WS_STAMP = 14 * MiB
STAMP = int(os.environ.get('STAMP', '0'))
SPIN_LIMIT = 1 << 14
DBGSPAN = int(os.environ.get('DBGSPAN', '0'))
PACE = int(os.environ.get('PACE', '1'))
PRIO = int(os.environ.get('PRIO', '1'))
WSCHED = os.environ.get('WSCHED', 'F')
NT = ' nt' if int(os.environ.get('NT', '0')) else ''
NTW = ' nt' if int(os.environ.get('NTW', '0')) else ''
WSOFF = int(os.environ.get('WSOFF', '240')) * MiB
OWNER = int(os.environ.get('OWNER', '1'))
LOG2E = 0x3fb8aa3b
a = Asm()
SST = 70
SPEC = int(os.environ.get('SPEC', '1'))
UWIN = 2048; UDELTA = 400; UTRIES = int(os.environ.get('UTRIES', '20'))
FLO, FHI = 28, 29
TAILST = int(os.environ.get('TAILST', '0'))
def tstamp(i):
    if STAMP and TAILST: a('s_memrealtime s[%d:%d]' % (SST + 2 * i, SST + 1 + 2 * i))
def stamp(i):
    if TAILST and 1 <= i <= 6: return
    if STAMP: a('s_memrealtime s[%d:%d]' % (SST + 2 * i, SST + 1 + 2 * i))
def srd(s, ptr, size, add=0):
    if add:
        a('s_add_u32 s%d, s%d, 0x%x' % (s, ptr, add)); a('s_addc_u32 s%d, s%d, 0' % (s + 1, ptr + 1))
    else:
        a('s_mov_b32 s%d, s%d' % (s, ptr)); a('s_mov_b32 s%d, s%d' % (s + 1, ptr + 1))
    a('s_mov_b32 s%d, 0x%x' % (s + 2, size)); a('s_mov_b32 s%d, 0x00020000' % (s + 3))
MASK = 3
def lo(d, s): a('v_lshlrev_b32 v%d, 16, v%d' % (d, s))
def hi(d, s): a('v_and_b32 v%d, s%d, v%d' % (d, MASK, s))
def rb(d, s): a('v_cvt_pk_bf16_f32 v%d, 0, v%d' % (d, s))
def pk(op, d, x, y, extra=''): a('v_pk_%s_f32 v[%d:%d], v[%d:%d], %s %s' % (op, d, d + 1, x, x + 1, y, extra))
def vp(r): return 'v[%d:%d]' % (r, r + 1)
def vq(r): return 'v[%d:%d]' % (r, r + 3)
def sp(r): return 's[%d:%d]' % (r, r + 1)
def sq(r): return 's[%d:%d]' % (r, r + 3)
def unpack(d, s, n):
    for i in range(n): lo(d + 2 * i, s + i); hi(d + 2 * i + 1, s + i)
DPPS = ('row_shr:1 row_mask:0xf bank_mask:0xf', 'row_shr:2 row_mask:0xf bank_mask:0xf', 'row_shr:4 row_mask:0xf bank_mask:0xf',
        'row_shr:8 row_mask:0xf bank_mask:0xf', 'row_bcast:15 row_mask:0xa bank_mask:0xf', 'row_bcast:31 row_mask:0xc bank_mask:0xf')
def wave_reduce(op, regs):
    for ctl in DPPS:
        for r in regs: a('%s_dpp v%d, v%d, v%d %s' % (op, r, r, r, ctl))
def silu_like(D, X, n, sneg, mulx=True):
    for i in range(n): a('v_mul_f32 v%d, s%d, v%d' % (D + i, sneg, X + i))
    for i in range(n): a('v_exp_f32 v%d, v%d' % (D + i, D + i))
    for i in range(n): a('v_add_f32 v%d, 1.0, v%d' % (D + i, D + i))
    for i in range(n): a('v_rcp_f32 v%d, v%d' % (D + i, D + i))
    if mulx:
        for i in range(n): a('v_mul_f32 v%d, v%d, v%d' % (D + i, D + i, X + i))
    for i in range(n): rb(D + i, D + i)
def barrier(): a('s_barrier')

L_WM = 0; L_KEYL = 32; L_SEL = 64; L_RANK = 2560; L_SEG = 2048; L_CNT = 640; L_FLAG = 644; L_KVA = 648; L_IMGC = 652; L_UGO = 656; L_UST = 660; L_EP = 664; L_YC = 672; L_MR = 676; L_QD = 680; L_MP = 704
L_WR = 1024; L_NB = 2048; L_XB = L_NB + 8192; L_MOD = L_XB + 8192; L_Y = L_MOD + 6144 + 2048
L_LIST = L_Y; L_P = L_Y + 8192; L_RK = L_Y; L_RV = L_Y + 9216
L_IMG = L_Y + 32768
L_U1 = 0; L_U0 = 4576; L_KA = 9216; L_KB = 13440; L_CB = 17664
assert L_IMG % 256 == 0
L_ZT = L_IMG + L_KA; ZP = 1040
L_W = L_IMG + 2 * L_CB; L_GU = 8256; L_WMT = L_W + 16896; L_SC = L_WMT + 16384
LDS_SIZE = L_W + 57344
Q, KP, VP_, SHK, SSMK, SSMD, WRP = 16, 18, 20, 22, 24, 26, 30
WG_, WU_, WD_, CP, WMOD, OUT, DBG, WS = 32, 34, 36, 38, 40, 42, 44, 46
T0S, T1S = 14, 15

def ln_stats(X, T, sC, sMB, sRI, vS):
    a('v_readfirstlane_b32 s%d, v%d' % (sC, X)); a('v_readfirstlane_b32 s%d, v%d' % (sC + 1, X))
    for i in range(0, 8, 2): pk('add', T + i, X + i, sp(sC), 'neg_lo:[0,1] neg_hi:[0,1]')
    pk('add', vS, T, vp(T + 2)); pk('mul', vS + 2, T, vp(T))
    pk('add', T, T + 4, vp(T + 6))
    a('v_pk_fma_f32 %s, %s, %s, %s' % (vp(vS + 2), vp(T + 2), vp(T + 2), vp(vS + 2)))
    pk('mul', T + 2, T + 4, vp(T + 4))
    pk('add', vS, vS, vp(T))
    a('v_pk_fma_f32 %s, %s, %s, %s' % (vp(T + 2), vp(T + 6), vp(T + 6), vp(T + 2)))
    a('v_add_f32 v%d, v%d, v%d' % (vS, vS, vS + 1))
    pk('add', vS + 2, vS + 2, vp(T + 2))
    a('v_add_f32 v%d, v%d, v%d' % (vS + 1, vS + 2, vS + 3))
    wave_reduce('v_add_f32', [vS, vS + 1])
    a('v_mul_f32 v%d, 0x3b000000, v%d' % (vS, vS)); a('v_mul_f32 v%d, 0x3b000000, v%d' % (vS + 1, vS + 1))
    a('v_fma_f32 v%d, -v%d, v%d, v%d' % (vS + 1, vS, vS, vS + 1))
    a('v_add_f32 v%d, s%d, v%d' % (vS, sC, vS))
    a('v_max_f32 v%d, 0, v%d' % (vS + 1, vS + 1))
    rb(vS, vS); rb(vS + 1, vS + 1)
    a('v_readlane_b32 s%d, v%d, 63' % (sMB, vS)); a('v_readlane_b32 s%d, v%d, 63' % (sMB + 1, vS))
    a('v_add_f32 v%d, 0x3727c5ac, v%d' % (vS + 1, vS + 1)); rb(vS + 1, vS + 1)
    a('v_sqrt_f32 v%d, v%d' % (vS + 1, vS + 1)); rb(vS + 1, vS + 1)
    a('v_rcp_f32 v%d, v%d' % (vS + 1, vS + 1))
    return lambda: (a('v_readlane_b32 s%d, v%d, 63' % (sRI, vS + 1)), a('v_readlane_b32 s%d, v%d, 63' % (sRI + 1, vS + 1)))
def ln_norm(D, X, sMB, sRI, fin):
    for i in range(0, 8, 2): pk('add', D + i, X + i, sp(sMB), 'neg_lo:[0,1] neg_hi:[0,1]')
    for i in range(8): rb(D + i, D + i)
    fin()
    for i in range(0, 8, 2): pk('mul', D + i, D + i, sp(sRI))
def affine(D, C1, SH):
    for i in range(0, 8, 2): pk('mul', D + i, D + i, vp(C1 + i))
    for i in range(8): rb(D + i, D + i)
    for i in range(0, 8, 2): pk('add', D + i, D + i, vp(SH + i))
    for i in range(8): rb(D + i, D + i)

_pl = [0]
def poll(loads, bad, exec_mask=None):
    n = _pl[0]; _pl[0] += 1
    a('s_mov_b32 s64, 0')
    if exec_mask is not None:
        a('s_mov_b32 exec_lo, 0x%x' % exec_mask); a('s_mov_b32 exec_hi, 0x%x' % exec_mask)
    a.label('poll%d' % n)
    for l in loads: a(l)
    a.wait(vm=0)
    bad()
    a('s_add_u32 s64, s64, 1')
    a('s_and_b64 exec, exec, vcc')
    a('s_cbranch_execz poll%d_done' % n)
    a('s_cmp_lt_u32 s64, %d' % SPIN_LIMIT); a('s_cbranch_scc1 poll%d' % n)
    a.label('poll%d_done' % n)
    a('s_mov_b64 exec, -1')
def envi(n, d): return int(os.environ.get(n, str(d)))
def ppoll(name, loadfn, badfn, n, F, sets, exec_mask=None):
    ns = min(envi('P_%s_NS' % name, envi('P_NS', 1)), len(sets)); gap = envi('P_%s_GAP' % name, envi('P_GAP', 2)); pre = envi('P_%s_PRE' % name, envi('P_PRE', 0))
    if pre: a('s_sleep %d' % pre)
    if ns <= 1:
        poll(loadfn(F), lambda: badfn(F), exec_mask); return
    k = _pl[0]; _pl[0] += 1
    nl = len(loadfn(F))
    a('s_mov_b32 s64, 0')
    if exec_mask is not None:
        a('s_mov_b32 exec_lo, 0x%x' % exec_mask); a('s_mov_b32 exec_hi, 0x%x' % exec_mask)
    for j in range(ns - 1):
        for l in loadfn(sets[j]): a(l)
        if gap: a('s_sleep %d' % gap)
    a.label('pp%d' % k)
    for j in range(ns):
        for l in loadfn(sets[(j + ns - 1) % ns]): a(l)
        a.wait(vm=nl * (ns - 1))
        a.vm = [[] for _ in a.vm]
        badfn(sets[j])
        a('s_mov_b64 s[66:67], exec')
        a('s_andn2_b64 exec, exec, vcc')
        for i in range(n): a('v_mov_b32 v%d, v%d' % (F + i, sets[j] + i))
        a('s_and_b64 exec, s[66:67], vcc')
        a('s_cbranch_execz pp%d_done' % k)
        if gap: a('s_sleep %d' % gap)
    a('s_add_u32 s64, s64, 1')
    a('s_cmp_lt_u32 s64, %d' % SPIN_LIMIT); a('s_cbranch_scc1 pp%d' % k)
    a.label('pp%d_done' % k)
    a('s_mov_b64 exec, -1')
    a.vm = [[('v', b + i) for b in sets[:ns] for i in range(n)]]
def bad_sent(regs, tmp):
    def f():
        rs = list(regs); first = True
        while rs:
            if first:
                x = rs[:3]; rs = rs[3:]; first = False
                a('v_max3_u32 v%d, v%d, v%d, v%d' % (tmp, x[0], x[1], x[2]))
            elif len(rs) >= 2:
                a('v_max3_u32 v%d, v%d, v%d, v%d' % (tmp, tmp, rs[0], rs[1])); rs = rs[2:]
            else:
                a('v_max_u32 v%d, v%d, v%d' % (tmp, tmp, rs[0])); rs = rs[1:]
        a('v_cmp_eq_u32 vcc, -1, v%d' % tmp)
    return f

EPR = 28
def epoch_issue(vaddr0, vdst):
    a('buffer_load_dwordx2 %s, v%d, %s, 0 offen sc1' % (vp(vdst), vaddr0, sq(EPR)))
_ep = [0]
def epoch_finish(vaddr0, vdst):
    n = _ep[0]; _ep[0] += 1
    a('s_mov_b32 s64, 0')
    a.label('ep%d' % n)
    a.wait(vm=0)
    a('v_readfirstlane_b32 s%d, v%d' % (T1S, vdst + 1)); a('v_readfirstlane_b32 s%d, v%d' % (T0S, vdst))
    a('s_add_u32 s64, s64, 1')
    a('s_cmp_lg_u32 s%d, 0' % T1S); a('s_cbranch_scc1 ep%d_done' % n)
    a('s_cmp_ge_u32 s64, %d' % SPIN_LIMIT); a('s_cbranch_scc1 ep%d_done' % n)
    epoch_issue(vaddr0, vdst)
    a('s_branch ep%d' % n)
    a.label('ep%d_done' % n)

def ln1_own_row(qreg, X, T, S, vrow):
    unpack(X, qreg, 4)
    a('ds_write_b128 v%d, %s offset:%d' % (vrow, vq(qreg), L_XB))
    fin = ln_stats(X, T, 60 + 6, 62 + 6, 64 + 0, S) if False else ln_stats(X, T, 48, 50, 52, S)
    ln_norm(T, X, 50, 52, fin)
    for i in range(4): a('v_cvt_pk_bf16_f32 v%d, v%d, v%d' % (X + i, T + 2 * i, T + 2 * i + 1))
    a('ds_write_b128 v%d, %s offset:%d' % (vrow, vq(X), L_NB))

def kv_weights(W, WR):
    for c in range(2):
        lo(W + 0 + c, WR + 2 * c); hi(W + 2 + c, WR + 2 * c); lo(W + 4 + c, WR + 2 * c + 1); hi(W + 6 + c, WR + 2 * c + 1)
def kv_compute(KR, VR, W, KF, S, P, O):
    unpack(KF, KR, 8)
    for i in range(5): pk('mul', S + 2 * i, KF + 2 * i, vp(W + 6))
    for r in range(10): rb(S + r, S + r)
    for t in (1, 2, 3):
        for i in range(5): pk('mul', P + 2 * i, KF + 2 * (i + t), vp(W + 2 * (3 - t)))
        for r in range(10): rb(P + r, P + r)
        for r in range(0, 10, 2): pk('add', S + r, S + r, vp(P + r))
        for r in range(10): rb(S + r, S + r)
    unpack(P, VR, 5)
    for r in range(0, 10, 2): pk('mul', S + r, S + r, vp(P + r))
    for c in range(2):
        a('v_cvt_pk_bf16_f32 v%d, v%d, v%d' % (O + 4 * c, S + 8 + c, S + 6 + c))
        a('v_cvt_pk_bf16_f32 v%d, v%d, v%d' % (O + 4 * c + 1, S + 4 + c, S + 2 + c))
        a('v_cvt_pk_bf16_f32 v%d, v%d, 0' % (O + 4 * c + 2, S + c))
def u_poll_build(G, R=56):
    a('v_lshlrev_b32 v%d, 4, v0' % (G + 8))
    a('s_lshl_b32 s8, s6, 14'); a('s_add_u32 s9, s8, 8192')
    a('v_lshlrev_b32 v%d, 3, v0' % (G + 9)); a('v_add_u32 v%d, %d, v%d' % (G + 9, L_IMG, G + 9))
    n = _pl[0]; _pl[0] += 1
    a('s_mov_b32 s64, 0')
    a.label('uf%d' % n)
    a('buffer_load_dwordx4 %s, v%d, %s, s8 offen sc1' % (vq(G), G + 8, sq(R))); a('buffer_load_dwordx4 %s, v%d, %s, s9 offen sc1' % (vq(G + 4), G + 8, sq(R)))
    a.wait(vm=0)
    a('v_subrev_u32 v%d, s%d, v%d' % (G + 10, FLO, G + 3)); a('v_subrev_u32 v%d, s%d, v%d' % (G + 11, FLO, G + 7))
    a('v_xor_b32 v%d, s%d, v%d' % (G + 12, FHI, G + 2)); a('v_xor_b32 v%d, s%d, v%d' % (G + 13, FHI, G + 6))
    a('v_max_u32 v%d, v%d, v%d' % (G + 10, G + 10, G + 11)); a('v_or_b32 v%d, v%d, v%d' % (G + 12, G + 12, G + 13))
    a('v_and_or_b32 v%d, v%d, s3, v%d' % (G + 10, G + 12, G + 10))
    a('v_cmp_le_u32 vcc, %d, v%d' % (UWIN, G + 10))
    a('s_add_u32 s64, s64, 1')
    a('s_and_b64 exec, exec, vcc')
    a('s_cbranch_execz uf%d_done' % n)
    a('s_cmp_lt_u32 s64, %d' % UTRIES); a('s_cbranch_scc1 uf%d' % n)
    a('s_branch uf%d_more' % n)
    a.cold_begin()
    a.label('uf%d_more' % n)
    a('s_mov_b64 exec, -1')
    srd(48, KP, 2 * MiB); srd(52, VP_, 2 * MiB)
    a('v_lshlrev_b32 v56, 12, v0'); a('v_sub_u32 v56, %d, v56' % (2044 * 1024)); a('s_lshl_b32 s64, s6, 2'); a('v_add_u32 v56, s64, v56')
    a('v_subrev_u32 v57, 4096, v56'); a('v_mov_b32 v58, 0x80000000'); a('v_cmp_eq_u32 vcc, 511, v0'); a('v_cndmask_b32 v57, v57, v58, vcc')
    a('s_lshl_b32 s64, s6, 4'); a('v_mov_b32 v58, s64')
    for i in range(8): a('buffer_load_dword v%d, v%d, s[48:51], 0 offen offset:%d' % (104 + i, 57 if i < 4 else 56, 1024 * (i & 3)))
    a('buffer_load_dword v112, v57, s[52:55], 0 offen offset:3072')
    for i in range(4): a('buffer_load_dword v%d, v56, s[52:55], 0 offen offset:%d' % (113 + i, 1024 * i))
    a('global_load_dwordx4 v[120:123], v58, %s' % sp(SHK))
    kv_weights(124, 120)
    kv_compute(104, 112, 124, 60, 80, 92, G)
    a.nop(2)
    a('s_branch uf%d_done' % n)
    a.cold_end()
    a.label('uf%d_done' % n)
    a('s_mov_b64 exec, -1')
    for ch in range(2):
        g = G + 4 * ch
        a('ds_write_b64 v%d, %s offset:%d' % (G + 9, vp(g), L_U1 + L_CB * ch))
        a('v_alignbit_b32 v%d, v%d, v%d, 16' % (G + 10 + 2 * ch, g + 1, g)); a('v_alignbit_b32 v%d, v%d, v%d, 16' % (G + 11 + 2 * ch, g + 2, g + 1))
        a('ds_write_b64 v%d, %s offset:%d' % (G + 9, vp(G + 10 + 2 * ch), L_U0 + L_CB * ch))


_lw = [0]
def lds_wait(addr_v, tmp_v, off, thresh, sleep=1):
    n = _lw[0]; _lw[0] += 1
    a('s_mov_b32 s64, 0')
    a.label('lw%d' % n)
    a('ds_read_b32 v%d, v%d offset:%d' % (tmp_v, addr_v, off))
    a('s_add_u32 s64, s64, 1')
    a.wait(lg=0)
    a('v_readfirstlane_b32 s65, v%d' % tmp_v)
    a('s_cmp_ge_u32 s65, %d' % thresh); a('s_cbranch_scc1 lw%d_ok' % n)
    if sleep: a('s_sleep %d' % sleep)
    a('s_cmp_lt_u32 s64, %d' % (SPIN_LIMIT * 16)); a('s_cbranch_scc1 lw%d' % n)
    a.label('lw%d_ok' % n)
def lds_epoch(addr_v, tmp):
    n = _lw[0]; _lw[0] += 1
    a('s_mov_b32 s64, 0')
    a.label('lw%d' % n)
    a('ds_read_b64 %s, v%d offset:%d' % (vp(tmp), addr_v, L_EP))
    a('s_add_u32 s64, s64, 1')
    a.wait(lg=0)
    a('v_readfirstlane_b32 s%d, v%d' % (T1S, tmp + 1)); a('v_readfirstlane_b32 s%d, v%d' % (T0S, tmp))
    a('s_cmp_lg_u32 s%d, 0' % T1S); a('s_cbranch_scc1 lw%d_ok' % n)
    a('s_cmp_lt_u32 s64, %d' % (SPIN_LIMIT * 16)); a('s_cbranch_scc1 lw%d' % n)
    a.label('lw%d_ok' % n)
def lds_inc(zero_v, one_v, off):
    a('s_mov_b64 exec, 1'); a('ds_add_u32 v%d, v%d offset:%d' % (zero_v, one_v, off)); a('s_mov_b64 exec, -1')

WDE = int(os.environ.get('WDE', '5'))
def wd_addr(V):
    a('v_lshrrev_b32 v%d, 1, v1' % V)
    a('v_and_b32 v%d, 0x13, v%d' % (V + 1, V)); a('v_bfe_u32 v%d, v%d, 2, 1' % (V + 2, V)); a('v_lshl_or_b32 v%d, v%d, 3, v%d' % (V + 1, V + 2, V + 1))
    a('v_bfe_u32 v%d, v%d, 3, 1' % (V + 2, V)); a('v_lshl_or_b32 v%d, v%d, 2, v%d' % (V + 1, V + 2, V + 1))
    a('v_lshlrev_b32 v%d, 10, v%d' % (V, V + 1)); a('v_and_b32 v%d, 1, v1' % (V + 1)); a('v_lshl_add_u32 v%d, v%d, 4, v%d' % (V, V + 1, V))

def gen():
    a.raw('.p2align 8'); a.raw('.globl %s' % KN); a.raw('.type %s,@function' % KN); a.label(KN); a.reset()
    a('s_load_dwordx16 s[16:31], s[0:1], 0')
    a('s_cmp_ge_u32 s2, 256'); a('s_cbranch_scc1 k_exit')
    if STAMP:
        for i in range(16): a('s_mov_b32 s%d, 0' % (SST + 2 * i))
    stamp(0)
    a('v_lshrrev_b32 v1, 6, v0'); a('s_and_b32 s4, s2, 7'); a('v_readfirstlane_b32 s7, v1')
    a('s_lshr_b32 s5, s2, 3')
    a('v_and_b32 v1, 63, v0')
    a('s_cmp_ge_u32 s7, 8'); a('s_cbranch_scc1 k_aux')
    st0 = a.save()
    def common2():
        a('s_mov_b32 s3, 0xffff0000')
        a('s_lshl_b32 s6, s4, 5'); a('s_add_u32 s6, s6, s5')
        a('v_lshlrev_b32 v2, 4, v1')
        a('s_lshl_b32 s12, s6, 3'); a('s_add_u32 s12, s12, s7')
        a('s_lshl_b32 s13, s12, 10')
    a('v_lshrrev_b32 v3, 5, v1'); a('s_lshl_b32 s8, s7, 1'); a('s_add_u32 s8, s8, 2'); a('v_add_u32 v4, s8, v3')
    a('v_xor_b32 v4, v4, v1'); a('v_and_b32 v4, 7, v4'); a('v_lshrrev_b32 v5, 3, v1'); a('v_lshlrev_b32 v5, 10, v5'); a('v_lshl_add_u32 v4, v4, 4, v5')
    a('s_lshl_b32 s8, s5, 16'); a('s_lshl_b32 s9, s4, 7'); a('s_add_u32 s8, s8, s9'); a('s_lshl_b32 s9, s7, 13'); a('s_add_u32 s9, s9, s8')
    a('s_lshl_b32 s10, s7, 10'); a('s_add_u32 s10, s10, %d' % (L_RK + 1024)); a('s_mov_b32 m0, s10'); a('s_add_u32 s10, s10, %d' % (L_RV - L_RK))
    a('s_mov_b32 s50, 0x200000'); a('s_mov_b32 s51, 0x00020000'); a('s_mov_b32 s54, 0x200000'); a('s_mov_b32 s55, 0x00020000')
    a('v_lshrrev_b32 v6, 4, v1'); a('s_lshl_b32 s11, s4, 9'); a('s_lshl_b32 s64, s7, 6'); a('s_add_u32 s11, s11, s64'); a('v_lshl_add_u32 v7, v6, 4, s11')
    a.wait(lg=0)
    a('s_mov_b64 s[48:49], %s' % sp(KP)); a('s_mov_b64 s[52:53], %s' % sp(VP_))
    a('buffer_load_dwordx4 v4, s[48:51], s9 offen lds')
    a('s_memrealtime s[%d:%d]' % (FLO, FHI))
    a('s_mov_b32 m0, s10'); a('s_cmp_ge_u32 s7, 2')
    a('buffer_load_dwordx4 v4, s[52:55], s9 offen lds')
    WR = 36
    a('global_load_dwordx4 %s, v7, %s' % (vq(WR), sp(SHK)))
    a('s_cbranch_scc1 k_nohalo')
    a('v_xor_b32 v4, v3, v1'); a('v_and_b32 v4, 7, v4'); a('v_lshl_add_u32 v4, v4, 4, v5')
    a('s_sub_u32 s8, s8, 8192'); a('s_cmp_eq_u32 s5, 0'); a('s_cselect_b32 s8, 0x80000000, s8')
    a('s_cmp_eq_u32 s7, 0'); a('s_cbranch_scc0 k_halov')
    a('s_mov_b32 m0, %d' % L_RK); a.nop(1)
    a('buffer_load_dwordx4 v4, s[48:51], s8 offen lds')
    a('s_branch k_nohalo')
    a.label('k_halov')
    a('s_mov_b32 m0, %d' % L_RV); a.nop(1)
    a('buffer_load_dwordx4 v4, s[52:55], s8 offen lds')
    a.label('k_nohalo')
    stamp(1)
    a('s_load_dwordx16 s[32:47], s[0:1], 64')
    common2()
    a('s_lshl_b32 s64, s6, 2'); a('s_load_dword s69, %s, s64' % sp(SSMD))
    barrier()
    a('v_and_b32 v8, 15, v1'); a('v_sub_u32 v9, 15, v8')
    a('v_lshlrev_b32 v10, 9, v9'); a('v_lshl_add_u32 v10, v6, 2, v10')
    a('v_add_u32 v11, 1, v9'); a('v_xor_b32 v11, s7, v11'); a('v_and_b32 v11, 7, v11'); a('v_lshl_add_u32 v11, v11, 4, v10'); a('v_add_u32 v11, %d, v11' % (L_RK + 512))
    a('v_add_u32 v12, 2, v9'); a('v_xor_b32 v12, s7, v12'); a('v_and_b32 v12, 7, v12'); a('v_lshl_add_u32 v12, v12, 4, v10'); a('v_add_u32 v12, %d, v12' % (L_RK + 1024))
    a('v_lshlrev_b32 v13, 14, v6'); a('v_lshl_add_u32 v13, v8, 4, v13')
    a('s_lshl_b32 s60, s4, 19'); a('s_lshl_b32 s9, s7, 16'); a('s_add_u32 s60, s60, s9'); a('s_lshl_b32 s9, s5, 8'); a('s_sub_u32 s60, s60, s9'); a('s_add_u32 s60, s60, 7936'); a('s_add_u32 s61, s60, 8192')
    for i in range(4, 7): a('v_mov_b32 v%d, 0' % i)
    a('v_mov_b32 v7, 0'); a('v_mov_b32 v8, 1')
    srd(56, WS, WS_SIZE, WSOFF)
    a('s_and_b32 s8, s7, 1'); a('s_lshr_b32 s9, s7, 1'); a('s_and_b32 s9, s9, 1')
    a('s_mul_i32 s10, s8, %d' % L_CB); a('s_add_u32 s10, s10, %d' % L_IMG)
    a('s_lshl_b32 s11, s6, 1'); a('s_add_u32 s11, s11, s8'); a('s_lshl_b32 s11, s11, 12')
    a('s_lshl_b32 s66, s9, 2'); a('s_add_u32 s66, s66, s11')
    a('s_mul_i32 s67, s9, %d' % (L_KB - L_KA)); a('s_add_u32 s67, s67, s10'); a('s_add_u32 s67, s67, %d' % L_KA)
    a('s_add_u32 s64, s67, 64'); a('s_mov_b32 m0, s64')
    srd(52, SSMK, 2 * MiB)
    a('s_sub_u32 s%d, s%d, %d' % (FLO, FLO, UDELTA)); a('s_lshl_b32 s%d, s%d, 16' % (FHI, FHI)); a('s_or_b32 s%d, s%d, 0x80000000' % (FHI, FHI))
    a.wait(vm=0); stamp(2)
    lds_inc(4, 8, L_KVA)
    a('s_memrealtime s[%d:%d]' % (T0S, T1S))
    W = 44
    kv_weights(W, WR)
    lds_wait(4, 14, L_KVA, 8, sleep=0)
    KR = 16; VR = 24
    for i in range(8): a('ds_read_b32 v%d, v%d offset:%d' % (KR + i, 11 if i < 4 else 12, 128 * (i & 3)))
    a('ds_read_b32 v%d, v11 offset:%d' % (VR, 384 + L_RV - L_RK))
    for i in range(4): a('ds_read_b32 v%d, v12 offset:%d' % (VR + 1 + i, 128 * i + L_RV - L_RK))
    a('s_cmp_lt_u32 s7, 4'); a('s_cbranch_scc1 k_nokdma')
    for i in range(4): a('buffer_load_dwordx4 v2, s[52:55], s66 offen offset:%d lds' % (1024 * i))
    a('buffer_load_dword v9, v4, s[52:55], s11 offen')
    a.label('k_nokdma')
    a.vm = []
    O = 60
    a('s_lshl_b32 s%d, s%d, 16' % (T1S, T1S)); a('s_or_b32 s%d, s%d, 0x80000000' % (T1S, T1S))
    kv_compute(KR, VR, W, 60, 80, 92, 104)
    O = 104
    for c in range(2):
        a('v_mov_b32 v%d, s%d' % (O + 4 * c + 3, T0S)); a('v_or_b32 v%d, s%d, v%d' % (O + 4 * c + 2, T1S, O + 4 * c + 2))
    for c in range(2): a('buffer_store_dwordx4 %s, v13, s[56:59], s%d offen sc1' % (vq(O + 4 * c), 60 + c))
    lds_inc(4, 8, L_UST)
    stamp(3)
    a('s_cmp_ge_u32 s7, 4'); a('s_cbranch_scc1 k_helper')
    st1h = a.save()
    a('s_mul_i32 s11, s9, %d' % L_U0); a('s_add_u32 s11, s11, s10')
    a('v_add_u32 v3, s11, v2')
    a('s_mov_b32 exec_lo, 0x0fffffff'); a('s_mov_b32 exec_hi, 0')
    a('ds_write_b128 v3, v[4:7] offset:4096')
    a('s_mov_b64 exec, -1')
    a('v_and_b32 v10, 15, v1'); a('v_lshrrev_b32 v11, 4, v1'); a('v_lshrrev_b32 v12, 1, v10'); a('v_and_b32 v13, 1, v10')
    a('v_lshlrev_b32 v3, 6, v12'); a('v_lshl_add_u32 v3, v11, 4, v3')
    a('v_mul_u32_u24 v4, %d, v13' % (L_U0 - L_U1)); a('v_add_u32 v3, v3, v4')
    a('s_lshl_b32 s64, s9, 8'); a('s_sub_u32 s65, s10, s64'); a('s_add_u32 s65, s65, %d' % (L_U0 + 283 * 16 - 64 * 59))
    a('v_sub_u32 v3, s65, v3')
    a('v_lshlrev_b32 v4, 3, v12'); a('v_lshlrev_b32 v5, 4, v11'); a('v_sub_u32 v4, v4, v5')
    a('v_mul_u32_u24 v5, %d, v13' % (L_KB + 62 * 8 - L_KA - 63 * 8)); a('v_sub_u32 v4, v4, v5')
    a('s_sub_u32 s65, s10, s64'); a('s_add_u32 s65, s65, %d' % (L_KB + 62 * 8 - 192))
    a('v_add_u32 v4, s65, v4')
    a('v_lshlrev_b32 v5, 8, v11'); a('v_lshl_add_u32 v5, v10, 3, v5')
    a('s_lshl_b32 s64, s8, 1'); a('s_add_u32 s64, s64, s9'); a('s_lshl_b32 s64, s64, 13'); a('s_add_u32 s64, s64, %d' % L_Y)
    a('v_add_u32 v5, s64, v5')
    a('v_mov_b32 v7, 1')
    a.wait(vm=0); stamp(4)
    lds_inc(6, 7, L_UGO)
    if envi('UPRE', 12): a('s_sleep %d' % envi('UPRE', 12))
    u_poll_build(40)
    stamp(5)
    a.wait(lg=0)
    lds_inc(6, 7, L_IMGC)
    lds_wait(6, 8, L_IMGC, 8, sleep=0)
    stamp(6)
    if STAMP and envi('CYC', 0): a('s_memtime s[%d:%d]' % (SST + 2, SST + 3))
    if STAMP: a.wait(lg=0)
    if PRIO: a('s_setprio 2')
    ACC = 8; F0 = 40
    def Areg(buf, al): return F0 + buf * 64 + al * 4
    def Breg(buf, be): return F0 + buf * 64 + 32 + be * 4
    def loadA(buf, rp, al): a('ds_read_b128 %s, v3 offset:%d' % (vq(Areg(buf, al)), 64 * (59 - (rp + 8 * al))))
    def loadB(buf, rp, be):
        o = 64 * (8 * be + 3 - rp)
        if envi('READ2', 0):
            base = 4 if o < 2000 else 2
            oo = (o if o < 2000 else o - 2048) // 8
            a('ds_read2_b64 %s, v%d offset0:%d offset1:%d' % (vq(Breg(buf, be)), base, oo, oo + 1))
        else:
            a('ds_read_b64 %s, v4 offset:%d' % (vp(Breg(buf, be)), o)); a('ds_read_b64 %s, v4 offset:%d' % (vp(Breg(buf, be) + 2), o + 8))
    pairs = []
    for m in range(8):
        for o in range(m + 1):
            for (al, be) in ((m, o), (o, m)) if o != m else ((m, m),):
                if al + be <= 7: pairs.append((al, be))
    loads = []
    for m in range(8): loads.append(('A', m)); loads.append(('B', m))
    def do_load(buf, rp, it): (loadA if it[0] == 'A' else loadB)(buf, rp, it[1])
    def ywrite(tt):
        a('ds_write_b64 v5, %s offset:%d' % (vp(ACC + 4 * tt), 1024 * tt)); a('ds_write_b64 v5, %s offset:%d' % (vp(ACC + 4 * tt + 2), 1024 * tt + 128))
    for it in loads: do_load(0, 0, it)
    first = set()
    for rp in range(4):
        buf = rp & 1
        nxt = list(loads) if rp < 3 else []
        order = pairs if rp < 3 else sorted(pairs, key=lambda x: (x[0] + x[1]))
        lastof = {tt: max(i for i, (x, y) in enumerate(order) if x + y == tt) for tt in range(8)}
        if rp and envi('ONEWAIT', 1): a.wait(lg=0)
        for n, (al, be) in enumerate(order):
            t = al + be
            c = '0' if t not in first else vq(ACC + 4 * t)
            first.add(t)
            a('v_mfma_f32_16x16x32_bf16 %s, %s, %s, %s' % (vq(ACC + 4 * t), vq(Areg(buf, al)), vq(Breg(buf, be)), c))
            if nxt and (n % 2 == 1 if not envi('LDEARLY', 1) else (n >= envi('LDSTART', 0) if rp or 1 else True)) and not (rp == 0 and n < envi('LD0', 12)): do_load(buf ^ 1, rp + 1, nxt.pop(0))
            if rp == 3:
                for tt in range(8):
                    if n == lastof[tt] + 8: ywrite(tt)
        if rp == 3:
            for tt in range(8):
                if lastof[tt] + 8 > 35: ywrite(tt)
    stamp(7)
    if STAMP and envi('CYC', 0):
        a('s_memtime s[%d:%d]' % (SST + 4, SST + 5)); a.wait(lg=0)
        a('s_sub_u32 s%d, s%d, s%d' % (SST + 2, SST + 4, SST + 2)); a('s_add_u32 s%d, s%d, s%d' % (SST + 2, SST + 2, SST)); a('s_mov_b32 s%d, 0' % (SST + 4))
    if PRIO: a('s_setprio 0')
    if envi('READ2', 0): a('v_lshlrev_b32 v2, 4, v1')
    a.wait(lg=0)
    lds_inc(6, 7, L_YC)
    lds_epoch(6, 12)
    a('v_lshrrev_b32 v11, 2, v1'); a('v_lshlrev_b32 v11, 7, v11'); a('v_and_b32 v12, 3, v1'); a('v_lshl_add_u32 v11, v12, 4, v11')
    a('s_lshl_b32 s60, s7, 13'); a('s_add_u32 s60, s60, %d' % (WS_SM + SM_MOD)); a('s_add_u32 s61, s60, 4096')
    for l in ['buffer_load_dwordx4 %s, v11, s[56:59], s%d offen offset:%d sc1' % (vq(80 + 4 * g), 60 if g < 2 else 61, 2048 * (g & 1)) for g in range(4)]: a(l)
    a('s_mul_i32 s9, s7, 1536'); a('v_lshlrev_b32 v12, 3, v1'); a('v_add_u32 v12, s9, v12')
    hot_lines = a.lines; a.lines = []
    a.label('k_helper'); a.load(st1h)
    a('v_add_u32 v3, s67, v2'); a('v_mov_b32 v11, 0')
    a('v_cmp_eq_u32 vcc, 3, v1'); a('s_cmp_eq_u32 s9, 1'); a('s_cselect_b64 s[62:63], vcc, 0')
    a('s_sub_u32 s68, s7, 4')
    a.wait(vm=0); stamp(4)
    a('v_cndmask_b32 v7, v7, v9, s[62:63]')
    a('s_mov_b64 exec, 15')
    a('ds_write_b128 v3, v[4:7]')
    a('s_mov_b64 exec, -1')
    if envi('UPRE', 12): a('s_sleep %d' % envi('UPRE', 12))
    u_poll_build(40)
    stamp(5)
    a.wait(lg=0)
    lds_inc(4, 8, L_IMGC)
    srd(48, Q, 2 * MiB); srd(16, WG_, 512 * 3584); srd(20, WU_, 512 * 3584); srd(24, WD_, 1792 * 1024)
    a('s_lshl_b32 s64, s7, 10'); a('s_add_u32 s64, s64, %d' % L_XB); a('s_mov_b32 m0, s64'); a('s_sub_u32 s64, s64, 4096'); a('s_sub_u32 s67, s13, 4096')
    a('buffer_load_dwordx4 v2, s[48:51], s13 offen lds')
    a('s_mov_b32 m0, s64'); a.nop(1)
    a('buffer_load_dwordx4 v2, s[48:51], s67 offen lds')
    a('s_cmp_ge_u32 s5, 28'); a('s_cbranch_scc1 k_h_wd')
    a('s_mul_i32 s10, s4, 28'); a('s_add_u32 s10, s10, s5'); a('s_lshl_b32 s10, s10, 4'); a('s_mul_i32 s64, s68, %d' % (128 * 3584)); a('s_add_u32 s10, s10, s64')
    a('v_mul_u32_u24 v15, 3584, v1')
    a('s_lshl_b32 s9, s68, 11'); a('s_add_u32 s9, s9, %d' % L_W)
    for i in range(2 if WSCHED != 'N' else 0):
        a('s_mov_b32 m0, s9'); a('s_add_u32 s11, s9, %d' % L_GU); a('buffer_load_dwordx4 v15, s[16:19], s10 offen lds')
        a('s_mov_b32 m0, s11'); a('s_add_u32 s9, s9, 1024'); a('buffer_load_dwordx4 v15, s[20:23], s10 offen lds')
        a('s_add_u32 s10, s10, %d' % (64 * 3584))
    a('s_branch k_h_done')
    a.label('k_h_wd')
    a('s_lshl_b32 s8, s4, 2'); a('s_add_u32 s8, s8, s5'); a('s_sub_u32 s8, s8, 28'); a('s_lshl_b32 s8, s8, 5')
    wd_addr(15)
    a('s_mul_i32 s64, s68, %d' % (448 * 1024)); a('s_add_u32 s8, s8, s64')
    a('s_mul_i32 s9, s68, 14336'); a('s_add_u32 s9, s9, %d' % L_W)
    for hw in range(2 if WSCHED != 'N' else 0):
        for i in range(WDE):
            a('s_mov_b32 m0, s9'); a('s_add_u32 s9, s9, %d' % (1024 if i < WDE - 1 else 1024 * (8 - WDE))); a('buffer_load_dwordx4 v15, s[24:27], s8 offen lds')
            a('s_add_u32 s8, s8, %d' % (32768 if i < WDE - 1 else 32768 * (8 - WDE)))
    a.label('k_h_done')
    stamp(7)
    a.wait(vm=0)
    lds_inc(4, 8, L_QD)
    lds_epoch(4, 12)
    a('s_branch k_epi')
    a.label('k_aux'); a.load(st0)
    a('s_load_dwordx16 s[32:47], s[0:1], 64')
    common2()
    a('s_cmp_eq_u32 s7, 8'); a('s_cbranch_scc1 k_loader')
    st0b = a.save()
    a('s_memrealtime s[8:9]')
    a('v_mov_b32 v4, 0')
    srd(EPR, DBG, 256)
    a('s_mov_b64 exec, 1')
    a('s_cmp_lg_u32 s2, 0'); a('s_cbranch_scc1 k_ep_nopub')
    a('s_lshl_b32 s9, s9, 16'); a('s_or_b32 s9, s9, 0x80000000')
    a('v_mov_b32 v8, s8'); a('v_mov_b32 v9, s9')
    a('buffer_store_dwordx2 v[8:9], v4, %s, 0 offen sc1' % sq(EPR))
    a.label('k_ep_nopub')
    a('s_mov_b64 exec, -1')
    srd(56, WS, WS_SIZE, WSOFF)
    for i in range(4): a('v_mov_b32 v%d, -1' % (8 + i))
    if not envi('FEARLY', 0): barrier()
    if envi('FGATE', 0): lds_wait(4, 24, L_KVA, envi('FGATE', 0))
    if envi('FUGO', 0): lds_wait(4, 24, L_UGO, envi('FUGO', 0))
    if envi('FIMG', 0): lds_wait(4, 24, L_IMGC, envi('FIMG', 0))
    a('s_lshl_b32 s8, s6, 13'); a('s_add_u32 s9, s8, %d' % WS_Z); a('s_add_u32 s10, s9, 4096')
    for sr in (9, 10):
        if sr == 10 and envi('FSPLIT', 0): lds_wait(4, 24, L_UGO, 4)
        for i in range(4): a('buffer_store_dwordx4 v[8:11], v2, s[56:59], s%d offen offset:%d sc1' % (sr, 1024 * i))
    a('s_lshl_b32 s8, s6, 7'); a('s_add_u32 s8, s8, %d' % (WS_SM + SM_KEY))
    a('s_lshl_b32 s9, s2, 7'); a('s_add_u32 s9, s9, %d' % (WS_SM + SM_ACT))
    a('s_mov_b64 exec, 0xff')
    a('buffer_store_dwordx4 v[8:11], v2, s[56:59], s8 offen sc1'); a('buffer_store_dwordx4 v[8:11], v2, s[56:59], s9 offen sc1')
    a('s_mov_b64 exec, -1')
    if SPEC:
        a('s_lshl_b32 s8, s6, 11'); a('s_add_u32 s8, s8, %d' % (WS_SM + SM_SPEC))
        a('buffer_store_dwordx4 v[8:11], v2, s[56:59], s8 offen sc1'); a('buffer_store_dwordx4 v[8:11], v2, s[56:59], s8 offen offset:1024 sc1')
    a('s_cmp_ge_u32 s2, 16'); a('s_cbranch_scc1 k_ld_nox1')
    a('s_lshl_b32 s8, s2, 10'); a('s_add_u32 s8, s8, %d' % (WS_SM + SM_X1))
    a('buffer_store_dwordx4 v[8:11], v2, s[56:59], s8 offen sc1')
    a.label('k_ld_nox1')
    if envi('FEARLY', 0): barrier()
    a('s_mov_b64 exec, 1')
    a('s_mov_b32 s64, 0')
    if envi('EPSLEEP', 0): a('s_sleep %d' % envi('EPSLEEP', 0))
    ED = envi('EPDEPTH', 1); EG = envi('EPGAP', 1)
    for j in range(ED - 1): epoch_issue(4, 72 + 2 * j); a('s_sleep %d' % EG)
    a.label('k_ep')
    for j in range(ED):
        epoch_issue(4, 72 + 2 * ((j + ED - 1) % ED))
        a.wait(vm=ED - 1); a.vm = []
        a('v_readfirstlane_b32 s%d, v%d' % (T1S, 73 + 2 * j)); a('v_readfirstlane_b32 s%d, v%d' % (T0S, 72 + 2 * j))
        a('s_cmp_lg_u32 s%d, 0' % T1S); a('s_cbranch_scc1 k_ep_done')
        if ED > 1: a('s_sleep %d' % EG)
    a('s_add_u32 s64, s64, 1'); a('s_cmp_lt_u32 s64, %d' % SPIN_LIMIT); a('s_cbranch_scc1 k_ep')
    a.label('k_ep_done')
    a('v_mov_b32 v70, s%d' % T0S); a('v_mov_b32 v71, s%d' % T1S)
    a('ds_write_b64 v4, v[70:71] offset:%d' % L_EP)
    stamp(1)
    a.wait(lg=0)
    a('s_branch k_end')
    a.label('k_loader'); a.load(st0b)
    for i in range(4): a('v_mov_b32 v%d, 0' % (4 + i))
    a('v_mov_b32 v3, 0')
    a('ds_write_b128 v3, v[4:7] offset:640'); a('ds_write_b128 v3, v[4:7] offset:656'); a('ds_write_b128 v3, v[4:7] offset:672')
    a('v_and_b32 v14, 1, v1'); a('v_lshrrev_b32 v15, 1, v1')
    a('v_and_b32 v16, 0x13, v15'); a('v_bfe_u32 v17, v15, 2, 1'); a('v_lshl_or_b32 v16, v17, 3, v16'); a('v_bfe_u32 v17, v15, 3, 1'); a('v_lshl_or_b32 v16, v17, 2, v16')
    a('v_mul_u32_u24 v12, 6144, v16'); a('v_lshl_add_u32 v12, v14, 4, v12')
    a('s_mul_i32 s68, s4, 24'); a('s_add_u32 s68, s68, s5')
    srd(56, WS, WS_SIZE, WSOFF)
    if not envi('LEARLY', 0): barrier()
    srd(52, WMOD, 3 * MiB); srd(48, CP, 1024)
    if envi('LDGATE', 0) == 1: lds_wait(3, 24, L_KVA, 8)
    CR = 16
    a('buffer_load_dwordx4 %s, v2, s[48:51], 0 offen' % vq(CR))
    srd(48, WRP, 1024)
    a('s_mov_b32 m0, %d' % L_WR)
    a('buffer_load_dwordx4 v2, s[48:51], 0 offen lds')
    a('v_lshrrev_b32 v10, 2, v1'); a('s_lshl_b32 s8, s5, 4'); a('v_add_u32 v10, s8, v10'); a('v_mul_u32_u24 v10, 6144, v10')
    a('v_and_b32 v11, 3, v1'); a('v_lshl_add_u32 v11, v11, 7, v10')
    a('v_lshl_add_u32 v13, v14, 7, v10')
    a('s_mul_i32 s8, s4, 768')
    a('buffer_load_dword v128, v11, s[52:55], s8 offen')
    a('s_mov_b32 exec_lo, 0x33333333'); a('s_mov_b32 exec_hi, 0x33333333')
    a('buffer_load_dword v129, v13, s[52:55], s8 offen offset:512')
    a('s_mov_b64 exec, -1')
    if envi('LEARLY', 0): barrier()
    a.wait(vm=2)
    a('v_mov_b32 v8, 1'); lds_inc(3, 8, L_QD)
    a('s_cmp_ge_u32 s5, 3'); a('s_cbranch_scc1 k_ld_nocode')
    a('s_getpc_b64 s[8:9]')
    a.label('k_pc')
    a('s_sub_u32 s8, s8, k_pc-%s' % KN); a('s_subb_u32 s9, s9, 0')
    a('v_lshlrev_b32 v10, 7, v1'); a('s_lshl_b32 s10, s5, 13'); a('v_add_u32 v10, s10, v10')
    a('s_mov_b32 s10, k_code_end-%s' % KN); a('v_cmp_gt_u32 vcc, s10, v10'); a('s_and_b64 exec, exec, vcc')
    a('s_cbranch_execz k_ld_nocode2')
    a('global_load_dword v130, v10, s[8:9]')
    a.label('k_ld_nocode2'); a('s_mov_b64 exec, -1')
    a.label('k_ld_nocode')
    stamp(1)
    srd(48, WG_, 512 * 3584); srd(28, WU_, 512 * 3584); srd(60, WD_, 1792 * 1024)
    a('v_lshrrev_b32 v10, 2, v1'); a('s_lshl_b32 s8, s5, 4'); a('v_add_u32 v10, s8, v10'); a('v_mul_u32_u24 v10, 3584, v10')
    a('v_and_b32 v11, 3, v1'); a('v_lshl_add_u32 v10, v11, 7, v10')
    a('s_mul_i32 s8, s4, 448'); a('s_and_b32 s8, s8, 0xffffff80')
    a('s_mul_i32 s9, s5, 56'); a('v_add_u32 v11, s9, v1'); a('v_lshlrev_b32 v11, 10, v11'); a('s_lshl_b32 s9, s4, 7')
    def touches():
        a('buffer_load_dword v164, v10, s[48:51], s8 offen' + NTW); a('buffer_load_dword v165, v10, s[28:31], s8 offen' + NTW)
        a('s_mov_b32 exec_hi, 0x00ffffff')
        a('buffer_load_dword v166, v11, s[60:63], s9 offen' + NTW)
        a('s_mov_b64 exec, -1')
    a.vm = []
    C = 24; E = 32
    a('v_lshrrev_b32 v6, 4, v1')
    a('v_lshl_add_u32 v8, v14, 2, v6'); a('v_lshlrev_b32 v8, 4, v8')
    a('s_cmp_ge_u32 s5, 24'); a('s_cbranch_scc1 k_ld_nowm')
    unpack(C, CR, 4)
    a('s_mov_b32 s64, 0x%x' % (LOG2E | 0x80000000))
    silu_like(E, C, 8, 64)
    for i in range(4): a('v_perm_b32 v%d, v%d, v%d, s65' % (CR + i, E + 2 * i + 1, E + 2 * i)) if False else a('v_cvt_pk_bf16_f32 v%d, v%d, v%d' % (CR + i, E + 2 * i, E + 2 * i + 1))
    a('v_add_u32 v13, %d, v2' % L_SC)
    a('ds_write_b128 v13, %s' % vq(CR))
    a('v_lshlrev_b32 v13, 4, v6'); a('v_add_u32 v13, %d, v13' % L_SC)
    a('v_and_b32 v20, 3, v1'); a('v_bfe_u32 v21, v1, 2, 2')
    a('v_lshrrev_b32 v22, 1, v6'); a('v_lshlrev_b32 v22, 9, v22'); a('v_and_b32 v23, 1, v6'); a('v_lshl_add_u32 v22, v23, 7, v22')
    a('v_lshl_add_u32 v22, v21, 5, v22'); a('v_lshl_add_u32 v22, v20, 3, v22'); a('v_add_u32 v22, %d, v22' % L_WMT)
    a.wait(lg=0)
    SCB = 32; WF = 96
    for i in range(16): a('ds_read_b128 %s, v13 offset:%d' % (vq(SCB + 4 * i), 64 * i))
    lds_wait(3, 24, L_UST, 8)
    a('s_lshl_b32 s10, s68, 5'); a('s_mov_b32 s11, %d' % L_WMT)
    for i in range(16):
        a('s_mov_b32 m0, s11'); a('s_add_u32 s11, s11, 1024'); a('buffer_load_dwordx4 v12, s[52:55], s10 offen lds'); a('s_add_u32 s10, s10, %d' % (32 * 6144))
    a.vm = []
    assert WSCHED in 'FN'
    a.wait(vm=0); a.vm = []
    stamp(2)
    for i in range(16):
        for hh in range(2): a('ds_read_b64_tr_b16 %s, v22 offset:%d' % (vp(WF + 4 * i + 2 * hh), 1024 * i + 256 * hh))
    a('s_setprio 3')
    for i in range(16):
        a('v_mfma_f32_16x16x32_bf16 %s, %s, %s, %s' % (vq(24 + 4 * (i & 1)), vq(WF + 4 * i), vq(SCB + 4 * i), '0' if i < 2 else vq(24 + 4 * (i & 1))))
    a('s_lshr_b32 s64, s68, 5'); a('s_cmp_eq_u32 s64, 1'); a('s_cselect_b32 s66, 1.0, 0'); a('s_cmp_eq_u32 s64, 4'); a('s_cselect_b32 s66, 1.0, s66')
    for i in range(4): a('v_add_f32 v%d, v%d, v%d' % (24 + i, 24 + i, 28 + i))
    for i in range(4): rb(24 + i, 24 + i)
    for i in range(4): a('v_add_f32 v%d, s66, v%d' % (24 + i, 24 + i))
    a('v_cvt_pk_bf16_f32 v40, v24, v25'); a('v_cvt_pk_bf16_f32 v41, v26, v27')
    a.label('k_ld_nowm')
    a('s_lshl_b32 s66, s6, 7'); a('s_add_u32 s66, s66, %d' % (WS_SM + SM_MOD))
    lds_epoch(3, 44)
    a('v_mov_b32 v42, s%d' % T0S); a('v_mov_b32 v43, s%d' % T1S)
    a('s_mov_b32 exec_lo, 0x00030003'); a('s_mov_b32 exec_hi, 0x00030003')
    a('buffer_store_dwordx4 v[40:43], v8, s[56:59], s66 offen sc1')
    a('s_mov_b64 exec, -1')
    stamp(3)
    TG = envi('TGATE', 2)
    if TG == 1: lds_wait(3, 24, L_UST, 8)
    if TG == 2: lds_wait(3, 24, L_UGO, 4)
    if WSCHED == 'F': touches(); a.vm = []
    a('s_branch k_end')
    side_lines = a.lines; a.lines = hot_lines
    a.cold = side_lines + getattr(a, 'cold', [])
    a.label('k_epi')
    a('s_lshl_b32 s64, s7, 10'); a('v_add_u32 v17, s64, v2')
    a('v_lshrrev_b32 v18, 1, v17'); a('v_sub_u32 v18, %d, v18' % (L_IMG + L_U1 + 4088))
    a('s_lshl_b32 s10, s6, 13'); a('s_add_u32 s10, s10, %d' % WS_Z)
    a.wait(lg=0)
    a('s_lshl_b32 s8, s69, 16'); a('s_and_b32 s9, s69, s3')
    a('v_mov_b32 v16, 0')
    lds_wait(16, 19, L_YC, 4, sleep=0); stamp(8)
    a('ds_read_b64 v[20:21], v18'); a('ds_read_b64 v[22:23], v18 offset:%d' % L_CB)
    for i in range(4): a('ds_read_b128 %s, v17 offset:%d' % (vq(32 + 4 * i), L_Y + 8192 * i))
    U = 48
    for ch in range(2):
        hi(U + 4 * ch + 0, 21 + 2 * ch); lo(U + 4 * ch + 1, 21 + 2 * ch); hi(U + 4 * ch + 2, 20 + 2 * ch); lo(U + 4 * ch + 3, 20 + 2 * ch)
    for ch in range(2):
        for i in range(4): a('v_mul_f32 v%d, s%d, v%d' % (U + 4 * ch + i, 8 + ch, U + 4 * ch + i))
    for i in range(8): rb(U + i, U + i)
    for ch in range(2):
        for i in (0, 2): pk('add', 32 + 8 * ch + i, 32 + 8 * ch + i, vp(36 + 8 * ch + i))
    for ch in range(2):
        for i in range(4): rb(32 + 8 * ch + i, 32 + 8 * ch + i)
    for ch in range(2):
        for i in (0, 2): pk('add', 32 + 8 * ch + i, 32 + 8 * ch + i, vp(U + 4 * ch + i))
    for i in range(4): a('v_cvt_pk_bf16_f32 v%d, v%d, v%d' % (56 + i, 32 + i, 40 + i))
    for i in range(4): a('v_min_u32 v%d, -2, v%d' % (56 + i, 56 + i))
    a('buffer_store_dwordx4 v[56:59], v17, s[56:59], s10 offen sc1')
    stamp(9)
    a('s_cmp_ge_u32 s7, 4'); a('s_cbranch_scc1 k_nomod')
    def badm():
        for g in range(4):
            a('v_xor_b32 v%d, s%d, v%d' % (48 + 2 * g, T0S, 80 + 4 * g + 2)); a('v_xor_b32 v%d, s%d, v%d' % (49 + 2 * g, T1S, 80 + 4 * g + 3))
        a('v_or3_b32 v48, v48, v49, v50'); a('v_or3_b32 v51, v51, v52, v53'); a('v_or3_b32 v48, v48, v54, v55'); a('v_or_b32 v48, v48, v51')
        a('v_cmp_ne_u32 vcc, 0, v48')
    a.wait(vm=1)
    badm()
    a('s_and_b64 exec, exec, vcc'); a('s_cbranch_execz k_modok')
    a('s_mov_b32 s64, 0')
    a.label('k_modp')
    for l in ['buffer_load_dwordx4 %s, v11, s[56:59], s%d offen offset:%d sc1' % (vq(80 + 4 * g), 60 if g < 2 else 61, 2048 * (g & 1)) for g in range(4)]: a(l)
    a.wait(vm=0)
    badm()
    a('s_add_u32 s64, s64, 1'); a('s_and_b64 exec, exec, vcc'); a('s_cbranch_execz k_modok')
    a('s_cmp_lt_u32 s64, %d' % SPIN_LIMIT); a('s_cbranch_scc1 k_modp')
    a.label('k_modok')
    a('s_mov_b64 exec, -1')
    for g in (0, 2): a('ds_write_b64 v12, %s offset:%d' % (vp(80 + 4 * g), L_MOD + 768 * (g >> 1)))
    a('s_mov_b32 exec_hi, 0')
    for g in (1, 3): a('ds_write_b64 v12, %s offset:%d' % (vp(80 + 4 * g), L_MOD + 768 * (g >> 1) + 512))
    a('s_mov_b64 exec, -1')
    a('v_mov_b32 v12, 1')
    a.wait(lg=0)
    lds_inc(16, 12, L_MR)
    a.label('k_nomod')
    X = 24; T = 32; H = 40; Z = 48; S = 60; M = 64; WRr = 112; H2P = 128
    lds_wait(16, 18, L_QD, 5)
    a('ds_read_b128 v[12:15], v17 offset:%d' % L_XB)
    a('ds_read_b128 v[20:23], v2 offset:%d' % L_WR)
    a('v_lshrrev_b32 v3, 1, v0'); a('v_and_b32 v4, 1, v0')
    a('v_lshlrev_b32 v5, 13, v3'); a('v_lshl_add_u32 v5, v4, 4, v5')
    a('v_mul_u32_u24 v6, %d, v4' % (4 * ZP)); a('v_lshl_add_u32 v6, v3, 2, v6'); a('v_add_u32 v6, %d, v6' % L_ZT)
    a('s_mul_i32 s64, s7, %d' % ZP); a('s_add_u32 s64, s64, %d' % L_ZT); a('v_add_u32 v7, s64, v2')
    a('v_lshlrev_b32 v19, 7, v3'); a('v_lshl_add_u32 v19, v4, 4, v19')
    a('s_lshl_b32 s11, s6, 5'); a('s_add_u32 s11, s11, %d' % WS_Z)
    MR = 120
    unpack(X, 12, 4)
    fin = ln_stats(X, T, 48, 50, 52, S)
    ln_norm(H, X, 50, 52, fin)
    for i in range(8): rb(H + i, H + i)
    unpack(WRr, 20, 4)
    lds_wait(16, 17, L_MR, 4)
    for i in range(6): a('ds_read_b128 %s, v2 offset:%d' % (vq(MR + 4 * i), L_MOD + 1024 * i))
    for i in (1, 0): unpack(M + 8 * i, MR + 4 * i, 4)
    affine(H, M + 8, M + 0)
    for i in range(2, 6): unpack(M + 8 * i, MR + 4 * i, 4)
    a.wait(vm=0); stamp(10)
    ppoll('Z', lambda B: ['buffer_load_dwordx4 %s, v5, s[56:59], s11 offen sc1' % vq(B)], lambda B: bad_sent([B, B + 1, B + 2, B + 3], 16)(), 4, 12, [144, 148, 152])
    stamp(11)
    for i in range(4): a('ds_write_b32 v6, v%d offset:%d' % (12 + i, ZP * i))
    a.wait(lg=0); barrier()
    a('ds_read_b128 v[12:15], v7')
    unpack(Z, 12, 4)
    for i in range(0, 8, 2): pk('mul', H + i, H + i, vp(Z + i))
    for i in range(8): rb(H + i, H + i)
    for i in range(0, 8, 2): pk('mul', H + i, H + i, vp(M + 16 + i))
    for i in range(8): rb(H + i, H + i)
    for i in range(0, 8, 2): pk('add', X + i, X + i, vp(H + i))
    for i in range(8): rb(X + i, X + i)
    fin = ln_stats(X, T, 48, 50, 52, S)
    ln_norm(H, X, 50, 52, fin)
    for i in range(8): rb(H + i, H + i)
    affine(H, M + 32, M + 24)
    pk('mul', S, H, vp(WRr)); pk('mul', S + 2, H + 2, vp(WRr + 2))
    a('v_pk_fma_f32 %s, %s, %s, %s' % (vp(S), vp(H + 4), vp(WRr + 4), vp(S))); a('v_pk_fma_f32 %s, %s, %s, %s' % (vp(S + 2), vp(H + 6), vp(WRr + 6), vp(S + 2)))
    pk('add', S, S, vp(S + 2)); a('v_add_f32 v%d, v%d, v%d' % (S, S, S + 1))
    for n, ctl in enumerate(DPPS):
        a('v_add_f32_dpp v%d, v%d, v%d %s' % (S, S, S, ctl))
        if n < 4:
            a('v_cvt_pk_bf16_f32 v%d, v%d, v%d' % (H2P + n, H + 2 * n, H + 2 * n + 1)); a('v_min_u32 v%d, -2, v%d' % (H2P + n, H2P + n))
    rb(S, S)
    a('v_ashrrev_i32 v%d, 31, v%d' % (S + 1, S)); a('v_or_b32 v%d, 0x80000000, v%d' % (S + 1, S + 1)); a('v_xor_b32 v%d, v%d, v%d' % (S, S, S + 1))
    a('s_sub_u32 s64, 2047, s12'); a('v_and_b32 v%d, s3, v%d' % (S, S)); a('v_or_b32 v%d, s64, v%d' % (S, S))
    a('s_lshl_b32 s64, s7, 2'); a('v_mov_b32 v%d, s64' % (S + 1))
    if DBGSPAN: a('s_mov_b32 s68, s14')
    a('v_readlane_b32 s14, v%d, 63' % S)
    a('s_mov_b32 exec_lo, 0'); a('s_mov_b32 exec_hi, 0x80000000')
    a('ds_write_b32 v%d, v%d offset:%d' % (S + 1, S, L_KEYL))
    if envi('KEYDIRECT', 0):
        a('s_lshl_b32 s64, s6, 7'); a('s_add_u32 s64, s64, %d' % (WS_SM + SM_KEY))
        a('buffer_store_dword v%d, v%d, s[56:59], s64 offen sc1' % (S, S + 1))
    a('s_mov_b64 exec, -1')
    a('s_add_u32 s65, s13, %d' % WS_H2)
    OUTR = 120; X1P = 124
    for i in range(4): a('v_cvt_pk_bf16_f32 v%d, v%d, v%d' % (X1P + i, X + 2 * i, X + 2 * i + 1))
    for i in range(4): a('v_min_u32 v%d, -2, v%d' % (X1P + i, X1P + i))
    a('v_and_b32 v%d, 1, v1' % (S + 1)); a('v_lshlrev_b32 v%d, 4, v%d' % (S + 1, S + 1))
    a('s_lshl_b32 s64, s6, 7'); a('s_add_u32 s64, s64, %d' % (WS_SM + SM_KEY))
    a('s_lshl_b32 s65, s6, 11'); a('s_add_u32 s65, s65, %d' % (WS_SM + SM_SPEC))
    a.wait(lg=0); barrier()
    a('ds_read_b128 v[8:11], v%d offset:%d' % (S + 1, L_KEYL))
    a('s_cmp_lg_u32 s7, %d' % (99 if envi('KEYDIRECT', 0) else 0)); a('s_cbranch_scc1 k_nokey')
    a('s_mov_b64 exec, 0xff')
    a('buffer_store_dwordx4 v[8:11], v2, s[56:59], s64 offen sc1')
    a('s_mov_b64 exec, -1')
    a.label('k_nokey')
    stamp(12)
    if SPEC:
        a.wait(lg=0)
        a('v_max3_u32 v16, v8, v9, v10'); a('v_max_u32 v16, v16, v11')
        a('v_cmp_lt_u32 vcc, s14, v16')
        a('s_cbranch_vccnz k_nospec')
        a('buffer_store_dwordx4 %s, v2, s[56:59], s65 offen sc1' % vq(H2P)); a('buffer_store_dwordx4 %s, v2, s[56:59], s65 offen offset:1024 sc1' % vq(X1P))
        a.label('k_nospec')
    for i in range(0, 8, 2): pk('mul', T + i, H + i, vp(M + 40 + i))
    for i in range(8): rb(T + i, T + i)
    for i in range(0, 8, 2): pk('add', T + i, T + i, vp(X + i))
    for i in range(4): a('v_cvt_pk_bf16_f32 v%d, v%d, v%d' % (OUTR + i, T + 2 * i, T + 2 * i + 1))
    a('v_mov_b32 v20, 0'); a('v_lshlrev_b32 v21, 2, v1')
    a('v_mov_b32 v16, 0'); a('v_mov_b32 v17, 0'); a('v_lshlrev_b32 v18, 3, v1')
    a('ds_write_b64 v18, v[16:17] offset:%d' % L_RANK); a('ds_write_b64 v18, v[16:17] offset:%d' % L_SEG)
    a('v_lshrrev_b32 v24, 3, v1'); a('v_lshlrev_b32 v24, 6, v24'); a('v_and_b32 v25, 7, v1'); a('v_lshl_add_u32 v24, v25, 2, v24')
    a('ds_write_b32 v20, v20 offset:%d' % L_CNT); a('ds_write_b32 v20, v20 offset:%d' % L_FLAG)
    a('s_mov_b32 s11, %d' % (WS_SM + SM_KEY))
    a('v_and_b32 v4, 7, v1'); a('v_lshlrev_b32 v5, 2, v4')
    a('v_lshrrev_b32 v3, 3, v1'); a('v_add_lshl_u32 v3, v3, v4, 2'); a('v_and_b32 v3, 28, v3')
    a('v_lshrrev_b32 v6, 4, v1')
    a('v_and_b32 v17, 3, v1'); a('v_bfe_u32 v18, v1, 2, 2')
    a('v_lshlrev_b32 v22, 7, v6'); a('v_lshl_add_u32 v22, v18, 4, v22')
    a('v_and_b32 v23, 1, v17'); a('v_lshl_add_u32 v22, v23, 3, v22')
    a('v_lshrrev_b32 v23, 1, v17'); a('v_mul_u32_u24 v23, %d, v23' % L_GU); a('v_add_u32 v22, v22, v23')
    a('s_lshl_b32 s64, s7, 10'); a('s_add_u32 s64, s64, %d' % L_W); a('v_add_u32 v22, s64, v22')
    for i in range(2):
        for hh in range(2): a('ds_read_b64_tr_b16 %s, v22 offset:%d' % (vp(72 + 4 * i + 2 * hh), 512 * i + 64 * hh))
    a('s_lshl_b32 s64, s7, 7'); a('s_add_u32 s10, s64, %d' % (WS_SM + SM_X1))
    a('v_lshlrev_b32 v23, 11, v4')
    a.wait(vm=0, lg=0)
    KEY = 12
    ppoll('K', lambda B: ['buffer_load_dwordx4 %s, v19, s[56:59], s11 offen sc1' % vq(B)], lambda B: bad_sent([B, B + 1, B + 2, B + 3], 16)(), 4, 12, [156, 160, 164])
    stamp(13)
    T0 = 30
    a('v_max3_u32 v%d, v%d, v%d, v%d' % (T0, KEY, KEY + 1, KEY + 2)); a('v_max_u32 v%d, v%d, v%d' % (T0, T0, KEY + 3))
    wave_reduce('v_max_u32', [T0])
    a('s_lshl_b32 s64, s7, 2'); a('v_mov_b32 v%d, s64' % (T0 + 1))
    a('s_mov_b32 exec_lo, 0'); a('s_mov_b32 exec_hi, 0x80000000')
    a('ds_write_b32 v%d, v%d offset:%d' % (T0 + 1, T0, L_WM))
    a('s_mov_b64 exec, -1')
    a('s_mov_b32 s15, 0')
    if envi('EARLYOUT', 1):
        for j in range(4): a('v_cmp_lt_u32 %s, s14, v%d' % (sp(48 + 2 * j), KEY + j))
        for j in range(4): a('s_bcnt1_i32_b64 s%d, %s' % (60 + j, sp(48 + 2 * j)))
        a('s_add_u32 s60, s60, s61'); a('s_add_u32 s62, s62, s63'); a('s_add_u32 s60, s60, s62')
        a('s_cmp_lt_u32 s60, 8'); a('s_cbranch_scc1 k_noearly')
        srd(48, OUT, 2 * MiB)
        a('buffer_store_dwordx4 %s, v2, s[48:51], s13 offen%s' % (vq(OUTR), os.environ.get('OUTF', ' sc1')))
        a('s_mov_b32 s15, 1')
        a.label('k_noearly')
    a.wait(lg=0); barrier()
    a('ds_read_b128 %s, v20 offset:%d' % (vq(T0 + 4), L_WM)); a('ds_read_b128 %s, v20 offset:%d' % (vq(T0 + 8), L_WM + 16))
    a('v_min3_u32 v%d, v%d, v%d, v%d' % (T0, T0 + 4, T0 + 5, T0 + 6)); a('v_min3_u32 v%d, v%d, v%d, v%d' % (T0 + 1, T0 + 8, T0 + 9, T0 + 10))
    a('v_min3_u32 v%d, v%d, v%d, v%d' % (T0, T0, T0 + 7, T0 + 11)); a('v_min_u32 v%d, v%d, v%d' % (T0, T0, T0 + 1))
    MS = 48
    for j in range(4): a('v_cmp_ge_u32 %s, v%d, v%d' % (sp(MS + 2 * j), KEY + j, T0))
    for j in range(4): a('s_bcnt1_i32_b64 s%d, %s' % (60 + j, sp(MS + 2 * j)))
    a('s_add_u32 s61, s61, s60'); a('s_add_u32 s62, s62, s61'); a('s_add_u32 s63, s63, s62')
    a('s_lshl_b32 s64, s7, 4')
    a('s_cmp_gt_u32 s63, %d' % (1 if envi('FORCE_SLOW', 0) == 1 else 16)); a('s_cbranch_scc1 k_tk_over')
    for j in range(4):
        a('v_mbcnt_lo_u32_b32 v%d, s%d, 0' % (T0 + 4 + j, MS + 2 * j)); a('v_mbcnt_hi_u32_b32 v%d, s%d, v%d' % (T0 + 4 + j, MS + 1 + 2 * j, T0 + 4 + j))
        if j > 0: a('s_add_u32 s65, s64, s%d' % (60 + j - 1))
        a('v_add_lshl_u32 v%d, v%d, s%d, 2' % (T0 + 4 + j, T0 + 4 + j, 64 if j == 0 else 65))
    for j in range(4):
        a('s_mov_b64 exec, %s' % sp(MS + 2 * j))
        a('ds_write_b32 v%d, v%d offset:%d' % (T0 + 4 + j, KEY + j, L_SEG))
    a('s_mov_b64 exec, -1')
    a('s_cmp_gt_u32 s63, %d' % (1 if envi('FORCE_SLOW', 0) == 2 else 8)); a('s_cbranch_scc0 k_tk_b')
    a('v_mov_b32 v%d, 1' % (T0 + 4)); a('ds_or_b32 v20, v%d offset:%d' % (T0 + 4, L_FLAG))
    a('s_branch k_tk_b')
    a.label('k_tk_over')
    a('v_mov_b32 v%d, 2' % (T0 + 4)); a('ds_or_b32 v20, v%d offset:%d' % (T0 + 4, L_FLAG))
    a.label('k_tk_b')
    a('s_lshl_b32 s64, s7, 6'); a('v_mov_b32 v%d, s64' % (T0 + 1))
    a.wait(lg=0); barrier()
    a('ds_read_b32 v%d, v20 offset:%d' % (T0 + 2, L_FLAG))
    a('ds_read_b32 v%d, v24 offset:%d' % (T0 + 3, L_SEG))
    a('ds_read_b128 %s, v%d offset:%d' % (vq(T0 + 4), T0 + 1, L_SEG)); a('ds_read_b128 %s, v%d offset:%d' % (vq(T0 + 8), T0 + 1, L_SEG + 16))
    a('v_mov_b32 v%d, 0' % (T0 + 12)); a('v_mov_b32 v%d, 0' % (T0 + 13))
    a('v_readfirstlane_b32 s64, v%d' % (T0 + 2))
    a('s_cmp_lg_u32 s64, 0'); a('s_cbranch_scc1 k_tk_med')
    for hh in range(2):
        for e in range(4): a('v_cmp_gt_u32 %s, v%d, v%d' % (sp(MS + 2 * e), T0 + 4 + 4 * hh + e, T0 + 3))
        for e in range(4): a('v_addc_co_u32 v%d, vcc, 0, v%d, %s' % (T0 + 12 + (e & 1), T0 + 12 + (e & 1), sp(MS + 2 * e)))
    a('v_add_u32 v%d, v%d, v%d' % (T0 + 12, T0 + 12, T0 + 13))
    a('ds_add_u32 v21, v%d offset:%d' % (T0 + 12, L_RANK))
    a('v_cmp_ne_u32 s[64:65], 0, v%d' % (T0 + 3))
    a.wait(lg=0); barrier()
    a('ds_read_b32 v%d, v21 offset:%d' % (T0 + 12, L_RANK))
    a('v_cmp_gt_u32 vcc, 8, v%d' % (T0 + 12)); a('v_lshlrev_b32 v%d, 2, v%d' % (T0 + 12, T0 + 12))
    a('s_and_b64 exec, vcc, s[64:65]')
    a('ds_write_b32 v%d, v%d offset:%d' % (T0 + 12, T0 + 3, L_SEL))
    a('s_mov_b64 exec, -1')
    a.wait(lg=0)
    a.cold_begin()
    a.label('k_tk_med')
    a('s_cmp_gt_u32 s64, 1'); a('s_cbranch_scc1 k_tk_slow')
    a.wait(lg=0)
    CA = 44; RK = 46; SG = 48
    a('ds_read_b32 v%d, v21 offset:%d' % (CA, L_SEG)); a('ds_read_b32 v%d, v21 offset:%d' % (CA + 1, L_SEG + 256))
    a('ds_read_b128 %s, v%d offset:%d' % (vq(SG), T0 + 1, L_SEG + 32)); a('ds_read_b128 %s, v%d offset:%d' % (vq(SG + 4), T0 + 1, L_SEG + 48))
    a('v_mov_b32 v%d, 0' % RK); a('v_mov_b32 v%d, 0' % (RK + 1))
    for r in list(range(T0 + 4, T0 + 12)) + list(range(SG, SG + 8)):
        for c in range(2): a('v_cmp_gt_u32 %s, v%d, v%d' % (sp(MS + 2 * c), r, CA + c))
        for c in range(2): a('v_addc_co_u32 v%d, vcc, 0, v%d, %s' % (RK + c, RK + c, sp(MS + 2 * c)))
    a('ds_add_u32 v21, v%d offset:%d' % (RK, L_RANK)); a('ds_add_u32 v21, v%d offset:%d' % (RK + 1, L_RANK + 256))
    a.wait(lg=0); barrier()
    a('ds_read_b32 v%d, v21 offset:%d' % (RK, L_RANK)); a('ds_read_b32 v%d, v21 offset:%d' % (RK + 1, L_RANK + 256))
    for c in range(2):
        a('v_cmp_gt_u32 vcc, 8, v%d' % (RK + c)); a('v_cmp_ne_u32 s[64:65], 0, v%d' % (CA + c)); a('v_lshlrev_b32 v%d, 2, v%d' % (RK + c, RK + c))
        a('s_and_b64 exec, vcc, s[64:65]')
        a('ds_write_b32 v%d, v%d offset:%d' % (RK + c, CA + c, L_SEL))
        a('s_mov_b64 exec, -1')
    a.wait(lg=0)
    a('s_branch k_tk_done')
    a.label('k_tk_slow')
    a.wait(lg=0)
    for j in range(4): a('v_cmp_ge_u32 %s, v%d, v%d' % (sp(MS + 2 * j), KEY + j, T0))
    a('v_mov_b32 v%d, s63' % (T0 + 1))
    a('s_mov_b64 exec, 1')
    a('ds_add_rtn_u32 v%d, v20, v%d offset:%d' % (T0 + 3, T0 + 1, L_CNT))
    a('s_mov_b64 exec, -1')
    a('v_readfirstlane_b32 s64, v%d' % (T0 + 3))
    for j in range(4):
        a('v_mbcnt_lo_u32_b32 v%d, s%d, 0' % (T0 + 4 + j, MS + 2 * j)); a('v_mbcnt_hi_u32_b32 v%d, s%d, v%d' % (T0 + 4 + j, MS + 1 + 2 * j, T0 + 4 + j))
        if j > 0: a('s_add_u32 s65, s64, s%d' % (60 + j - 1))
        a('v_add_lshl_u32 v%d, v%d, s%d, 2' % (T0 + 4 + j, T0 + 4 + j, 64 if j == 0 else 65))
        a('s_mov_b64 exec, %s' % sp(MS + 2 * j))
        a('ds_write_b32 v%d, v%d offset:%d' % (T0 + 4 + j, KEY + j, L_LIST))
        a('s_mov_b64 exec, -1')
    a.wait(lg=0); barrier()
    a('ds_read_b32 v%d, v20 offset:%d' % (T0, L_CNT))
    a('v_readfirstlane_b32 s60, v%d' % T0)
    a('s_mov_b32 s61, 0')
    a.label('k_tk_chunk')
    a('v_add_u32 v%d, s61, v0' % (T0 + 1)); a('v_lshlrev_b32 v%d, 2, v%d' % (T0 + 3, T0 + 1))
    a('ds_read_b32 v%d, v%d offset:%d' % (T0, T0 + 3, L_LIST))
    a('v_mov_b32 v%d, 0' % (T0 + 3)); a('s_mov_b32 s62, 0'); a('v_mov_b32 v%d, 0' % (T0 + 2))
    a.label('k_tk_scan')
    a('ds_read_b128 %s, v%d offset:%d' % (vq(T0 + 4), T0 + 2, L_LIST))
    a('s_sub_u32 s63, s60, s62')
    for e in range(4):
        a('v_cmp_gt_u32 vcc, v%d, v%d' % (T0 + 4 + e, T0))
        a('s_cmp_gt_u32 s63, %d' % e); a('s_cselect_b64 vcc, vcc, 0')
        a('v_addc_co_u32 v%d, vcc, 0, v%d, vcc' % (T0 + 3, T0 + 3))
    a('v_add_u32 v%d, 16, v%d' % (T0 + 2, T0 + 2))
    a('s_add_u32 s62, s62, 4'); a('s_cmp_lt_u32 s62, s60'); a('s_cbranch_scc1 k_tk_scan')
    a('v_cmp_gt_u32 vcc, s60, v%d' % (T0 + 1)); a('v_cmp_gt_u32 s[64:65], 8, v%d' % (T0 + 3)); a('s_and_b64 vcc, vcc, s[64:65]')
    a('v_lshlrev_b32 v%d, 2, v%d' % (T0 + 3, T0 + 3))
    a('s_mov_b64 exec, vcc')
    a('ds_write_b32 v%d, v%d offset:%d' % (T0 + 3, T0, L_SEL))
    a('s_mov_b64 exec, -1')
    a('s_add_u32 s61, s61, 512'); a('s_cmp_lt_u32 s61, s60'); a('s_cbranch_scc1 k_tk_chunk')
    a.wait(lg=0); barrier()
    a('s_branch k_tk_done')
    a.cold_end()
    a.label('k_tk_done')
    stamp(14)
    a('ds_read_b32 v7, v5 offset:%d' % L_SEL)
    a('ds_read_b32 v9, v3 offset:%d' % L_SEL)
    a('v_not_b32 v8, v7'); a('v_and_b32 v8, 0x7ff, v8')
    a('v_and_b32 v10, 0x7f8, v8'); a('v_lshlrev_b32 v10, 8, v10'); a('v_add_u32 v10, %d, v10' % (SM_SPEC - SM_X1))
    a('v_xor_b32 v9, v9, v7'); a('v_and_b32 v9, 0x7f8, v9'); a('v_cmp_eq_u32 vcc, 0, v9')
    a('v_lshlrev_b32 v8, 10, v8')
    a('s_andn2_b32 s62, vcc_lo, 0xff'); a('s_or_b32 s62, s62, vcc_hi')
    a('s_cmp_eq_u32 s62, %d' % (12345 if envi('FORCE_XSEL', 0) else 0)); a('s_cselect_b64 s[62:63], -1, 0')
    a('v_cndmask_b32 v10, v23, v10, s[62:63]')
    def own_row_store(tag):
        a('s_or_b32 s61, s60, s15'); a('s_cbranch_scc1 k_own_%s' % tag)
        a('buffer_store_dwordx4 %s, v2, s[48:51], s13 offen%s' % (vq(OUTR), os.environ.get('OUTF', ' sc1')))
        a.label('k_own_%s' % tag)
    def after_sel(tag):
        a('v_cmp_eq_u32 vcc, s14, v7'); a('s_and_b32 s60, vcc_lo, 0xff')
        srd(48, OUT, 2 * MiB)
        a('s_andn2_b32 s63, s60, s62')
        a('s_cmp_eq_u32 s63, 0'); a('s_cbranch_scc1 k_nosel%s' % tag)
        a('s_ff1_i32_b32 s61, s60'); a('s_lshl_b32 s61, s61, 11'); a('s_add_u32 s61, s61, %d' % (WS_SM + SM_X1))
        a('buffer_store_dwordx4 %s, v2, s[56:59], s61 offen sc1' % vq(H2P))
        a('buffer_store_dwordx4 %s, v2, s[56:59], s61 offen offset:1024 sc1' % vq(X1P))
        a.label('k_nosel%s' % tag)
    a('s_cmp_ge_u32 s5, 28'); a('s_cbranch_scc1 k_ffn2')
    st1 = a.save()
    a('v_lshl_add_u32 v9, v6, 4, v10')
    xl = ['buffer_load_dwordx4 v[12:15], v9, s[56:59], s10 offen sc1', 'buffer_load_dwordx4 v[16:19], v9, s[56:59], s10 offen offset:64 sc1']
    a('s_mov_b32 exec_lo, 0x00ff00ff'); a('s_mov_b32 exec_hi, 0x00ff00ff')
    for l in xl: a(l)
    a('s_mov_b64 exec, -1')
    after_sel('a')
    a('s_lshl_b32 s61, s2, 4'); a('s_add_u32 s61, s61, s7'); a('s_cmp_lg_u32 s61, 1'); a('s_cbranch_scc1 k_norst')
    srd(52, DBG, 256)
    a('v_mov_b32 v20, 0'); a('v_mov_b32 v21, 0'); a('s_mov_b64 exec, 1')
    a('buffer_store_dwordx2 v[20:21], v20, s[52:55], 0 offen sc1')
    a.label('k_norst')
    a('s_mov_b32 exec_lo, 0x00ff00ff'); a('s_mov_b32 exec_hi, 0x00ff00ff'); a('s_mov_b32 s64, 0')
    a.label('k_xp')
    a.wait(vm=0)
    bad_sent(list(range(12, 20)), 36)()
    a('s_add_u32 s64, s64, 1'); a('s_and_b64 exec, exec, vcc'); a('s_cbranch_execz k_xp_done')
    for l in xl: a(l)
    a('s_cmp_lt_u32 s64, %d' % SPIN_LIMIT); a('s_cbranch_scc1 k_xp')
    a.wait(vm=0)
    a.label('k_xp_done')
    a('s_mov_b64 exec, -1')
    tstamp(1)
    a('v_mfma_f32_16x16x32_bf16 v[32:35], v[72:75], v[12:15], 0')
    a('v_mfma_f32_16x16x32_bf16 v[32:35], v[76:79], v[16:19], v[32:35]')
    a('v_lshlrev_b32 v36, 4, v0')
    own_row_store('a')
    a.nop(5)
    a('ds_write_b128 v36, v[32:35] offset:%d' % L_P)
    a.wait(lg=0); barrier()
    a('s_cmp_lg_u32 s7, 0'); a('s_cbranch_scc1 k_end')
    for w in range(8): a('ds_read_b128 %s, v36 offset:%d' % (vq(40 + 4 * w), L_P + 1024 * w))
    a('s_mov_b32 s64, 0x%x' % (LOG2E | 0x80000000))
    a('s_mul_i32 s65, s4, 28'); a('s_add_u32 s65, s65, s5'); a('s_lshl_b32 s65, s65, 7'); a('s_add_u32 s65, s65, %d' % (WS_SM + SM_ACT))
    a('v_and_b32 v81, 15, v1'); a('v_lshlrev_b32 v82, 4, v81'); a('v_lshl_add_u32 v80, v6, 3, v82')
    for st in (16, 8, 4):
        for i in range(0, st, 2): pk('add', 40 + i, 40 + i, vp(40 + i + st))
    for i in range(4): rb(40 + i, 40 + i)
    for i in range(4): a('v_mov_b32 v%d, v%d' % (44 + i, 40 + i))
    silu_like(52, 40, 4, 64)
    for i in range(4): a('v_permlane32_swap_b32 v%d, v%d' % (44 + i, 48 + i))
    for i in range(4): a('v_mul_f32 v%d, v%d, v%d' % (52 + i, 52 + i, 48 + i))
    a('v_cvt_pk_bf16_f32 v56, v52, v53'); a('v_cvt_pk_bf16_f32 v57, v54, v55')
    a('v_min_u32 v56, -2, v56'); a('v_min_u32 v57, -2, v57')
    a('s_mov_b32 exec_lo, 0x00ff00ff'); a('s_mov_b32 exec_hi, 0')
    a('buffer_store_dwordx2 v[56:57], v80, s[56:59], s65 offen sc1')
    tstamp(2)
    a('s_branch k_end')
    a.label('k_ffn2'); a.load(st1)
    after_sel('b')
    own_row_store('b')
    a('s_lshl_b32 s8, s4, 2'); a('s_add_u32 s8, s8, s5'); a('s_sub_u32 s8, s8, 28')
    a('s_lshl_b32 s9, s8, 5')
    a('s_mul_i32 s64, s7, 7168'); a('s_add_u32 s64, s64, %d' % L_W)
    if WDE < 7 and WSCHED != 'N':
        srd(52, WD_, 1792 * 1024)
        wd_addr(15)
        a('s_mul_i32 s65, s7, %d' % (224 * 1024)); a('s_add_u32 s65, s65, s9'); a('s_add_u32 s65, s65, %d' % (32768 * WDE)); a('s_add_u32 s10, s64, %d' % (1024 * WDE))
        for i in range(WDE, 7):
            a('s_mov_b32 m0, s10'); a('s_add_u32 s10, s10, 1024'); a('buffer_load_dwordx4 v15, s[52:55], s65 offen lds'); a('s_add_u32 s65, s65, 32768')
    a('v_and_b32 v20, 3, v1'); a('v_bfe_u32 v21, v1, 2, 2')
    a('v_lshrrev_b32 v22, 1, v6'); a('v_lshlrev_b32 v22, 9, v22'); a('v_and_b32 v23, 1, v6'); a('v_lshl_add_u32 v22, v23, 7, v22')
    a('v_lshl_add_u32 v22, v21, 5, v22'); a('v_lshl_add_u32 v22, v20, 3, v22')
    a('v_add_u32 v22, s64, v22')
    for i in range(WDE):
        for hh in range(2): a('ds_read_b64_tr_b16 %s, v22 offset:%d' % (vp(64 + 4 * i + 2 * hh), 1024 * i + 256 * hh))
    a('v_lshlrev_b32 v9, 7, v6'); a('v_lshl_add_u32 v9, v4, 4, v9')
    a('s_mul_i32 s11, s7, 3584'); a('s_add_u32 s11, s11, %d' % (WS_SM + SM_ACT))
    a('v_lshl_add_u32 v8, v6, 3, v8')
    a('s_cmp_lg_u32 s7, 0'); a('s_cbranch_scc1 k_f2_act')
    a('v_lshl_add_u32 v10, v6, 3, v10')
    a('s_add_u32 s61, s9, %d' % WS_H2); a('s_add_u32 s62, s9, %d' % (WS_SM + SM_X1))
    a('v_lshlrev_b32 v11, 3, v6'); a('v_add_u32 v11, s9, v11')
    a('ds_read_b64 v[16:17], v11 offset:%d' % (L_MOD + 5 * 1024))
    a('v_and_b32 v30, s3, v7'); a('v_ashrrev_i32 v31, 31, v30'); a('v_not_b32 v31, v31'); a('v_or_b32 v31, 0x80000000, v31'); a('v_xor_b32 v30, v30, v31'); a('v_and_b32 v30, s3, v30')
    a('s_mov_b32 s64, 0x%x' % (LOG2E | 0x80000000))
    silu_like(31, 30, 1, 64, mulx=False)
    unpack(92, 16, 2)
    poll(['buffer_load_dwordx2 v[12:13], v10, s[56:59], s62 offen sc1' if OWNER else 'buffer_load_dwordx2 v[12:13], v8, s[56:59], s61 offen sc1',
          'buffer_load_dwordx2 v[14:15], v10, s[56:59], s62 offen offset:1024 sc1'], bad_sent([12, 13, 14, 15], 29))
    unpack(96, 12, 4)
    a.label('k_f2_act')
    a.wait(vm=0, lg=0)
    tstamp(3)
    for i in range(WDE, 7):
        for hh in range(2): a('ds_read_b64_tr_b16 %s, v22 offset:%d' % (vp(64 + 4 * i + 2 * hh), 1024 * i + 256 * hh))
    ppoll('A', lambda B: ['buffer_load_dwordx4 %s, v9, s[56:59], s11 offen offset:%d sc1' % (vq(B + 4 * i), 512 * i) for i in range(7)],
          lambda B: bad_sent(list(range(B, B + 28)), 29)(), 28, 32, [112, 140], exec_mask=0x00ff00ff)
    tstamp(4)
    if STAMP and TAILST: a('s_mov_b32 s%d, s64' % (SST + 12))
    for i in range(7):
        a('v_mfma_f32_16x16x32_bf16 v[24:27], %s, %s, %s' % (vq(64 + 4 * i), vq(32 + 4 * i), '0' if i == 0 else 'v[24:27]'))
    a('v_lshlrev_b32 v28, 4, v0')
    a('ds_write_b128 v28, v[24:27] offset:%d' % L_P)
    a.wait(lg=0); barrier()
    a('s_cmp_lg_u32 s7, 0'); a('s_cbranch_scc1 k_end')
    for w in range(8): a('ds_read_b128 %s, v28 offset:%d' % (vq(40 + 4 * w), L_P + 1024 * w))
    for st in (16, 8, 4):
        for i in range(0, st, 2): pk('add', 40 + i, 40 + i, vp(40 + i + st))
    for i in range(4): rb(40 + i, 40 + i)
    for i in range(4): a('v_mul_f32 v%d, v%d, v31' % (40 + i, 40 + i))
    for i in range(4): rb(40 + i, 40 + i)
    for i in (0, 2): pk('add', 40 + i, 40 + i, vp(96 + i))
    for i in range(4): rb(40 + i, 40 + i)
    for i in (0, 2): pk('mul', 40 + i, 40 + i, vp(92 + i))
    for i in range(4): rb(40 + i, 40 + i)
    for i in (0, 2): pk('add', 40 + i, 40 + i, vp(100 + i))
    a('v_cvt_pk_bf16_f32 v44, v40, v41'); a('v_cvt_pk_bf16_f32 v45, v42, v43')
    a('s_mov_b32 exec_lo, 0x00ff00ff'); a('s_mov_b32 exec_hi, 0x00ff00ff')
    a('buffer_store_dwordx2 v[44:45], v8, s[48:51], s9 offen' + os.environ.get('OUTF2', ' sc1'))
    if DBGSPAN:
        a('s_memrealtime s[64:65]'); a.wait(lg=0)
        a('s_sub_u32 s64, s64, s68'); a('v_mov_b32 v1, s64'); a('s_and_b32 s8, s8, 7'); a('s_lshl_b32 s8, s8, 2'); a('s_add_u32 s8, s8, 8')
        srd(52, DBG, 256)
        a('v_mov_b32 v2, 0'); a('s_mov_b64 exec, 1')
        a('buffer_store_dword v1, v2, s[52:55], s8 offen')
    a.label('k_end')
    if STAMP:
        a('s_memrealtime s[%d:%d]' % (SST + 30, SST + 31))
        a('s_mov_b64 exec, -1')
        a.wait(vm=0, lg=0)
        for i in range(16): a('v_writelane_b32 v2, s%d, %d' % (SST + 2 * i, i))
        a('s_mul_i32 s5, s2, 10'); a('s_add_u32 s5, s5, s7'); a('s_lshl_b32 s5, s5, 6')
        srd(8, WS, MiB, WS_STAMP)
        a('v_and_b32 v1, 63, v0'); a('v_lshlrev_b32 v1, 2, v1')
        a('s_mov_b64 exec, 0xffff')
        a('buffer_store_dword v2, v1, s[8:11], s5 offen')
    a.label('k_exit')
    a('s_endpgm')
    a.cold_flush()
    a.label('k_code_end')

def main(outpath):
    hdr = open('cdna_kernels/%s.s.ref' % NAME).read().split('\n')
    out = [l for l in hdr if l.startswith(';') and '@launch' not in l]
    out.append('; @launch grid=(256,1,1) block=(640,1,1) lds=%d' % LDS_SIZE)
    out.append('.amdgcn_target "amdgcn-amd-amdhsa--gfx950"'); out.append('.text')
    out += ['; One persistent launch, 256 workgroups (one per CU) x 10 waves, generated by a script of ours. Phases:',
            ';  1. kv = shiftconv(k)*v for a 64x64 tile (raw tile by LDS-DMA), handed to the owner of each channel pair as clock-tagged 16B granules',
            ';  2. causal 2048-tap convolution of two channels as Toeplitz MFMA (16x16x32 bf16, fp32 accumulate), z = y + kv*D',
            ';  3. rows: LN1, x1, LN2, h2, router score; hand-offs by write-through stores into sentinel-filled lines, polled by the readers',
            ';  4. exact top-8 in every workgroup, gate/up slices on 224 workgroups, down projection + final rows on 32 workgroups',
            '; wave 8: adaLN modulation slice (MFMA GEMV) and cache warm-up, wave 9: sentinel fills and launch epoch (d_debug).']
    gen()
    body = a.text()
    m = max([int(x) for x in re.findall(r'\bv(\d+)\b', body)] + [int(x) for x in re.findall(r'\bv\[\d+:(\d+)\]', body)])
    vg = (m + 1 + 7) // 8 * 8
    assert vg <= 168
    out.append(body)
    out.append('.section .rodata,"a"')
    out.append('.p2align 6')
    out.append('.amdhsa_kernel %s' % KN)
    out.append('  .amdhsa_next_free_vgpr %d' % vg); out.append('  .amdhsa_next_free_sgpr 102'); out.append('  .amdhsa_accum_offset %d' % vg)
    out.append('  .amdhsa_group_segment_fixed_size 0'); out.append('  .amdhsa_kernarg_size 128')
    out.append('  .amdhsa_user_sgpr_count 2'); out.append('  .amdhsa_user_sgpr_kernarg_segment_ptr 1'); out.append('  .amdhsa_system_sgpr_workgroup_id_x 1')
    out.append('  .amdhsa_float_denorm_mode_32 3')
    out.append('.end_amdhsa_kernel')
    open(outpath, 'w').write('\n'.join(out) + '\n')
    print('wrote', outpath, 'vgprs', m + 1, 'nops', a.nops_inserted, 'LDS', LDS_SIZE)

if __name__ == '__main__':
    main(sys.argv[1] if len(sys.argv) > 1 else 'cdna_kernels/%s.s' % NAME)
```

```python
import sys, os, re
from asmlib import Asm

NAME = 'adaLN_cond__ssm_conv_h3__moe_arch_mod__prompt'
KN = NAME + '_kernel'
MiB = 1 << 20
WS_U = 0
WS_Z = 4 * MiB
WS_H2 = 6 * MiB
WS_SM = 8 * MiB
SM_MOD = 0
SM_KEY = 32768
SM_ACT = 65536
SM_X1 = 98304
SM_SPEC = 131072
WS_SIZE = 9 * MiB
WS_STAMP = 14 * MiB
STAMP = int(os.environ.get('STAMP', '0'))
SPIN_LIMIT = 1 << 14
DBGSPAN = int(os.environ.get('DBGSPAN', '0'))
PACE = int(os.environ.get('PACE', '1'))
PRIO = int(os.environ.get('PRIO', '1'))
WSCHED = os.environ.get('WSCHED', 'F')
NT = ' nt' if int(os.environ.get('NT', '0')) else ''
NTW = ' nt' if int(os.environ.get('NTW', '0')) else ''
WSOFF = int(os.environ.get('WSOFF', '240')) * MiB
OWNER = int(os.environ.get('OWNER', '1'))
LOG2E = 0x3fb8aa3b
a = Asm()
SST = 70
SPEC = int(os.environ.get('SPEC', '1'))
UWIN = 2048; UDELTA = 400; UTRIES = int(os.environ.get('UTRIES', '20'))
FLO, FHI = 28, 29
TAILST = int(os.environ.get('TAILST', '0'))
def tstamp(i):
    if STAMP and TAILST: a('s_memrealtime s[%d:%d]' % (SST + 2 * i, SST + 1 + 2 * i))
def stamp(i):
    if TAILST and 1 <= i <= 6: return
    if STAMP: a('s_memrealtime s[%d:%d]' % (SST + 2 * i, SST + 1 + 2 * i))
def srd(s, ptr, size, add=0):
    if add:
        a('s_add_u32 s%d, s%d, 0x%x' % (s, ptr, add)); a('s_addc_u32 s%d, s%d, 0' % (s + 1, ptr + 1))
    else:
        a('s_mov_b32 s%d, s%d' % (s, ptr)); a('s_mov_b32 s%d, s%d' % (s + 1, ptr + 1))
    a('s_mov_b32 s%d, 0x%x' % (s + 2, size)); a('s_mov_b32 s%d, 0x00020000' % (s + 3))
MASK = 3
def lo(d, s): a('v_lshlrev_b32 v%d, 16, v%d' % (d, s))
def hi(d, s): a('v_and_b32 v%d, s%d, v%d' % (d, MASK, s))
def rb(d, s): a('v_cvt_pk_bf16_f32 v%d, 0, v%d' % (d, s))
def pk(op, d, x, y, extra=''): a('v_pk_%s_f32 v[%d:%d], v[%d:%d], %s %s' % (op, d, d + 1, x, x + 1, y, extra))
def vp(r): return 'v[%d:%d]' % (r, r + 1)
def vq(r): return 'v[%d:%d]' % (r, r + 3)
def sp(r): return 's[%d:%d]' % (r, r + 1)
def sq(r): return 's[%d:%d]' % (r, r + 3)
def unpack(d, s, n):
    for i in range(n): lo(d + 2 * i, s + i); hi(d + 2 * i + 1, s + i)
DPPS = ('row_shr:1 row_mask:0xf bank_mask:0xf', 'row_shr:2 row_mask:0xf bank_mask:0xf', 'row_shr:4 row_mask:0xf bank_mask:0xf',
        'row_shr:8 row_mask:0xf bank_mask:0xf', 'row_bcast:15 row_mask:0xa bank_mask:0xf', 'row_bcast:31 row_mask:0xc bank_mask:0xf')
def wave_reduce(op, regs):
    for ctl in DPPS:
        for r in regs: a('%s_dpp v%d, v%d, v%d %s' % (op, r, r, r, ctl))
def silu_like(D, X, n, sneg, mulx=True):
    for i in range(n): a('v_mul_f32 v%d, s%d, v%d' % (D + i, sneg, X + i))
    for i in range(n): a('v_exp_f32 v%d, v%d' % (D + i, D + i))
    for i in range(n): a('v_add_f32 v%d, 1.0, v%d' % (D + i, D + i))
    for i in range(n): a('v_rcp_f32 v%d, v%d' % (D + i, D + i))
    if mulx:
        for i in range(n): a('v_mul_f32 v%d, v%d, v%d' % (D + i, D + i, X + i))
    for i in range(n): rb(D + i, D + i)
def barrier(): a('s_barrier')

L_WM = 0; L_KEYL = 32; L_SEL = 64; L_RANK = 2560; L_SEG = 2048; L_CNT = 640; L_FLAG = 644; L_KVA = 648; L_IMGC = 652; L_UGO = 656; L_UST = 660; L_EP = 664; L_YC = 672; L_MR = 676; L_QD = 680; L_MP = 704
L_WR = 1024; L_NB = 2048; L_XB = L_NB + 8192; L_MOD = L_XB + 8192; L_Y = L_MOD + 6144 + 2048
L_LIST = L_Y; L_P = L_Y + 8192; L_RK = L_Y; L_RV = L_Y + 9216
L_IMG = L_Y + 32768
L_U1 = 0; L_U0 = 4576; L_KA = 9216; L_KB = 13440; L_CB = 17664
assert L_IMG % 256 == 0
L_ZT = L_IMG + L_KA; ZP = 1040
L_W = L_IMG + 2 * L_CB; L_GU = 8256; L_WMT = L_W + 16896; L_SC = L_WMT + 16384
LDS_SIZE = L_W + 57344
Q, KP, VP_, SHK, SSMK, SSMD, WRP = 16, 18, 20, 22, 24, 26, 30
WG_, WU_, WD_, CP, WMOD, OUT, DBG, WS = 32, 34, 36, 38, 40, 42, 44, 46
T0S, T1S = 14, 15

def ln_stats(X, T, sC, sMB, sRI, vS):
    a('v_readfirstlane_b32 s%d, v%d' % (sC, X)); a('v_readfirstlane_b32 s%d, v%d' % (sC + 1, X))
    for i in range(0, 8, 2): pk('add', T + i, X + i, sp(sC), 'neg_lo:[0,1] neg_hi:[0,1]')
    pk('add', vS, T, vp(T + 2)); pk('mul', vS + 2, T, vp(T))
    pk('add', T, T + 4, vp(T + 6))
    a('v_pk_fma_f32 %s, %s, %s, %s' % (vp(vS + 2), vp(T + 2), vp(T + 2), vp(vS + 2)))
    pk('mul', T + 2, T + 4, vp(T + 4))
    pk('add', vS, vS, vp(T))
    a('v_pk_fma_f32 %s, %s, %s, %s' % (vp(T + 2), vp(T + 6), vp(T + 6), vp(T + 2)))
    a('v_add_f32 v%d, v%d, v%d' % (vS, vS, vS + 1))
    pk('add', vS + 2, vS + 2, vp(T + 2))
    a('v_add_f32 v%d, v%d, v%d' % (vS + 1, vS + 2, vS + 3))
    wave_reduce('v_add_f32', [vS, vS + 1])
    a('v_mul_f32 v%d, 0x3b000000, v%d' % (vS, vS)); a('v_mul_f32 v%d, 0x3b000000, v%d' % (vS + 1, vS + 1))
    a('v_fma_f32 v%d, -v%d, v%d, v%d' % (vS + 1, vS, vS, vS + 1))
    a('v_add_f32 v%d, s%d, v%d' % (vS, sC, vS))
    a('v_max_f32 v%d, 0, v%d' % (vS + 1, vS + 1))
    rb(vS, vS); rb(vS + 1, vS + 1)
    a('v_readlane_b32 s%d, v%d, 63' % (sMB, vS)); a('v_readlane_b32 s%d, v%d, 63' % (sMB + 1, vS))
    a('v_add_f32 v%d, 0x3727c5ac, v%d' % (vS + 1, vS + 1)); rb(vS + 1, vS + 1)
    a('v_sqrt_f32 v%d, v%d' % (vS + 1, vS + 1)); rb(vS + 1, vS + 1)
    a('v_rcp_f32 v%d, v%d' % (vS + 1, vS + 1))
    return lambda: (a('v_readlane_b32 s%d, v%d, 63' % (sRI, vS + 1)), a('v_readlane_b32 s%d, v%d, 63' % (sRI + 1, vS + 1)))
def ln_norm(D, X, sMB, sRI, fin):
    for i in range(0, 8, 2): pk('add', D + i, X + i, sp(sMB), 'neg_lo:[0,1] neg_hi:[0,1]')
    for i in range(8): rb(D + i, D + i)
    fin()
    for i in range(0, 8, 2): pk('mul', D + i, D + i, sp(sRI))
def affine(D, C1, SH):
    for i in range(0, 8, 2): pk('mul', D + i, D + i, vp(C1 + i))
    for i in range(8): rb(D + i, D + i)
    for i in range(0, 8, 2): pk('add', D + i, D + i, vp(SH + i))
    for i in range(8): rb(D + i, D + i)

_pl = [0]
def poll(loads, bad, exec_mask=None):
    n = _pl[0]; _pl[0] += 1
    a('s_mov_b32 s64, 0')
    if exec_mask is not None:
        a('s_mov_b32 exec_lo, 0x%x' % exec_mask); a('s_mov_b32 exec_hi, 0x%x' % exec_mask)
    a.label('poll%d' % n)
    for l in loads: a(l)
    a.wait(vm=0)
    bad()
    a('s_add_u32 s64, s64, 1')
    a('s_and_b64 exec, exec, vcc')
    a('s_cbranch_execz poll%d_done' % n)
    a('s_cmp_lt_u32 s64, %d' % SPIN_LIMIT); a('s_cbranch_scc1 poll%d' % n)
    a.label('poll%d_done' % n)
    a('s_mov_b64 exec, -1')
def envi(n, d): return int(os.environ.get(n, str(d)))
def ppoll(name, loadfn, badfn, n, F, sets, exec_mask=None):
    ns = min(envi('P_%s_NS' % name, envi('P_NS', 1)), len(sets)); gap = envi('P_%s_GAP' % name, envi('P_GAP', 2)); pre = envi('P_%s_PRE' % name, envi('P_PRE', 0))
    if pre: a('s_sleep %d' % pre)
    if ns <= 1:
        poll(loadfn(F), lambda: badfn(F), exec_mask); return
    k = _pl[0]; _pl[0] += 1
    nl = len(loadfn(F))
    a('s_mov_b32 s64, 0')
    if exec_mask is not None:
        a('s_mov_b32 exec_lo, 0x%x' % exec_mask); a('s_mov_b32 exec_hi, 0x%x' % exec_mask)
    for j in range(ns - 1):
        for l in loadfn(sets[j]): a(l)
        if gap: a('s_sleep %d' % gap)
    a.label('pp%d' % k)
    for j in range(ns):
        for l in loadfn(sets[(j + ns - 1) % ns]): a(l)
        a.wait(vm=nl * (ns - 1))
        a.vm = [[] for _ in a.vm]
        badfn(sets[j])
        a('s_mov_b64 s[66:67], exec')
        a('s_andn2_b64 exec, exec, vcc')
        for i in range(n): a('v_mov_b32 v%d, v%d' % (F + i, sets[j] + i))
        a('s_and_b64 exec, s[66:67], vcc')
        a('s_cbranch_execz pp%d_done' % k)
        if gap: a('s_sleep %d' % gap)
    a('s_add_u32 s64, s64, 1')
    a('s_cmp_lt_u32 s64, %d' % SPIN_LIMIT); a('s_cbranch_scc1 pp%d' % k)
    a.label('pp%d_done' % k)
    a('s_mov_b64 exec, -1')
    a.vm = [[('v', b + i) for b in sets[:ns] for i in range(n)]]
def bad_sent(regs, tmp):
    def f():
        rs = list(regs); first = True
        while rs:
            if first:
                x = rs[:3]; rs = rs[3:]; first = False
                a('v_max3_u32 v%d, v%d, v%d, v%d' % (tmp, x[0], x[1], x[2]))
            elif len(rs) >= 2:
                a('v_max3_u32 v%d, v%d, v%d, v%d' % (tmp, tmp, rs[0], rs[1])); rs = rs[2:]
            else:
                a('v_max_u32 v%d, v%d, v%d' % (tmp, tmp, rs[0])); rs = rs[1:]
        a('v_cmp_eq_u32 vcc, -1, v%d' % tmp)
    return f

EPR = 28
def epoch_issue(vaddr0, vdst):
    a('buffer_load_dwordx2 %s, v%d, %s, 0 offen sc1' % (vp(vdst), vaddr0, sq(EPR)))
_ep = [0]
def epoch_finish(vaddr0, vdst):
    n = _ep[0]; _ep[0] += 1
    a('s_mov_b32 s64, 0')
    a.label('ep%d' % n)
    a.wait(vm=0)
    a('v_readfirstlane_b32 s%d, v%d' % (T1S, vdst + 1)); a('v_readfirstlane_b32 s%d, v%d' % (T0S, vdst))
    a('s_add_u32 s64, s64, 1')
    a('s_cmp_lg_u32 s%d, 0' % T1S); a('s_cbranch_scc1 ep%d_done' % n)
    a('s_cmp_ge_u32 s64, %d' % SPIN_LIMIT); a('s_cbranch_scc1 ep%d_done' % n)
    epoch_issue(vaddr0, vdst)
    a('s_branch ep%d' % n)
    a.label('ep%d_done' % n)

def ln1_own_row(qreg, X, T, S, vrow):
    unpack(X, qreg, 4)
    a('ds_write_b128 v%d, %s offset:%d' % (vrow, vq(qreg), L_XB))
    fin = ln_stats(X, T, 60 + 6, 62 + 6, 64 + 0, S) if False else ln_stats(X, T, 48, 50, 52, S)
    ln_norm(T, X, 50, 52, fin)
    for i in range(4): a('v_cvt_pk_bf16_f32 v%d, v%d, v%d' % (X + i, T + 2 * i, T + 2 * i + 1))
    a('ds_write_b128 v%d, %s offset:%d' % (vrow, vq(X), L_NB))

def kv_weights(W, WR):
    for c in range(2):
        lo(W + 0 + c, WR + 2 * c); hi(W + 2 + c, WR + 2 * c); lo(W + 4 + c, WR + 2 * c + 1); hi(W + 6 + c, WR + 2 * c + 1)
def kv_compute(KR, VR, W, KF, S, P, O):
    unpack(KF, KR, 8)
    for i in range(5): pk('mul', S + 2 * i, KF + 2 * i, vp(W + 6))
    for r in range(10): rb(S + r, S + r)
    for t in (1, 2, 3):
        for i in range(5): pk('mul', P + 2 * i, KF + 2 * (i + t), vp(W + 2 * (3 - t)))
        for r in range(10): rb(P + r, P + r)
        for r in range(0, 10, 2): pk('add', S + r, S + r, vp(P + r))
        for r in range(10): rb(S + r, S + r)
    unpack(P, VR, 5)
    for r in range(0, 10, 2): pk('mul', S + r, S + r, vp(P + r))
    for c in range(2):
        a('v_cvt_pk_bf16_f32 v%d, v%d, v%d' % (O + 4 * c, S + 8 + c, S + 6 + c))
        a('v_cvt_pk_bf16_f32 v%d, v%d, v%d' % (O + 4 * c + 1, S + 4 + c, S + 2 + c))
        a('v_cvt_pk_bf16_f32 v%d, v%d, 0' % (O + 4 * c + 2, S + c))
def u_poll_build(G, R=56):
    a('v_lshlrev_b32 v%d, 4, v0' % (G + 8))
    a('s_lshl_b32 s8, s6, 14'); a('s_add_u32 s9, s8, 8192')
    a('v_lshlrev_b32 v%d, 3, v0' % (G + 9)); a('v_add_u32 v%d, %d, v%d' % (G + 9, L_IMG, G + 9))
    n = _pl[0]; _pl[0] += 1
    a('s_mov_b32 s64, 0')
    a.label('uf%d' % n)
    a('buffer_load_dwordx4 %s, v%d, %s, s8 offen sc1' % (vq(G), G + 8, sq(R))); a('buffer_load_dwordx4 %s, v%d, %s, s9 offen sc1' % (vq(G + 4), G + 8, sq(R)))
    a.wait(vm=0)
    a('v_subrev_u32 v%d, s%d, v%d' % (G + 10, FLO, G + 3)); a('v_subrev_u32 v%d, s%d, v%d' % (G + 11, FLO, G + 7))
    a('v_xor_b32 v%d, s%d, v%d' % (G + 12, FHI, G + 2)); a('v_xor_b32 v%d, s%d, v%d' % (G + 13, FHI, G + 6))
    a('v_max_u32 v%d, v%d, v%d' % (G + 10, G + 10, G + 11)); a('v_or_b32 v%d, v%d, v%d' % (G + 12, G + 12, G + 13))
    a('v_and_or_b32 v%d, v%d, s3, v%d' % (G + 10, G + 12, G + 10))
    a('v_cmp_le_u32 vcc, %d, v%d' % (UWIN, G + 10))
    a('s_add_u32 s64, s64, 1')
    a('s_and_b64 exec, exec, vcc')
    a('s_cbranch_execz uf%d_done' % n)
    a('s_cmp_lt_u32 s64, %d' % UTRIES); a('s_cbranch_scc1 uf%d' % n)
    a('s_branch uf%d_more' % n)
    a.cold_begin()
    a.label('uf%d_more' % n)
    a('s_mov_b64 exec, -1')
    srd(48, KP, 2 * MiB); srd(52, VP_, 2 * MiB)
    a('v_lshlrev_b32 v56, 12, v0'); a('v_sub_u32 v56, %d, v56' % (2044 * 1024)); a('s_lshl_b32 s64, s6, 2'); a('v_add_u32 v56, s64, v56')
    a('v_subrev_u32 v57, 4096, v56'); a('v_mov_b32 v58, 0x80000000'); a('v_cmp_eq_u32 vcc, 511, v0'); a('v_cndmask_b32 v57, v57, v58, vcc')
    a('s_lshl_b32 s64, s6, 4'); a('v_mov_b32 v58, s64')
    for i in range(8): a('buffer_load_dword v%d, v%d, s[48:51], 0 offen offset:%d' % (104 + i, 57 if i < 4 else 56, 1024 * (i & 3)))
    a('buffer_load_dword v112, v57, s[52:55], 0 offen offset:3072')
    for i in range(4): a('buffer_load_dword v%d, v56, s[52:55], 0 offen offset:%d' % (113 + i, 1024 * i))
    a('global_load_dwordx4 v[120:123], v58, %s' % sp(SHK))
    kv_weights(124, 120)
    kv_compute(104, 112, 124, 60, 80, 92, G)
    a.nop(2)
    a('s_branch uf%d_done' % n)
    a.cold_end()
    a.label('uf%d_done' % n)
    a('s_mov_b64 exec, -1')
    for ch in range(2):
        g = G + 4 * ch
        a('ds_write_b64 v%d, %s offset:%d' % (G + 9, vp(g), L_U1 + L_CB * ch))
        a('v_alignbit_b32 v%d, v%d, v%d, 16' % (G + 10 + 2 * ch, g + 1, g)); a('v_alignbit_b32 v%d, v%d, v%d, 16' % (G + 11 + 2 * ch, g + 2, g + 1))
        a('ds_write_b64 v%d, %s offset:%d' % (G + 9, vp(G + 10 + 2 * ch), L_U0 + L_CB * ch))


_lw = [0]
def lds_wait(addr_v, tmp_v, off, thresh, sleep=1):
    n = _lw[0]; _lw[0] += 1
    a('s_mov_b32 s64, 0')
    a.label('lw%d' % n)
    a('ds_read_b32 v%d, v%d offset:%d' % (tmp_v, addr_v, off))
    a('s_add_u32 s64, s64, 1')
    a.wait(lg=0)
    a('v_readfirstlane_b32 s65, v%d' % tmp_v)
    a('s_cmp_ge_u32 s65, %d' % thresh); a('s_cbranch_scc1 lw%d_ok' % n)
    if sleep: a('s_sleep %d' % sleep)
    a('s_cmp_lt_u32 s64, %d' % (SPIN_LIMIT * 16)); a('s_cbranch_scc1 lw%d' % n)
    a.label('lw%d_ok' % n)
def lds_epoch(addr_v, tmp):
    n = _lw[0]; _lw[0] += 1
    a('s_mov_b32 s64, 0')
    a.label('lw%d' % n)
    a('ds_read_b64 %s, v%d offset:%d' % (vp(tmp), addr_v, L_EP))
    a('s_add_u32 s64, s64, 1')
    a.wait(lg=0)
    a('v_readfirstlane_b32 s%d, v%d' % (T1S, tmp + 1)); a('v_readfirstlane_b32 s%d, v%d' % (T0S, tmp))
    a('s_cmp_lg_u32 s%d, 0' % T1S); a('s_cbranch_scc1 lw%d_ok' % n)
    a('s_cmp_lt_u32 s64, %d' % (SPIN_LIMIT * 16)); a('s_cbranch_scc1 lw%d' % n)
    a.label('lw%d_ok' % n)
def lds_inc(zero_v, one_v, off):
    a('s_mov_b64 exec, 1'); a('ds_add_u32 v%d, v%d offset:%d' % (zero_v, one_v, off)); a('s_mov_b64 exec, -1')

WDE = int(os.environ.get('WDE', '5'))
def wd_addr(V):
    a('v_lshrrev_b32 v%d, 1, v1' % V)
    a('v_and_b32 v%d, 0x13, v%d' % (V + 1, V)); a('v_bfe_u32 v%d, v%d, 2, 1' % (V + 2, V)); a('v_lshl_or_b32 v%d, v%d, 3, v%d' % (V + 1, V + 2, V + 1))
    a('v_bfe_u32 v%d, v%d, 3, 1' % (V + 2, V)); a('v_lshl_or_b32 v%d, v%d, 2, v%d' % (V + 1, V + 2, V + 1))
    a('v_lshlrev_b32 v%d, 10, v%d' % (V, V + 1)); a('v_and_b32 v%d, 1, v1' % (V + 1)); a('v_lshl_add_u32 v%d, v%d, 4, v%d' % (V, V + 1, V))

def gen():
    a.raw('.p2align 8'); a.raw('.globl %s' % KN); a.raw('.type %s,@function' % KN); a.label(KN); a.reset()
    a('s_load_dwordx16 s[16:31], s[0:1], 0')
    a('s_cmp_ge_u32 s2, 256'); a('s_cbranch_scc1 k_exit')
    if STAMP:
        for i in range(16): a('s_mov_b32 s%d, 0' % (SST + 2 * i))
    stamp(0)
    a('v_lshrrev_b32 v1, 6, v0'); a('s_and_b32 s4, s2, 7'); a('v_readfirstlane_b32 s7, v1')
    a('s_lshr_b32 s5, s2, 3')
    a('v_and_b32 v1, 63, v0')
    a('s_cmp_ge_u32 s7, 8'); a('s_cbranch_scc1 k_aux')
    st0 = a.save()
    def common2():
        a('s_mov_b32 s3, 0xffff0000')
        a('s_lshl_b32 s6, s4, 5'); a('s_add_u32 s6, s6, s5')
        a('v_lshlrev_b32 v2, 4, v1')
        a('s_lshl_b32 s12, s6, 3'); a('s_add_u32 s12, s12, s7')
        a('s_lshl_b32 s13, s12, 10')
    a('v_lshrrev_b32 v3, 5, v1'); a('s_lshl_b32 s8, s7, 1'); a('s_add_u32 s8, s8, 2'); a('v_add_u32 v4, s8, v3')
    a('v_xor_b32 v4, v4, v1'); a('v_and_b32 v4, 7, v4'); a('v_lshrrev_b32 v5, 3, v1'); a('v_lshlrev_b32 v5, 10, v5'); a('v_lshl_add_u32 v4, v4, 4, v5')
    a('s_lshl_b32 s8, s5, 16'); a('s_lshl_b32 s9, s4, 7'); a('s_add_u32 s8, s8, s9'); a('s_lshl_b32 s9, s7, 13'); a('s_add_u32 s9, s9, s8')
    a('s_lshl_b32 s10, s7, 10'); a('s_add_u32 s10, s10, %d' % (L_RK + 1024)); a('s_mov_b32 m0, s10'); a('s_add_u32 s10, s10, %d' % (L_RV - L_RK))
    a('s_mov_b32 s50, 0x200000'); a('s_mov_b32 s51, 0x00020000'); a('s_mov_b32 s54, 0x200000'); a('s_mov_b32 s55, 0x00020000')
    a('v_lshrrev_b32 v6, 4, v1'); a('s_lshl_b32 s11, s4, 9'); a('s_lshl_b32 s64, s7, 6'); a('s_add_u32 s11, s11, s64'); a('v_lshl_add_u32 v7, v6, 4, s11')
    a.wait(lg=0)
    a('s_mov_b64 s[48:49], %s' % sp(KP)); a('s_mov_b64 s[52:53], %s' % sp(VP_))
    a('buffer_load_dwordx4 v4, s[48:51], s9 offen lds')
    a('s_memrealtime s[%d:%d]' % (FLO, FHI))
    a('s_mov_b32 m0, s10'); a('s_cmp_ge_u32 s7, 2')
    a('buffer_load_dwordx4 v4, s[52:55], s9 offen lds')
    WR = 36
    a('global_load_dwordx4 %s, v7, %s' % (vq(WR), sp(SHK)))
    a('s_cbranch_scc1 k_nohalo')
    a('v_xor_b32 v4, v3, v1'); a('v_and_b32 v4, 7, v4'); a('v_lshl_add_u32 v4, v4, 4, v5')
    a('s_sub_u32 s8, s8, 8192'); a('s_cmp_eq_u32 s5, 0'); a('s_cselect_b32 s8, 0x80000000, s8')
    a('s_cmp_eq_u32 s7, 0'); a('s_cbranch_scc0 k_halov')
    a('s_mov_b32 m0, %d' % L_RK); a.nop(1)
    a('buffer_load_dwordx4 v4, s[48:51], s8 offen lds')
    a('s_branch k_nohalo')
    a.label('k_halov')
    a('s_mov_b32 m0, %d' % L_RV); a.nop(1)
    a('buffer_load_dwordx4 v4, s[52:55], s8 offen lds')
    a.label('k_nohalo')
    stamp(1)
    a('s_load_dwordx16 s[32:47], s[0:1], 64')
    common2()
    a('s_lshl_b32 s64, s6, 2'); a('s_load_dword s69, %s, s64' % sp(SSMD))
    barrier()
    a('v_and_b32 v8, 15, v1'); a('v_sub_u32 v9, 15, v8')
    a('v_lshlrev_b32 v10, 9, v9'); a('v_lshl_add_u32 v10, v6, 2, v10')
    a('v_add_u32 v11, 1, v9'); a('v_xor_b32 v11, s7, v11'); a('v_and_b32 v11, 7, v11'); a('v_lshl_add_u32 v11, v11, 4, v10'); a('v_add_u32 v11, %d, v11' % (L_RK + 512))
    a('v_add_u32 v12, 2, v9'); a('v_xor_b32 v12, s7, v12'); a('v_and_b32 v12, 7, v12'); a('v_lshl_add_u32 v12, v12, 4, v10'); a('v_add_u32 v12, %d, v12' % (L_RK + 1024))
    a('v_lshlrev_b32 v13, 14, v6'); a('v_lshl_add_u32 v13, v8, 4, v13')
    a('s_lshl_b32 s60, s4, 19'); a('s_lshl_b32 s9, s7, 16'); a('s_add_u32 s60, s60, s9'); a('s_lshl_b32 s9, s5, 8'); a('s_sub_u32 s60, s60, s9'); a('s_add_u32 s60, s60, 7936'); a('s_add_u32 s61, s60, 8192')
    for i in range(4, 7): a('v_mov_b32 v%d, 0' % i)
    a('v_mov_b32 v7, 0'); a('v_mov_b32 v8, 1')
    srd(56, WS, WS_SIZE, WSOFF)
    a('s_and_b32 s8, s7, 1'); a('s_lshr_b32 s9, s7, 1'); a('s_and_b32 s9, s9, 1')
    a('s_mul_i32 s10, s8, %d' % L_CB); a('s_add_u32 s10, s10, %d' % L_IMG)
    a('s_lshl_b32 s11, s6, 1'); a('s_add_u32 s11, s11, s8'); a('s_lshl_b32 s11, s11, 12')
    a('s_lshl_b32 s66, s9, 2'); a('s_add_u32 s66, s66, s11')
    a('s_mul_i32 s67, s9, %d' % (L_KB - L_KA)); a('s_add_u32 s67, s67, s10'); a('s_add_u32 s67, s67, %d' % L_KA)
    a('s_add_u32 s64, s67, 64'); a('s_mov_b32 m0, s64')
    srd(52, SSMK, 2 * MiB)
    a('s_sub_u32 s%d, s%d, %d' % (FLO, FLO, UDELTA)); a('s_lshl_b32 s%d, s%d, 16' % (FHI, FHI)); a('s_or_b32 s%d, s%d, 0x80000000' % (FHI, FHI))
    a.wait(vm=0); stamp(2)
    lds_inc(4, 8, L_KVA)
    a('s_memrealtime s[%d:%d]' % (T0S, T1S))
    W = 44
    kv_weights(W, WR)
    lds_wait(4, 14, L_KVA, 8, sleep=0)
    KR = 16; VR = 24
    for i in range(8): a('ds_read_b32 v%d, v%d offset:%d' % (KR + i, 11 if i < 4 else 12, 128 * (i & 3)))
    a('ds_read_b32 v%d, v11 offset:%d' % (VR, 384 + L_RV - L_RK))
    for i in range(4): a('ds_read_b32 v%d, v12 offset:%d' % (VR + 1 + i, 128 * i + L_RV - L_RK))
    a('s_cmp_lt_u32 s7, 4'); a('s_cbranch_scc1 k_nokdma')
    for i in range(4): a('buffer_load_dwordx4 v2, s[52:55], s66 offen offset:%d lds' % (1024 * i))
    a('buffer_load_dword v9, v4, s[52:55], s11 offen')
    a.label('k_nokdma')
    a.vm = []
    O = 60
    a('s_lshl_b32 s%d, s%d, 16' % (T1S, T1S)); a('s_or_b32 s%d, s%d, 0x80000000' % (T1S, T1S))
    kv_compute(KR, VR, W, 60, 80, 92, 104)
    O = 104
    for c in range(2):
        a('v_mov_b32 v%d, s%d' % (O + 4 * c + 3, T0S)); a('v_or_b32 v%d, s%d, v%d' % (O + 4 * c + 2, T1S, O + 4 * c + 2))
    for c in range(2): a('buffer_store_dwordx4 %s, v13, s[56:59], s%d offen sc1' % (vq(O + 4 * c), 60 + c))
    lds_inc(4, 8, L_UST)
    stamp(3)
    a('s_cmp_ge_u32 s7, 4'); a('s_cbranch_scc1 k_helper')
    st1h = a.save()
    a('s_mul_i32 s11, s9, %d' % L_U0); a('s_add_u32 s11, s11, s10')
    a('v_add_u32 v3, s11, v2')
    a('s_mov_b32 exec_lo, 0x0fffffff'); a('s_mov_b32 exec_hi, 0')
    a('ds_write_b128 v3, v[4:7] offset:4096')
    a('s_mov_b64 exec, -1')
    a('v_and_b32 v10, 15, v1'); a('v_lshrrev_b32 v11, 4, v1'); a('v_lshrrev_b32 v12, 1, v10'); a('v_and_b32 v13, 1, v10')
    a('v_lshlrev_b32 v3, 6, v12'); a('v_lshl_add_u32 v3, v11, 4, v3')
    a('v_mul_u32_u24 v4, %d, v13' % (L_U0 - L_U1)); a('v_add_u32 v3, v3, v4')
    a('s_lshl_b32 s64, s9, 8'); a('s_sub_u32 s65, s10, s64'); a('s_add_u32 s65, s65, %d' % (L_U0 + 283 * 16 - 64 * 59))
    a('v_sub_u32 v3, s65, v3')
    a('v_lshlrev_b32 v4, 3, v12'); a('v_lshlrev_b32 v5, 4, v11'); a('v_sub_u32 v4, v4, v5')
    a('v_mul_u32_u24 v5, %d, v13' % (L_KB + 62 * 8 - L_KA - 63 * 8)); a('v_sub_u32 v4, v4, v5')
    a('s_sub_u32 s65, s10, s64'); a('s_add_u32 s65, s65, %d' % (L_KB + 62 * 8 - 192))
    a('v_add_u32 v4, s65, v4')
    a('v_lshlrev_b32 v5, 8, v11'); a('v_lshl_add_u32 v5, v10, 3, v5')
    a('s_lshl_b32 s64, s8, 1'); a('s_add_u32 s64, s64, s9'); a('s_lshl_b32 s64, s64, 13'); a('s_add_u32 s64, s64, %d' % L_Y)
    a('v_add_u32 v5, s64, v5')
    a('v_mov_b32 v7, 1')
    a.wait(vm=0); stamp(4)
    lds_inc(6, 7, L_UGO)
    if envi('UPRE', 12): a('s_sleep %d' % envi('UPRE', 12))
    u_poll_build(40)
    stamp(5)
    a.wait(lg=0)
    lds_inc(6, 7, L_IMGC)
    lds_wait(6, 8, L_IMGC, 8, sleep=0)
    stamp(6)
    if STAMP and envi('CYC', 0): a('s_memtime s[%d:%d]' % (SST + 2, SST + 3))
    if STAMP: a.wait(lg=0)
    if PRIO: a('s_setprio 2')
    ACC = 8; F0 = 40
    def Areg(buf, al): return F0 + buf * 64 + al * 4
    def Breg(buf, be): return F0 + buf * 64 + 32 + be * 4
    def loadA(buf, rp, al): a('ds_read_b128 %s, v3 offset:%d' % (vq(Areg(buf, al)), 64 * (59 - (rp + 8 * al))))
    def loadB(buf, rp, be):
        o = 64 * (8 * be + 3 - rp)
        if envi('READ2', 0):
            base = 4 if o < 2000 else 2
            oo = (o if o < 2000 else o - 2048) // 8
            a('ds_read2_b64 %s, v%d offset0:%d offset1:%d' % (vq(Breg(buf, be)), base, oo, oo + 1))
        else:
            a('ds_read_b64 %s, v4 offset:%d' % (vp(Breg(buf, be)), o)); a('ds_read_b64 %s, v4 offset:%d' % (vp(Breg(buf, be) + 2), o + 8))
    pairs = []
    for m in range(8):
        for o in range(m + 1):
            for (al, be) in ((m, o), (o, m)) if o != m else ((m, m),):
                if al + be <= 7: pairs.append((al, be))
    loads = []
    for m in range(8): loads.append(('A', m)); loads.append(('B', m))
    def do_load(buf, rp, it): (loadA if it[0] == 'A' else loadB)(buf, rp, it[1])
    def ywrite(tt):
        a('ds_write_b64 v5, %s offset:%d' % (vp(ACC + 4 * tt), 1024 * tt)); a('ds_write_b64 v5, %s offset:%d' % (vp(ACC + 4 * tt + 2), 1024 * tt + 128))
    for it in loads: do_load(0, 0, it)
    first = set()
    for rp in range(4):
        buf = rp & 1
        nxt = list(loads) if rp < 3 else []
        order = pairs if rp < 3 else sorted(pairs, key=lambda x: (x[0] + x[1]))
        lastof = {tt: max(i for i, (x, y) in enumerate(order) if x + y == tt) for tt in range(8)}
        if rp and envi('ONEWAIT', 1): a.wait(lg=0)
        for n, (al, be) in enumerate(order):
            t = al + be
            c = '0' if t not in first else vq(ACC + 4 * t)
            first.add(t)
            a('v_mfma_f32_16x16x32_bf16 %s, %s, %s, %s' % (vq(ACC + 4 * t), vq(Areg(buf, al)), vq(Breg(buf, be)), c))
            if nxt and (n % 2 == 1 if not envi('LDEARLY', 1) else (n >= envi('LDSTART', 0) if rp or 1 else True)) and not (rp == 0 and n < envi('LD0', 12)): do_load(buf ^ 1, rp + 1, nxt.pop(0))
            if rp == 3:
                for tt in range(8):
                    if n == lastof[tt] + 8: ywrite(tt)
        if rp == 3:
            for tt in range(8):
                if lastof[tt] + 8 > 35: ywrite(tt)
    stamp(7)
    if STAMP and envi('CYC', 0):
        a('s_memtime s[%d:%d]' % (SST + 4, SST + 5)); a.wait(lg=0)
        a('s_sub_u32 s%d, s%d, s%d' % (SST + 2, SST + 4, SST + 2)); a('s_add_u32 s%d, s%d, s%d' % (SST + 2, SST + 2, SST)); a('s_mov_b32 s%d, 0' % (SST + 4))
    if PRIO: a('s_setprio 0')
    if envi('READ2', 0): a('v_lshlrev_b32 v2, 4, v1')
    a.wait(lg=0)
    lds_inc(6, 7, L_YC)
    lds_epoch(6, 12)
    a('v_lshrrev_b32 v11, 2, v1'); a('v_lshlrev_b32 v11, 7, v11'); a('v_and_b32 v12, 3, v1'); a('v_lshl_add_u32 v11, v12, 4, v11')
    a('s_lshl_b32 s60, s7, 13'); a('s_add_u32 s60, s60, %d' % (WS_SM + SM_MOD)); a('s_add_u32 s61, s60, 4096')
    for l in ['buffer_load_dwordx4 %s, v11, s[56:59], s%d offen offset:%d sc1' % (vq(80 + 4 * g), 60 if g < 2 else 61, 2048 * (g & 1)) for g in range(4)]: a(l)
    a('s_mul_i32 s9, s7, 1536'); a('v_lshlrev_b32 v12, 3, v1'); a('v_add_u32 v12, s9, v12')
    hot_lines = a.lines; a.lines = []
    a.label('k_helper'); a.load(st1h)
    a('v_add_u32 v3, s67, v2'); a('v_mov_b32 v11, 0')
    a('v_cmp_eq_u32 vcc, 3, v1'); a('s_cmp_eq_u32 s9, 1'); a('s_cselect_b64 s[62:63], vcc, 0')
    a('s_sub_u32 s68, s7, 4')
    a.wait(vm=0); stamp(4)
    a('v_cndmask_b32 v7, v7, v9, s[62:63]')
    a('s_mov_b64 exec, 15')
    a('ds_write_b128 v3, v[4:7]')
    a('s_mov_b64 exec, -1')
    if envi('UPRE', 12): a('s_sleep %d' % envi('UPRE', 12))
    u_poll_build(40)
    stamp(5)
    a.wait(lg=0)
    lds_inc(4, 8, L_IMGC)
    srd(48, Q, 2 * MiB); srd(16, WG_, 512 * 3584); srd(20, WU_, 512 * 3584); srd(24, WD_, 1792 * 1024)
    a('s_lshl_b32 s64, s7, 10'); a('s_add_u32 s64, s64, %d' % L_XB); a('s_mov_b32 m0, s64'); a('s_sub_u32 s64, s64, 4096'); a('s_sub_u32 s67, s13, 4096')
    a('buffer_load_dwordx4 v2, s[48:51], s13 offen lds')
    a('s_mov_b32 m0, s64'); a.nop(1)
    a('buffer_load_dwordx4 v2, s[48:51], s67 offen lds')
    a('s_cmp_ge_u32 s5, 28'); a('s_cbranch_scc1 k_h_wd')
    a('s_mul_i32 s10, s4, 28'); a('s_add_u32 s10, s10, s5'); a('s_lshl_b32 s10, s10, 4'); a('s_mul_i32 s64, s68, %d' % (128 * 3584)); a('s_add_u32 s10, s10, s64')
    a('v_mul_u32_u24 v15, 3584, v1')
    a('s_lshl_b32 s9, s68, 11'); a('s_add_u32 s9, s9, %d' % L_W)
    for i in range(2 if WSCHED != 'N' else 0):
        a('s_mov_b32 m0, s9'); a('s_add_u32 s11, s9, %d' % L_GU); a('buffer_load_dwordx4 v15, s[16:19], s10 offen lds')
        a('s_mov_b32 m0, s11'); a('s_add_u32 s9, s9, 1024'); a('buffer_load_dwordx4 v15, s[20:23], s10 offen lds')
        a('s_add_u32 s10, s10, %d' % (64 * 3584))
    a('s_branch k_h_done')
    a.label('k_h_wd')
    a('s_lshl_b32 s8, s4, 2'); a('s_add_u32 s8, s8, s5'); a('s_sub_u32 s8, s8, 28'); a('s_lshl_b32 s8, s8, 5')
    wd_addr(15)
    a('s_mul_i32 s64, s68, %d' % (448 * 1024)); a('s_add_u32 s8, s8, s64')
    a('s_mul_i32 s9, s68, 14336'); a('s_add_u32 s9, s9, %d' % L_W)
    for hw in range(2 if WSCHED != 'N' else 0):
        for i in range(WDE):
            a('s_mov_b32 m0, s9'); a('s_add_u32 s9, s9, %d' % (1024 if i < WDE - 1 else 1024 * (8 - WDE))); a('buffer_load_dwordx4 v15, s[24:27], s8 offen lds')
            a('s_add_u32 s8, s8, %d' % (32768 if i < WDE - 1 else 32768 * (8 - WDE)))
    a.label('k_h_done')
    stamp(7)
    a.wait(vm=0)
    lds_inc(4, 8, L_QD)
    lds_epoch(4, 12)
    a('s_branch k_epi')
    a.label('k_aux'); a.load(st0)
    a('s_load_dwordx16 s[32:47], s[0:1], 64')
    common2()
    a('s_cmp_eq_u32 s7, 8'); a('s_cbranch_scc1 k_loader')
    st0b = a.save()
    a('s_memrealtime s[8:9]')
    a('v_mov_b32 v4, 0')
    srd(EPR, DBG, 256)
    a('s_mov_b64 exec, 1')
    a('s_cmp_lg_u32 s2, 0'); a('s_cbranch_scc1 k_ep_nopub')
    a('s_lshl_b32 s9, s9, 16'); a('s_or_b32 s9, s9, 0x80000000')
    a('v_mov_b32 v8, s8'); a('v_mov_b32 v9, s9')
    a('buffer_store_dwordx2 v[8:9], v4, %s, 0 offen sc1' % sq(EPR))
    a.label('k_ep_nopub')
    a('s_mov_b64 exec, -1')
    srd(56, WS, WS_SIZE, WSOFF)
    for i in range(4): a('v_mov_b32 v%d, -1' % (8 + i))
    if not envi('FEARLY', 0): barrier()
    if envi('FGATE', 0): lds_wait(4, 24, L_KVA, envi('FGATE', 0))
    if envi('FUGO', 0): lds_wait(4, 24, L_UGO, envi('FUGO', 0))
    if envi('FIMG', 0): lds_wait(4, 24, L_IMGC, envi('FIMG', 0))
    a('s_lshl_b32 s8, s6, 13'); a('s_add_u32 s9, s8, %d' % WS_Z); a('s_add_u32 s10, s9, 4096')
    for sr in (9, 10):
        if sr == 10 and envi('FSPLIT', 0): lds_wait(4, 24, L_UGO, 4)
        for i in range(4): a('buffer_store_dwordx4 v[8:11], v2, s[56:59], s%d offen offset:%d sc1' % (sr, 1024 * i))
    a('s_lshl_b32 s8, s6, 7'); a('s_add_u32 s8, s8, %d' % (WS_SM + SM_KEY))
    a('s_lshl_b32 s9, s2, 7'); a('s_add_u32 s9, s9, %d' % (WS_SM + SM_ACT))
    a('s_mov_b64 exec, 0xff')
    a('buffer_store_dwordx4 v[8:11], v2, s[56:59], s8 offen sc1'); a('buffer_store_dwordx4 v[8:11], v2, s[56:59], s9 offen sc1')
    a('s_mov_b64 exec, -1')
    if SPEC:
        a('s_lshl_b32 s8, s6, 11'); a('s_add_u32 s8, s8, %d' % (WS_SM + SM_SPEC))
        a('buffer_store_dwordx4 v[8:11], v2, s[56:59], s8 offen sc1'); a('buffer_store_dwordx4 v[8:11], v2, s[56:59], s8 offen offset:1024 sc1')
    a('s_cmp_ge_u32 s2, 16'); a('s_cbranch_scc1 k_ld_nox1')
    a('s_lshl_b32 s8, s2, 10'); a('s_add_u32 s8, s8, %d' % (WS_SM + SM_X1))
    a('buffer_store_dwordx4 v[8:11], v2, s[56:59], s8 offen sc1')
    a.label('k_ld_nox1')
    if envi('FEARLY', 0): barrier()
    a('s_mov_b64 exec, 1')
    a('s_mov_b32 s64, 0')
    if envi('EPSLEEP', 0): a('s_sleep %d' % envi('EPSLEEP', 0))
    ED = envi('EPDEPTH', 1); EG = envi('EPGAP', 1)
    for j in range(ED - 1): epoch_issue(4, 72 + 2 * j); a('s_sleep %d' % EG)
    a.label('k_ep')
    for j in range(ED):
        epoch_issue(4, 72 + 2 * ((j + ED - 1) % ED))
        a.wait(vm=ED - 1); a.vm = []
        a('v_readfirstlane_b32 s%d, v%d' % (T1S, 73 + 2 * j)); a('v_readfirstlane_b32 s%d, v%d' % (T0S, 72 + 2 * j))
        a('s_cmp_lg_u32 s%d, 0' % T1S); a('s_cbranch_scc1 k_ep_done')
        if ED > 1: a('s_sleep %d' % EG)
    a('s_add_u32 s64, s64, 1'); a('s_cmp_lt_u32 s64, %d' % SPIN_LIMIT); a('s_cbranch_scc1 k_ep')
    a.label('k_ep_done')
    a('v_mov_b32 v70, s%d' % T0S); a('v_mov_b32 v71, s%d' % T1S)
    a('ds_write_b64 v4, v[70:71] offset:%d' % L_EP)
    stamp(1)
    a.wait(lg=0)
    a('s_branch k_end')
    a.label('k_loader'); a.load(st0b)
    for i in range(4): a('v_mov_b32 v%d, 0' % (4 + i))
    a('v_mov_b32 v3, 0')
    a('ds_write_b128 v3, v[4:7] offset:640'); a('ds_write_b128 v3, v[4:7] offset:656'); a('ds_write_b128 v3, v[4:7] offset:672')
    a('v_and_b32 v14, 1, v1'); a('v_lshrrev_b32 v15, 1, v1')
    a('v_and_b32 v16, 0x13, v15'); a('v_bfe_u32 v17, v15, 2, 1'); a('v_lshl_or_b32 v16, v17, 3, v16'); a('v_bfe_u32 v17, v15, 3, 1'); a('v_lshl_or_b32 v16, v17, 2, v16')
    a('v_mul_u32_u24 v12, 6144, v16'); a('v_lshl_add_u32 v12, v14, 4, v12')
    a('s_mul_i32 s68, s4, 24'); a('s_add_u32 s68, s68, s5')
    srd(56, WS, WS_SIZE, WSOFF)
    if not envi('LEARLY', 0): barrier()
    srd(52, WMOD, 3 * MiB); srd(48, CP, 1024)
    if envi('LDGATE', 0) == 1: lds_wait(3, 24, L_KVA, 8)
    CR = 16
    a('buffer_load_dwordx4 %s, v2, s[48:51], 0 offen' % vq(CR))
    srd(48, WRP, 1024)
    a('s_mov_b32 m0, %d' % L_WR)
    a('buffer_load_dwordx4 v2, s[48:51], 0 offen lds')
    a('v_lshrrev_b32 v10, 2, v1'); a('s_lshl_b32 s8, s5, 4'); a('v_add_u32 v10, s8, v10'); a('v_mul_u32_u24 v10, 6144, v10')
    a('v_and_b32 v11, 3, v1'); a('v_lshl_add_u32 v11, v11, 7, v10')
    a('v_lshl_add_u32 v13, v14, 7, v10')
    a('s_mul_i32 s8, s4, 768')
    a('buffer_load_dword v128, v11, s[52:55], s8 offen')
    a('s_mov_b32 exec_lo, 0x33333333'); a('s_mov_b32 exec_hi, 0x33333333')
    a('buffer_load_dword v129, v13, s[52:55], s8 offen offset:512')
    a('s_mov_b64 exec, -1')
    if envi('LEARLY', 0): barrier()
    a.wait(vm=2)
    a('v_mov_b32 v8, 1'); lds_inc(3, 8, L_QD)
    a('s_cmp_ge_u32 s5, 3'); a('s_cbranch_scc1 k_ld_nocode')
    a('s_getpc_b64 s[8:9]')
    a.label('k_pc')
    a('s_sub_u32 s8, s8, k_pc-%s' % KN); a('s_subb_u32 s9, s9, 0')
    a('v_lshlrev_b32 v10, 7, v1'); a('s_lshl_b32 s10, s5, 13'); a('v_add_u32 v10, s10, v10')
    a('s_mov_b32 s10, k_code_end-%s' % KN); a('v_cmp_gt_u32 vcc, s10, v10'); a('s_and_b64 exec, exec, vcc')
    a('s_cbranch_execz k_ld_nocode2')
    a('global_load_dword v130, v10, s[8:9]')
    a.label('k_ld_nocode2'); a('s_mov_b64 exec, -1')
    a.label('k_ld_nocode')
    stamp(1)
    srd(48, WG_, 512 * 3584); srd(28, WU_, 512 * 3584); srd(60, WD_, 1792 * 1024)
    a('v_lshrrev_b32 v10, 2, v1'); a('s_lshl_b32 s8, s5, 4'); a('v_add_u32 v10, s8, v10'); a('v_mul_u32_u24 v10, 3584, v10')
    a('v_and_b32 v11, 3, v1'); a('v_lshl_add_u32 v10, v11, 7, v10')
    a('s_mul_i32 s8, s4, 448'); a('s_and_b32 s8, s8, 0xffffff80')
    a('s_mul_i32 s9, s5, 56'); a('v_add_u32 v11, s9, v1'); a('v_lshlrev_b32 v11, 10, v11'); a('s_lshl_b32 s9, s4, 7')
    def touches():
        a('buffer_load_dword v164, v10, s[48:51], s8 offen' + NTW); a('buffer_load_dword v165, v10, s[28:31], s8 offen' + NTW)
        a('s_mov_b32 exec_hi, 0x00ffffff')
        a('buffer_load_dword v166, v11, s[60:63], s9 offen' + NTW)
        a('s_mov_b64 exec, -1')
    a.vm = []
    C = 24; E = 32
    a('v_lshrrev_b32 v6, 4, v1')
    a('v_lshl_add_u32 v8, v14, 2, v6'); a('v_lshlrev_b32 v8, 4, v8')
    a('s_cmp_ge_u32 s5, 24'); a('s_cbranch_scc1 k_ld_nowm')
    unpack(C, CR, 4)
    a('s_mov_b32 s64, 0x%x' % (LOG2E | 0x80000000))
    silu_like(E, C, 8, 64)
    for i in range(4): a('v_perm_b32 v%d, v%d, v%d, s65' % (CR + i, E + 2 * i + 1, E + 2 * i)) if False else a('v_cvt_pk_bf16_f32 v%d, v%d, v%d' % (CR + i, E + 2 * i, E + 2 * i + 1))
    a('v_add_u32 v13, %d, v2' % L_SC)
    a('ds_write_b128 v13, %s' % vq(CR))
    a('v_lshlrev_b32 v13, 4, v6'); a('v_add_u32 v13, %d, v13' % L_SC)
    a('v_and_b32 v20, 3, v1'); a('v_bfe_u32 v21, v1, 2, 2')
    a('v_lshrrev_b32 v22, 1, v6'); a('v_lshlrev_b32 v22, 9, v22'); a('v_and_b32 v23, 1, v6'); a('v_lshl_add_u32 v22, v23, 7, v22')
    a('v_lshl_add_u32 v22, v21, 5, v22'); a('v_lshl_add_u32 v22, v20, 3, v22'); a('v_add_u32 v22, %d, v22' % L_WMT)
    a.wait(lg=0)
    SCB = 32; WF = 96
    for i in range(16): a('ds_read_b128 %s, v13 offset:%d' % (vq(SCB + 4 * i), 64 * i))
    lds_wait(3, 24, L_UST, 8)
    a('s_lshl_b32 s10, s68, 5'); a('s_mov_b32 s11, %d' % L_WMT)
    for i in range(16):
        a('s_mov_b32 m0, s11'); a('s_add_u32 s11, s11, 1024'); a('buffer_load_dwordx4 v12, s[52:55], s10 offen lds'); a('s_add_u32 s10, s10, %d' % (32 * 6144))
    a.vm = []
    assert WSCHED in 'FN'
    a.wait(vm=0); a.vm = []
    stamp(2)
    for i in range(16):
        for hh in range(2): a('ds_read_b64_tr_b16 %s, v22 offset:%d' % (vp(WF + 4 * i + 2 * hh), 1024 * i + 256 * hh))
    a('s_setprio 3')
    for i in range(16):
        a('v_mfma_f32_16x16x32_bf16 %s, %s, %s, %s' % (vq(24 + 4 * (i & 1)), vq(WF + 4 * i), vq(SCB + 4 * i), '0' if i < 2 else vq(24 + 4 * (i & 1))))
    a('s_lshr_b32 s64, s68, 5'); a('s_cmp_eq_u32 s64, 1'); a('s_cselect_b32 s66, 1.0, 0'); a('s_cmp_eq_u32 s64, 4'); a('s_cselect_b32 s66, 1.0, s66')
    for i in range(4): a('v_add_f32 v%d, v%d, v%d' % (24 + i, 24 + i, 28 + i))
    for i in range(4): rb(24 + i, 24 + i)
    for i in range(4): a('v_add_f32 v%d, s66, v%d' % (24 + i, 24 + i))
    a('v_cvt_pk_bf16_f32 v40, v24, v25'); a('v_cvt_pk_bf16_f32 v41, v26, v27')
    a.label('k_ld_nowm')
    a('s_lshl_b32 s66, s6, 7'); a('s_add_u32 s66, s66, %d' % (WS_SM + SM_MOD))
    lds_epoch(3, 44)
    a('v_mov_b32 v42, s%d' % T0S); a('v_mov_b32 v43, s%d' % T1S)
    a('s_mov_b32 exec_lo, 0x00030003'); a('s_mov_b32 exec_hi, 0x00030003')
    a('buffer_store_dwordx4 v[40:43], v8, s[56:59], s66 offen sc1')
    a('s_mov_b64 exec, -1')
    stamp(3)
    TG = envi('TGATE', 2)
    if TG == 1: lds_wait(3, 24, L_UST, 8)
    if TG == 2: lds_wait(3, 24, L_UGO, 4)
    if WSCHED == 'F': touches(); a.vm = []
    a('s_branch k_end')
    side_lines = a.lines; a.lines = hot_lines
    a.cold = side_lines + getattr(a, 'cold', [])
    a.label('k_epi')
    a('s_lshl_b32 s64, s7, 10'); a('v_add_u32 v17, s64, v2')
    a('v_lshrrev_b32 v18, 1, v17'); a('v_sub_u32 v18, %d, v18' % (L_IMG + L_U1 + 4088))
    a('s_lshl_b32 s10, s6, 13'); a('s_add_u32 s10, s10, %d' % WS_Z)
    a.wait(lg=0)
    a('s_lshl_b32 s8, s69, 16'); a('s_and_b32 s9, s69, s3')
    a('v_mov_b32 v16, 0')
    lds_wait(16, 19, L_YC, 4, sleep=0); stamp(8)
    a('ds_read_b64 v[20:21], v18'); a('ds_read_b64 v[22:23], v18 offset:%d' % L_CB)
    for i in range(4): a('ds_read_b128 %s, v17 offset:%d' % (vq(32 + 4 * i), L_Y + 8192 * i))
    U = 48
    for ch in range(2):
        hi(U + 4 * ch + 0, 21 + 2 * ch); lo(U + 4 * ch + 1, 21 + 2 * ch); hi(U + 4 * ch + 2, 20 + 2 * ch); lo(U + 4 * ch + 3, 20 + 2 * ch)
    for ch in range(2):
        for i in range(4): a('v_mul_f32 v%d, s%d, v%d' % (U + 4 * ch + i, 8 + ch, U + 4 * ch + i))
    for i in range(8): rb(U + i, U + i)
    for ch in range(2):
        for i in (0, 2): pk('add', 32 + 8 * ch + i, 32 + 8 * ch + i, vp(36 + 8 * ch + i))
    for ch in range(2):
        for i in range(4): rb(32 + 8 * ch + i, 32 + 8 * ch + i)
    for ch in range(2):
        for i in (0, 2): pk('add', 32 + 8 * ch + i, 32 + 8 * ch + i, vp(U + 4 * ch + i))
    for i in range(4): a('v_cvt_pk_bf16_f32 v%d, v%d, v%d' % (56 + i, 32 + i, 40 + i))
    for i in range(4): a('v_min_u32 v%d, -2, v%d' % (56 + i, 56 + i))
    a('buffer_store_dwordx4 v[56:59], v17, s[56:59], s10 offen sc1')
    stamp(9)
    a('s_cmp_ge_u32 s7, 4'); a('s_cbranch_scc1 k_nomod')
    def badm():
        for g in range(4):
            a('v_xor_b32 v%d, s%d, v%d' % (48 + 2 * g, T0S, 80 + 4 * g + 2)); a('v_xor_b32 v%d, s%d, v%d' % (49 + 2 * g, T1S, 80 + 4 * g + 3))
        a('v_or3_b32 v48, v48, v49, v50'); a('v_or3_b32 v51, v51, v52, v53'); a('v_or3_b32 v48, v48, v54, v55'); a('v_or_b32 v48, v48, v51')
        a('v_cmp_ne_u32 vcc, 0, v48')
    a.wait(vm=1)
    badm()
    a('s_and_b64 exec, exec, vcc'); a('s_cbranch_execz k_modok')
    a('s_mov_b32 s64, 0')
    a.label('k_modp')
    for l in ['buffer_load_dwordx4 %s, v11, s[56:59], s%d offen offset:%d sc1' % (vq(80 + 4 * g), 60 if g < 2 else 61, 2048 * (g & 1)) for g in range(4)]: a(l)
    a.wait(vm=0)
    badm()
    a('s_add_u32 s64, s64, 1'); a('s_and_b64 exec, exec, vcc'); a('s_cbranch_execz k_modok')
    a('s_cmp_lt_u32 s64, %d' % SPIN_LIMIT); a('s_cbranch_scc1 k_modp')
    a.label('k_modok')
    a('s_mov_b64 exec, -1')
    for g in (0, 2): a('ds_write_b64 v12, %s offset:%d' % (vp(80 + 4 * g), L_MOD + 768 * (g >> 1)))
    a('s_mov_b32 exec_hi, 0')
    for g in (1, 3): a('ds_write_b64 v12, %s offset:%d' % (vp(80 + 4 * g), L_MOD + 768 * (g >> 1) + 512))
    a('s_mov_b64 exec, -1')
    a('v_mov_b32 v12, 1')
    a.wait(lg=0)
    lds_inc(16, 12, L_MR)
    a.label('k_nomod')
    X = 24; T = 32; H = 40; Z = 48; S = 60; M = 64; WRr = 112; H2P = 128
    lds_wait(16, 18, L_QD, 5)
    a('ds_read_b128 v[12:15], v17 offset:%d' % L_XB)
    a('ds_read_b128 v[20:23], v2 offset:%d' % L_WR)
    a('v_lshrrev_b32 v3, 1, v0'); a('v_and_b32 v4, 1, v0')
    a('v_lshlrev_b32 v5, 13, v3'); a('v_lshl_add_u32 v5, v4, 4, v5')
    a('v_mul_u32_u24 v6, %d, v4' % (4 * ZP)); a('v_lshl_add_u32 v6, v3, 2, v6'); a('v_add_u32 v6, %d, v6' % L_ZT)
    a('s_mul_i32 s64, s7, %d' % ZP); a('s_add_u32 s64, s64, %d' % L_ZT); a('v_add_u32 v7, s64, v2')
    a('v_lshlrev_b32 v19, 7, v3'); a('v_lshl_add_u32 v19, v4, 4, v19')
    a('s_lshl_b32 s11, s6, 5'); a('s_add_u32 s11, s11, %d' % WS_Z)
    MR = 120
    unpack(X, 12, 4)
    fin = ln_stats(X, T, 48, 50, 52, S)
    ln_norm(H, X, 50, 52, fin)
    for i in range(8): rb(H + i, H + i)
    unpack(WRr, 20, 4)
    lds_wait(16, 17, L_MR, 4)
    for i in range(6): a('ds_read_b128 %s, v2 offset:%d' % (vq(MR + 4 * i), L_MOD + 1024 * i))
    for i in (1, 0): unpack(M + 8 * i, MR + 4 * i, 4)
    affine(H, M + 8, M + 0)
    for i in range(2, 6): unpack(M + 8 * i, MR + 4 * i, 4)
    a.wait(vm=0); stamp(10)
    ppoll('Z', lambda B: ['buffer_load_dwordx4 %s, v5, s[56:59], s11 offen sc1' % vq(B)], lambda B: bad_sent([B, B + 1, B + 2, B + 3], 16)(), 4, 12, [144, 148, 152])
    stamp(11)
    for i in range(4): a('ds_write_b32 v6, v%d offset:%d' % (12 + i, ZP * i))
    a.wait(lg=0); barrier()
    a('ds_read_b128 v[12:15], v7')
    unpack(Z, 12, 4)
    for i in range(0, 8, 2): pk('mul', H + i, H + i, vp(Z + i))
    for i in range(8): rb(H + i, H + i)
    for i in range(0, 8, 2): pk('mul', H + i, H + i, vp(M + 16 + i))
    for i in range(8): rb(H + i, H + i)
    for i in range(0, 8, 2): pk('add', X + i, X + i, vp(H + i))
    for i in range(8): rb(X + i, X + i)
    fin = ln_stats(X, T, 48, 50, 52, S)
    ln_norm(H, X, 50, 52, fin)
    for i in range(8): rb(H + i, H + i)
    affine(H, M + 32, M + 24)
    pk('mul', S, H, vp(WRr)); pk('mul', S + 2, H + 2, vp(WRr + 2))
    a('v_pk_fma_f32 %s, %s, %s, %s' % (vp(S), vp(H + 4), vp(WRr + 4), vp(S))); a('v_pk_fma_f32 %s, %s, %s, %s' % (vp(S + 2), vp(H + 6), vp(WRr + 6), vp(S + 2)))
    pk('add', S, S, vp(S + 2)); a('v_add_f32 v%d, v%d, v%d' % (S, S, S + 1))
    for n, ctl in enumerate(DPPS):
        a('v_add_f32_dpp v%d, v%d, v%d %s' % (S, S, S, ctl))
    rb(S, S)
    a('v_ashrrev_i32 v%d, 31, v%d' % (S + 1, S)); a('v_or_b32 v%d, 0x80000000, v%d' % (S + 1, S + 1)); a('v_xor_b32 v%d, v%d, v%d' % (S, S, S + 1))
    a('s_sub_u32 s64, 2047, s12'); a('v_and_b32 v%d, s3, v%d' % (S, S)); a('v_or_b32 v%d, s64, v%d' % (S, S))
    a('s_lshl_b32 s64, s7, 2'); a('v_mov_b32 v%d, s64' % (S + 1))
    if DBGSPAN: a('s_mov_b32 s68, s14')
    a('v_readlane_b32 s14, v%d, 63' % S)
    a('s_mov_b32 exec_lo, 0'); a('s_mov_b32 exec_hi, 0x80000000')
    a('ds_write_b32 v%d, v%d offset:%d' % (S + 1, S, L_KEYL))
    if envi('KEYDIRECT', 0):
        a('s_lshl_b32 s64, s6, 7'); a('s_add_u32 s64, s64, %d' % (WS_SM + SM_KEY))
        a('buffer_store_dword v%d, v%d, s[56:59], s64 offen sc1' % (S, S + 1))
    a('s_mov_b64 exec, -1')
    a('s_add_u32 s65, s13, %d' % WS_H2)
    OUTR = 120; X1P = 124
    a('v_and_b32 v%d, 1, v1' % (S + 1)); a('v_lshlrev_b32 v%d, 4, v%d' % (S + 1, S + 1))
    a('s_lshl_b32 s64, s6, 7'); a('s_add_u32 s64, s64, %d' % (WS_SM + SM_KEY))
    a('s_lshl_b32 s65, s6, 11'); a('s_add_u32 s65, s65, %d' % (WS_SM + SM_SPEC))
    a.wait(lg=0); barrier()
    a('ds_read_b128 v[8:11], v%d offset:%d' % (S + 1, L_KEYL))
    a('s_cmp_lg_u32 s7, %d' % (99 if envi('KEYDIRECT', 0) else 0)); a('s_cbranch_scc1 k_nokey')
    a('s_mov_b64 exec, 0xff')
    a('buffer_store_dwordx4 v[8:11], v2, s[56:59], s64 offen sc1')
    a('s_mov_b64 exec, -1')
    a.label('k_nokey')
    stamp(12)
    for i in range(4): a('v_cvt_pk_bf16_f32 v%d, v%d, v%d' % (H2P + i, H + 2 * i, H + 2 * i + 1))
    for i in range(4): a('v_cvt_pk_bf16_f32 v%d, v%d, v%d' % (X1P + i, X + 2 * i, X + 2 * i + 1))
    for i in range(4): a('v_min_u32 v%d, -2, v%d' % (H2P + i, H2P + i))
    for i in range(4): a('v_min_u32 v%d, -2, v%d' % (X1P + i, X1P + i))
    if SPEC:
        a.wait(lg=0)
        a('v_max3_u32 v16, v8, v9, v10'); a('v_max_u32 v16, v16, v11')
        a('v_cmp_lt_u32 vcc, s14, v16')
        a('s_cbranch_vccnz k_nospec')
        a('buffer_store_dwordx4 %s, v2, s[56:59], s65 offen sc1' % vq(H2P)); a('buffer_store_dwordx4 %s, v2, s[56:59], s65 offen offset:1024 sc1' % vq(X1P))
        a.label('k_nospec')
    for i in range(0, 8, 2): pk('mul', T + i, H + i, vp(M + 40 + i))
    for i in range(8): rb(T + i, T + i)
    for i in range(0, 8, 2): pk('add', T + i, T + i, vp(X + i))
    for i in range(4): a('v_cvt_pk_bf16_f32 v%d, v%d, v%d' % (OUTR + i, T + 2 * i, T + 2 * i + 1))
    a('v_mov_b32 v20, 0'); a('v_lshlrev_b32 v21, 2, v1')
    a('v_mov_b32 v16, 0'); a('v_mov_b32 v17, 0'); a('v_lshlrev_b32 v18, 3, v1')
    a('ds_write_b64 v18, v[16:17] offset:%d' % L_RANK); a('ds_write_b64 v18, v[16:17] offset:%d' % L_SEG)
    a('v_lshrrev_b32 v24, 3, v1'); a('v_lshlrev_b32 v24, 6, v24'); a('v_and_b32 v25, 7, v1'); a('v_lshl_add_u32 v24, v25, 2, v24')
    a('ds_write_b32 v20, v20 offset:%d' % L_CNT); a('ds_write_b32 v20, v20 offset:%d' % L_FLAG)
    a('s_mov_b32 s11, %d' % (WS_SM + SM_KEY))
    a('v_and_b32 v4, 7, v1'); a('v_lshlrev_b32 v5, 2, v4')
    a('v_lshrrev_b32 v3, 3, v1'); a('v_add_lshl_u32 v3, v3, v4, 2'); a('v_and_b32 v3, 28, v3')
    a('v_lshrrev_b32 v6, 4, v1')
    a('v_and_b32 v17, 3, v1'); a('v_bfe_u32 v18, v1, 2, 2')
    a('v_lshlrev_b32 v22, 7, v6'); a('v_lshl_add_u32 v22, v18, 4, v22')
    a('v_and_b32 v23, 1, v17'); a('v_lshl_add_u32 v22, v23, 3, v22')
    a('v_lshrrev_b32 v23, 1, v17'); a('v_mul_u32_u24 v23, %d, v23' % L_GU); a('v_add_u32 v22, v22, v23')
    a('s_lshl_b32 s64, s7, 10'); a('s_add_u32 s64, s64, %d' % L_W); a('v_add_u32 v22, s64, v22')
    for i in range(2):
        for hh in range(2): a('ds_read_b64_tr_b16 %s, v22 offset:%d' % (vp(72 + 4 * i + 2 * hh), 512 * i + 64 * hh))
    a('s_lshl_b32 s64, s7, 7'); a('s_add_u32 s10, s64, %d' % (WS_SM + SM_X1))
    a('v_lshlrev_b32 v23, 11, v4')
    a.wait(vm=0, lg=0)
    KEY = 12
    ppoll('K', lambda B: ['buffer_load_dwordx4 %s, v19, s[56:59], s11 offen sc1' % vq(B)], lambda B: bad_sent([B, B + 1, B + 2, B + 3], 16)(), 4, 12, [156, 160, 164])
    stamp(13)
    T0 = 30
    a('v_max3_u32 v%d, v%d, v%d, v%d' % (T0, KEY, KEY + 1, KEY + 2)); a('v_max_u32 v%d, v%d, v%d' % (T0, T0, KEY + 3))
    wave_reduce('v_max_u32', [T0])
    a('s_lshl_b32 s64, s7, 2'); a('v_mov_b32 v%d, s64' % (T0 + 1))
    a('s_mov_b32 exec_lo, 0'); a('s_mov_b32 exec_hi, 0x80000000')
    a('ds_write_b32 v%d, v%d offset:%d' % (T0 + 1, T0, L_WM))
    a('s_mov_b64 exec, -1')
    a('s_mov_b32 s15, 0')
    if envi('EARLYOUT', 1):
        for j in range(4): a('v_cmp_lt_u32 %s, s14, v%d' % (sp(48 + 2 * j), KEY + j))
        for j in range(4): a('s_bcnt1_i32_b64 s%d, %s' % (60 + j, sp(48 + 2 * j)))
        a('s_add_u32 s60, s60, s61'); a('s_add_u32 s62, s62, s63'); a('s_add_u32 s60, s60, s62')
        a('s_cmp_lt_u32 s60, 8'); a('s_cbranch_scc1 k_noearly')
        srd(48, OUT, 2 * MiB)
        a('buffer_store_dwordx4 %s, v2, s[48:51], s13 offen%s' % (vq(OUTR), os.environ.get('OUTF', ' sc1')))
        a('s_mov_b32 s15, 1')
        a.label('k_noearly')
    a.wait(lg=0); barrier()
    a('ds_read_b128 %s, v20 offset:%d' % (vq(T0 + 4), L_WM)); a('ds_read_b128 %s, v20 offset:%d' % (vq(T0 + 8), L_WM + 16))
    a('v_min3_u32 v%d, v%d, v%d, v%d' % (T0, T0 + 4, T0 + 5, T0 + 6)); a('v_min3_u32 v%d, v%d, v%d, v%d' % (T0 + 1, T0 + 8, T0 + 9, T0 + 10))
    a('v_min3_u32 v%d, v%d, v%d, v%d' % (T0, T0, T0 + 7, T0 + 11)); a('v_min_u32 v%d, v%d, v%d' % (T0, T0, T0 + 1))
    MS = 48
    for j in range(4): a('v_cmp_ge_u32 %s, v%d, v%d' % (sp(MS + 2 * j), KEY + j, T0))
    for j in range(4): a('s_bcnt1_i32_b64 s%d, %s' % (60 + j, sp(MS + 2 * j)))
    a('s_add_u32 s61, s61, s60'); a('s_add_u32 s62, s62, s61'); a('s_add_u32 s63, s63, s62')
    a('s_lshl_b32 s64, s7, 4')
    a('s_cmp_gt_u32 s63, %d' % (1 if envi('FORCE_SLOW', 0) == 1 else 16)); a('s_cbranch_scc1 k_tk_over')
    for j in range(4):
        a('v_mbcnt_lo_u32_b32 v%d, s%d, 0' % (T0 + 4 + j, MS + 2 * j)); a('v_mbcnt_hi_u32_b32 v%d, s%d, v%d' % (T0 + 4 + j, MS + 1 + 2 * j, T0 + 4 + j))
        if j > 0: a('s_add_u32 s65, s64, s%d' % (60 + j - 1))
        a('v_add_lshl_u32 v%d, v%d, s%d, 2' % (T0 + 4 + j, T0 + 4 + j, 64 if j == 0 else 65))
    for j in range(4):
        a('s_mov_b64 exec, %s' % sp(MS + 2 * j))
        a('ds_write_b32 v%d, v%d offset:%d' % (T0 + 4 + j, KEY + j, L_SEG))
    a('s_mov_b64 exec, -1')
    a('s_cmp_gt_u32 s63, %d' % (1 if envi('FORCE_SLOW', 0) == 2 else 8)); a('s_cbranch_scc0 k_tk_b')
    a('v_mov_b32 v%d, 1' % (T0 + 4)); a('ds_or_b32 v20, v%d offset:%d' % (T0 + 4, L_FLAG))
    a('s_branch k_tk_b')
    a.label('k_tk_over')
    a('v_mov_b32 v%d, 2' % (T0 + 4)); a('ds_or_b32 v20, v%d offset:%d' % (T0 + 4, L_FLAG))
    a.label('k_tk_b')
    a('s_lshl_b32 s64, s7, 6'); a('v_mov_b32 v%d, s64' % (T0 + 1))
    a.wait(lg=0); barrier()
    a('ds_read_b32 v%d, v20 offset:%d' % (T0 + 2, L_FLAG))
    a('ds_read_b32 v%d, v24 offset:%d' % (T0 + 3, L_SEG))
    a('ds_read_b128 %s, v%d offset:%d' % (vq(T0 + 4), T0 + 1, L_SEG)); a('ds_read_b128 %s, v%d offset:%d' % (vq(T0 + 8), T0 + 1, L_SEG + 16))
    a('v_mov_b32 v%d, 0' % (T0 + 12)); a('v_mov_b32 v%d, 0' % (T0 + 13))
    a('v_readfirstlane_b32 s64, v%d' % (T0 + 2))
    a('s_cmp_lg_u32 s64, 0'); a('s_cbranch_scc1 k_tk_med')
    for hh in range(2):
        for e in range(4): a('v_cmp_gt_u32 %s, v%d, v%d' % (sp(MS + 2 * e), T0 + 4 + 4 * hh + e, T0 + 3))
        for e in range(4): a('v_addc_co_u32 v%d, vcc, 0, v%d, %s' % (T0 + 12 + (e & 1), T0 + 12 + (e & 1), sp(MS + 2 * e)))
    a('v_add_u32 v%d, v%d, v%d' % (T0 + 12, T0 + 12, T0 + 13))
    a('ds_add_u32 v21, v%d offset:%d' % (T0 + 12, L_RANK))
    a('v_cmp_ne_u32 s[64:65], 0, v%d' % (T0 + 3))
    a.wait(lg=0); barrier()
    a('ds_read_b32 v%d, v21 offset:%d' % (T0 + 12, L_RANK))
    a('v_cmp_gt_u32 vcc, 8, v%d' % (T0 + 12)); a('v_lshlrev_b32 v%d, 2, v%d' % (T0 + 12, T0 + 12))
    a('s_and_b64 exec, vcc, s[64:65]')
    a('ds_write_b32 v%d, v%d offset:%d' % (T0 + 12, T0 + 3, L_SEL))
    a('s_mov_b64 exec, -1')
    a.wait(lg=0)
    a.cold_begin()
    a.label('k_tk_med')
    a('s_cmp_gt_u32 s64, 1'); a('s_cbranch_scc1 k_tk_slow')
    a.wait(lg=0)
    CA = 44; RK = 46; SG = 48
    a('ds_read_b32 v%d, v21 offset:%d' % (CA, L_SEG)); a('ds_read_b32 v%d, v21 offset:%d' % (CA + 1, L_SEG + 256))
    a('ds_read_b128 %s, v%d offset:%d' % (vq(SG), T0 + 1, L_SEG + 32)); a('ds_read_b128 %s, v%d offset:%d' % (vq(SG + 4), T0 + 1, L_SEG + 48))
    a('v_mov_b32 v%d, 0' % RK); a('v_mov_b32 v%d, 0' % (RK + 1))
    for r in list(range(T0 + 4, T0 + 12)) + list(range(SG, SG + 8)):
        for c in range(2): a('v_cmp_gt_u32 %s, v%d, v%d' % (sp(MS + 2 * c), r, CA + c))
        for c in range(2): a('v_addc_co_u32 v%d, vcc, 0, v%d, %s' % (RK + c, RK + c, sp(MS + 2 * c)))
    a('ds_add_u32 v21, v%d offset:%d' % (RK, L_RANK)); a('ds_add_u32 v21, v%d offset:%d' % (RK + 1, L_RANK + 256))
    a.wait(lg=0); barrier()
    a('ds_read_b32 v%d, v21 offset:%d' % (RK, L_RANK)); a('ds_read_b32 v%d, v21 offset:%d' % (RK + 1, L_RANK + 256))
    for c in range(2):
        a('v_cmp_gt_u32 vcc, 8, v%d' % (RK + c)); a('v_cmp_ne_u32 s[64:65], 0, v%d' % (CA + c)); a('v_lshlrev_b32 v%d, 2, v%d' % (RK + c, RK + c))
        a('s_and_b64 exec, vcc, s[64:65]')
        a('ds_write_b32 v%d, v%d offset:%d' % (RK + c, CA + c, L_SEL))
        a('s_mov_b64 exec, -1')
    a.wait(lg=0)
    a('s_branch k_tk_done')
    a.label('k_tk_slow')
    a.wait(lg=0)
    for j in range(4): a('v_cmp_ge_u32 %s, v%d, v%d' % (sp(MS + 2 * j), KEY + j, T0))
    a('v_mov_b32 v%d, s63' % (T0 + 1))
    a('s_mov_b64 exec, 1')
    a('ds_add_rtn_u32 v%d, v20, v%d offset:%d' % (T0 + 3, T0 + 1, L_CNT))
    a('s_mov_b64 exec, -1')
    a('v_readfirstlane_b32 s64, v%d' % (T0 + 3))
    for j in range(4):
        a('v_mbcnt_lo_u32_b32 v%d, s%d, 0' % (T0 + 4 + j, MS + 2 * j)); a('v_mbcnt_hi_u32_b32 v%d, s%d, v%d' % (T0 + 4 + j, MS + 1 + 2 * j, T0 + 4 + j))
        if j > 0: a('s_add_u32 s65, s64, s%d' % (60 + j - 1))
        a('v_add_lshl_u32 v%d, v%d, s%d, 2' % (T0 + 4 + j, T0 + 4 + j, 64 if j == 0 else 65))
        a('s_mov_b64 exec, %s' % sp(MS + 2 * j))
        a('ds_write_b32 v%d, v%d offset:%d' % (T0 + 4 + j, KEY + j, L_LIST))
        a('s_mov_b64 exec, -1')
    a.wait(lg=0); barrier()
    a('ds_read_b32 v%d, v20 offset:%d' % (T0, L_CNT))
    a('v_readfirstlane_b32 s60, v%d' % T0)
    a('s_mov_b32 s61, 0')
    a.label('k_tk_chunk')
    a('v_add_u32 v%d, s61, v0' % (T0 + 1)); a('v_lshlrev_b32 v%d, 2, v%d' % (T0 + 3, T0 + 1))
    a('ds_read_b32 v%d, v%d offset:%d' % (T0, T0 + 3, L_LIST))
    a('v_mov_b32 v%d, 0' % (T0 + 3)); a('s_mov_b32 s62, 0'); a('v_mov_b32 v%d, 0' % (T0 + 2))
    a.label('k_tk_scan')
    a('ds_read_b128 %s, v%d offset:%d' % (vq(T0 + 4), T0 + 2, L_LIST))
    a('s_sub_u32 s63, s60, s62')
    for e in range(4):
        a('v_cmp_gt_u32 vcc, v%d, v%d' % (T0 + 4 + e, T0))
        a('s_cmp_gt_u32 s63, %d' % e); a('s_cselect_b64 vcc, vcc, 0')
        a('v_addc_co_u32 v%d, vcc, 0, v%d, vcc' % (T0 + 3, T0 + 3))
    a('v_add_u32 v%d, 16, v%d' % (T0 + 2, T0 + 2))
    a('s_add_u32 s62, s62, 4'); a('s_cmp_lt_u32 s62, s60'); a('s_cbranch_scc1 k_tk_scan')
    a('v_cmp_gt_u32 vcc, s60, v%d' % (T0 + 1)); a('v_cmp_gt_u32 s[64:65], 8, v%d' % (T0 + 3)); a('s_and_b64 vcc, vcc, s[64:65]')
    a('v_lshlrev_b32 v%d, 2, v%d' % (T0 + 3, T0 + 3))
    a('s_mov_b64 exec, vcc')
    a('ds_write_b32 v%d, v%d offset:%d' % (T0 + 3, T0, L_SEL))
    a('s_mov_b64 exec, -1')
    a('s_add_u32 s61, s61, 512'); a('s_cmp_lt_u32 s61, s60'); a('s_cbranch_scc1 k_tk_chunk')
    a.wait(lg=0); barrier()
    a('s_branch k_tk_done')
    a.cold_end()
    a.label('k_tk_done')
    stamp(14)
    a('ds_read_b32 v7, v5 offset:%d' % L_SEL)
    a('ds_read_b32 v9, v3 offset:%d' % L_SEL)
    a('v_not_b32 v8, v7'); a('v_and_b32 v8, 0x7ff, v8')
    a('v_and_b32 v10, 0x7f8, v8'); a('v_lshlrev_b32 v10, 8, v10'); a('v_add_u32 v10, %d, v10' % (SM_SPEC - SM_X1))
    a('v_xor_b32 v9, v9, v7'); a('v_and_b32 v9, 0x7f8, v9'); a('v_cmp_eq_u32 vcc, 0, v9')
    a('v_lshlrev_b32 v8, 10, v8')
    a('s_andn2_b32 s62, vcc_lo, 0xff'); a('s_or_b32 s62, s62, vcc_hi')
    a('s_cmp_eq_u32 s62, %d' % (12345 if envi('FORCE_XSEL', 0) else 0)); a('s_cselect_b64 s[62:63], -1, 0')
    a('v_cndmask_b32 v10, v23, v10, s[62:63]')
    def own_row_store(tag):
        a('s_or_b32 s61, s60, s15'); a('s_cbranch_scc1 k_own_%s' % tag)
        a('buffer_store_dwordx4 %s, v2, s[48:51], s13 offen%s' % (vq(OUTR), os.environ.get('OUTF', ' sc1')))
        a.label('k_own_%s' % tag)
    def after_sel(tag):
        a('v_cmp_eq_u32 vcc, s14, v7'); a('s_and_b32 s60, vcc_lo, 0xff')
        srd(48, OUT, 2 * MiB)
        a('s_andn2_b32 s63, s60, s62')
        a('s_cmp_eq_u32 s63, 0'); a('s_cbranch_scc1 k_nosel%s' % tag)
        a('s_ff1_i32_b32 s61, s60'); a('s_lshl_b32 s61, s61, 11'); a('s_add_u32 s61, s61, %d' % (WS_SM + SM_X1))
        a('buffer_store_dwordx4 %s, v2, s[56:59], s61 offen sc1' % vq(H2P))
        a('buffer_store_dwordx4 %s, v2, s[56:59], s61 offen offset:1024 sc1' % vq(X1P))
        a.label('k_nosel%s' % tag)
    a('s_cmp_ge_u32 s5, 28'); a('s_cbranch_scc1 k_ffn2')
    st1 = a.save()
    a('v_lshl_add_u32 v9, v6, 4, v10')
    xl = ['buffer_load_dwordx4 v[12:15], v9, s[56:59], s10 offen sc1', 'buffer_load_dwordx4 v[16:19], v9, s[56:59], s10 offen offset:64 sc1']
    a('s_mov_b32 exec_lo, 0x00ff00ff'); a('s_mov_b32 exec_hi, 0x00ff00ff')
    for l in xl: a(l)
    a('s_mov_b64 exec, -1')
    after_sel('a')
    a('s_lshl_b32 s61, s2, 4'); a('s_add_u32 s61, s61, s7'); a('s_cmp_lg_u32 s61, 1'); a('s_cbranch_scc1 k_norst')
    srd(52, DBG, 256)
    a('v_mov_b32 v20, 0'); a('v_mov_b32 v21, 0'); a('s_mov_b64 exec, 1')
    a('buffer_store_dwordx2 v[20:21], v20, s[52:55], 0 offen sc1')
    a.label('k_norst')
    a('s_mov_b32 exec_lo, 0x00ff00ff'); a('s_mov_b32 exec_hi, 0x00ff00ff'); a('s_mov_b32 s64, 0')
    a.label('k_xp')
    a.wait(vm=0)
    bad_sent(list(range(12, 20)), 36)()
    a('s_add_u32 s64, s64, 1'); a('s_and_b64 exec, exec, vcc'); a('s_cbranch_execz k_xp_done')
    for l in xl: a(l)
    a('s_cmp_lt_u32 s64, %d' % SPIN_LIMIT); a('s_cbranch_scc1 k_xp')
    a.wait(vm=0)
    a.label('k_xp_done')
    a('s_mov_b64 exec, -1')
    tstamp(1)
    a('v_mfma_f32_16x16x32_bf16 v[32:35], v[72:75], v[12:15], 0')
    a('v_mfma_f32_16x16x32_bf16 v[32:35], v[76:79], v[16:19], v[32:35]')
    a('v_lshlrev_b32 v36, 4, v0')
    own_row_store('a')
    a.nop(5)
    a('ds_write_b128 v36, v[32:35] offset:%d' % L_P)
    a.wait(lg=0); barrier()
    a('s_cmp_lg_u32 s7, 0'); a('s_cbranch_scc1 k_end')
    for w in range(8): a('ds_read_b128 %s, v36 offset:%d' % (vq(40 + 4 * w), L_P + 1024 * w))
    a('s_mov_b32 s64, 0x%x' % (LOG2E | 0x80000000))
    a('s_mul_i32 s65, s4, 28'); a('s_add_u32 s65, s65, s5'); a('s_lshl_b32 s65, s65, 7'); a('s_add_u32 s65, s65, %d' % (WS_SM + SM_ACT))
    a('v_and_b32 v81, 15, v1'); a('v_lshlrev_b32 v82, 4, v81'); a('v_lshl_add_u32 v80, v6, 3, v82')
    for st in (16, 8, 4):
        for i in range(0, st, 2): pk('add', 40 + i, 40 + i, vp(40 + i + st))
    for i in range(4): rb(40 + i, 40 + i)
    for i in range(4): a('v_mov_b32 v%d, v%d' % (44 + i, 40 + i))
    silu_like(52, 40, 4, 64)
    for i in range(4): a('v_permlane32_swap_b32 v%d, v%d' % (44 + i, 48 + i))
    for i in range(4): a('v_mul_f32 v%d, v%d, v%d' % (52 + i, 52 + i, 48 + i))
    a('v_cvt_pk_bf16_f32 v56, v52, v53'); a('v_cvt_pk_bf16_f32 v57, v54, v55')
    a('v_min_u32 v56, -2, v56'); a('v_min_u32 v57, -2, v57')
    a('s_mov_b32 exec_lo, 0x00ff00ff'); a('s_mov_b32 exec_hi, 0')
    a('buffer_store_dwordx2 v[56:57], v80, s[56:59], s65 offen sc1')
    tstamp(2)
    a('s_branch k_end')
    a.label('k_ffn2'); a.load(st1)
    after_sel('b')
    own_row_store('b')
    a('s_lshl_b32 s8, s4, 2'); a('s_add_u32 s8, s8, s5'); a('s_sub_u32 s8, s8, 28')
    a('s_lshl_b32 s9, s8, 5')
    a('s_mul_i32 s64, s7, 7168'); a('s_add_u32 s64, s64, %d' % L_W)
    if WDE < 7 and WSCHED != 'N':
        srd(52, WD_, 1792 * 1024)
        wd_addr(15)
        a('s_mul_i32 s65, s7, %d' % (224 * 1024)); a('s_add_u32 s65, s65, s9'); a('s_add_u32 s65, s65, %d' % (32768 * WDE)); a('s_add_u32 s10, s64, %d' % (1024 * WDE))
        for i in range(WDE, 7):
            a('s_mov_b32 m0, s10'); a('s_add_u32 s10, s10, 1024'); a('buffer_load_dwordx4 v15, s[52:55], s65 offen lds'); a('s_add_u32 s65, s65, 32768')
    a('v_and_b32 v20, 3, v1'); a('v_bfe_u32 v21, v1, 2, 2')
    a('v_lshrrev_b32 v22, 1, v6'); a('v_lshlrev_b32 v22, 9, v22'); a('v_and_b32 v23, 1, v6'); a('v_lshl_add_u32 v22, v23, 7, v22')
    a('v_lshl_add_u32 v22, v21, 5, v22'); a('v_lshl_add_u32 v22, v20, 3, v22')
    a('v_add_u32 v22, s64, v22')
    for i in range(WDE):
        for hh in range(2): a('ds_read_b64_tr_b16 %s, v22 offset:%d' % (vp(64 + 4 * i + 2 * hh), 1024 * i + 256 * hh))
    a('v_lshlrev_b32 v9, 7, v6'); a('v_lshl_add_u32 v9, v4, 4, v9')
    a('s_mul_i32 s11, s7, 3584'); a('s_add_u32 s11, s11, %d' % (WS_SM + SM_ACT))
    a('v_lshl_add_u32 v8, v6, 3, v8')
    a('s_cmp_lg_u32 s7, 0'); a('s_cbranch_scc1 k_f2_act')
    a('v_lshl_add_u32 v10, v6, 3, v10')
    a('s_add_u32 s61, s9, %d' % WS_H2); a('s_add_u32 s62, s9, %d' % (WS_SM + SM_X1))
    a('v_lshlrev_b32 v11, 3, v6'); a('v_add_u32 v11, s9, v11')
    a('ds_read_b64 v[16:17], v11 offset:%d' % (L_MOD + 5 * 1024))
    a('v_and_b32 v30, s3, v7'); a('v_ashrrev_i32 v31, 31, v30'); a('v_not_b32 v31, v31'); a('v_or_b32 v31, 0x80000000, v31'); a('v_xor_b32 v30, v30, v31'); a('v_and_b32 v30, s3, v30')
    a('s_mov_b32 s64, 0x%x' % (LOG2E | 0x80000000))
    silu_like(31, 30, 1, 64, mulx=False)
    unpack(92, 16, 2)
    poll(['buffer_load_dwordx2 v[12:13], v10, s[56:59], s62 offen sc1' if OWNER else 'buffer_load_dwordx2 v[12:13], v8, s[56:59], s61 offen sc1',
          'buffer_load_dwordx2 v[14:15], v10, s[56:59], s62 offen offset:1024 sc1'], bad_sent([12, 13, 14, 15], 29))
    unpack(96, 12, 4)
    a.label('k_f2_act')
    a.wait(vm=0, lg=0)
    tstamp(3)
    for i in range(WDE, 7):
        for hh in range(2): a('ds_read_b64_tr_b16 %s, v22 offset:%d' % (vp(64 + 4 * i + 2 * hh), 1024 * i + 256 * hh))
    ppoll('A', lambda B: ['buffer_load_dwordx4 %s, v9, s[56:59], s11 offen offset:%d sc1' % (vq(B + 4 * i), 512 * i) for i in range(7)],
          lambda B: bad_sent(list(range(B, B + 28)), 29)(), 28, 32, [112, 140], exec_mask=0x00ff00ff)
    tstamp(4)
    if STAMP and TAILST: a('s_mov_b32 s%d, s64' % (SST + 12))
    for i in range(7):
        a('v_mfma_f32_16x16x32_bf16 v[24:27], %s, %s, %s' % (vq(64 + 4 * i), vq(32 + 4 * i), '0' if i == 0 else 'v[24:27]'))
    a('v_lshlrev_b32 v28, 4, v0')
    a('ds_write_b128 v28, v[24:27] offset:%d' % L_P)
    a.wait(lg=0); barrier()
    a('s_cmp_lg_u32 s7, 0'); a('s_cbranch_scc1 k_end')
    for w in range(8): a('ds_read_b128 %s, v28 offset:%d' % (vq(40 + 4 * w), L_P + 1024 * w))
    for st in (16, 8, 4):
        for i in range(0, st, 2): pk('add', 40 + i, 40 + i, vp(40 + i + st))
    for i in range(4): rb(40 + i, 40 + i)
    for i in range(4): a('v_mul_f32 v%d, v%d, v31' % (40 + i, 40 + i))
    for i in range(4): rb(40 + i, 40 + i)
    for i in (0, 2): pk('add', 40 + i, 40 + i, vp(96 + i))
    for i in range(4): rb(40 + i, 40 + i)
    for i in (0, 2): pk('mul', 40 + i, 40 + i, vp(92 + i))
    for i in range(4): rb(40 + i, 40 + i)
    for i in (0, 2): pk('add', 40 + i, 40 + i, vp(100 + i))
    a('v_cvt_pk_bf16_f32 v44, v40, v41'); a('v_cvt_pk_bf16_f32 v45, v42, v43')
    a('s_mov_b32 exec_lo, 0x00ff00ff'); a('s_mov_b32 exec_hi, 0x00ff00ff')
    a('buffer_store_dwordx2 v[44:45], v8, s[48:51], s9 offen' + os.environ.get('OUTF2', ' sc1'))
    if DBGSPAN:
        a('s_memrealtime s[64:65]'); a.wait(lg=0)
        a('s_sub_u32 s64, s64, s68'); a('v_mov_b32 v1, s64'); a('s_and_b32 s8, s8, 7'); a('s_lshl_b32 s8, s8, 2'); a('s_add_u32 s8, s8, 8')
        srd(52, DBG, 256)
        a('v_mov_b32 v2, 0'); a('s_mov_b64 exec, 1')
        a('buffer_store_dword v1, v2, s[52:55], s8 offen')
    a.label('k_end')
    if STAMP:
        a('s_memrealtime s[%d:%d]' % (SST + 30, SST + 31))
        a('s_mov_b64 exec, -1')
        a.wait(vm=0, lg=0)
        for i in range(16): a('v_writelane_b32 v2, s%d, %d' % (SST + 2 * i, i))
        a('s_mul_i32 s5, s2, 10'); a('s_add_u32 s5, s5, s7'); a('s_lshl_b32 s5, s5, 6')
        srd(8, WS, MiB, WS_STAMP)
        a('v_and_b32 v1, 63, v0'); a('v_lshlrev_b32 v1, 2, v1')
        a('s_mov_b64 exec, 0xffff')
        a('buffer_store_dword v2, v1, s[8:11], s5 offen')
    a.label('k_exit')
    a('s_endpgm')
    a.cold_flush()
    a.label('k_code_end')

def main(outpath):
    hdr = open('cdna_kernels/%s.s.ref' % NAME).read().split('\n')
    out = [l for l in hdr if l.startswith(';') and '@launch' not in l]
    out.append('; @launch grid=(256,1,1) block=(640,1,1) lds=%d' % LDS_SIZE)
    out.append('.amdgcn_target "amdgcn-amd-amdhsa--gfx950"'); out.append('.text')
    out += ['; One persistent launch, 256 workgroups (one per CU) x 10 waves, generated by a script of ours. Phases:',
            ';  1. kv = shiftconv(k)*v for a 64x64 tile (raw tile by LDS-DMA), handed to the owner of each channel pair as clock-tagged 16B granules',
            ';  2. causal 2048-tap convolution of two channels as Toeplitz MFMA (16x16x32 bf16, fp32 accumulate), z = y + kv*D',
            ';  3. rows: LN1, x1, LN2, h2, router score; hand-offs by write-through stores into sentinel-filled lines, polled by the readers',
            ';  4. exact top-8 in every workgroup, gate/up slices on 224 workgroups, down projection + final rows on 32 workgroups',
            '; wave 8: adaLN modulation slice (MFMA GEMV) and cache warm-up, wave 9: sentinel fills and launch epoch (d_debug).']
    gen()
    body = a.text()
    m = max([int(x) for x in re.findall(r'\bv(\d+)\b', body)] + [int(x) for x in re.findall(r'\bv\[\d+:(\d+)\]', body)])
    vg = (m + 1 + 7) // 8 * 8
    assert vg <= 168
    out.append(body)
    out.append('.section .rodata,"a"')
    out.append('.p2align 6')
    out.append('.amdhsa_kernel %s' % KN)
    out.append('  .amdhsa_next_free_vgpr %d' % vg); out.append('  .amdhsa_next_free_sgpr 102'); out.append('  .amdhsa_accum_offset %d' % vg)
    out.append('  .amdhsa_group_segment_fixed_size 0'); out.append('  .amdhsa_kernarg_size 128')
    out.append('  .amdhsa_user_sgpr_count 2'); out.append('  .amdhsa_user_sgpr_kernarg_segment_ptr 1'); out.append('  .amdhsa_system_sgpr_workgroup_id_x 1')
    out.append('  .amdhsa_float_denorm_mode_32 3')
    out.append('.end_amdhsa_kernel')
    open(outpath, 'w').write('\n'.join(out) + '\n')
    print('wrote', outpath, 'vgprs', m + 1, 'nops', a.nops_inserted, 'LDS', LDS_SIZE)

if __name__ == '__main__':
    main(sys.argv[1] if len(sys.argv) > 1 else 'cdna_kernels/%s.s' % NAME)
```
